```python
import torch

def _softmax(x, axis=-1):
    return torch.softmax(x, dim=axis)

def _gelu(x):
    return torch.nn.functional.gelu(x, approximate='tanh')

def _silu(x):
    return torch.nn.functional.silu(x)

def _sigmoid(x):
    return torch.sigmoid(x)

def _layernorm(x, axis=-1, eps=1e-05):
    m = x.mean(dim=axis, keepdim=True)
    v = x.var(dim=axis, keepdim=True, unbiased=False)
    return (x - m) / torch.sqrt(v + eps)

def _scatter_add(tgt, idx, src, axis=0):
    return tgt.clone().index_add_(axis, idx, src)

def _segment_sum(src, seg, n):
    out = torch.zeros((n,) + src.shape[1:], dtype=src.dtype)
    return out.index_add_(0, seg, src)

def _pad(x, pw):
    flat = tuple((v for pair in reversed(pw) for v in pair))
    return torch.nn.functional.pad(x, flat)
kernel_name = 'standalone__kv_cache_quant_pre_rope_vs_post_rope__prompt'

def setup_inputs():

    _w = lambda a: (lambda t: t.to(torch.bfloat16) if t.is_floating_point() else t)(torch.as_tensor(a))
    B, Sq, Skv = (1, 2048, 2048)
    H, Dh0 = (8, 128)
    G = -1 if -1 > 0 else Dh0
    G = max(2, G // 2 * 2)
    Dh = max(G, Dh0 // G * G)
    Skv = max(Skv, Sq)
    ng = Dh // G
    bits = 2 if 2 > 1 else 4
    bits = max(2, min(8, bits))
    qmax = (1 << bits) - 1
    half = Dh // 2
    inv = 1.0 / 10000.0 ** (torch.arange(half) / max(1, half))
    ang_k = torch.arange(Skv)[:, None] * inv[None, :]
    ang_q = torch.arange(Skv - Sq, Skv)[:, None] * inv[None, :]
    kc = torch.cat([torch.cos(ang_k), torch.cos(ang_k)], dim=-1)
    ks = torch.cat([torch.sin(ang_k), torch.sin(ang_k)], dim=-1)
    qc = torch.cat([torch.cos(ang_q), torch.cos(ang_q)], dim=-1)
    qs = torch.cat([torch.sin(ang_q), torch.sin(ang_q)], dim=-1)
    qk_i = torch.randint(0, qmax + 1, (B, H, Skv, Dh)).to(torch.int32)
    qv_i = torch.randint(0, qmax + 1, (B, H, Skv, Dh)).to(torch.int32)
    ksc = torch.abs((lambda *s: torch.randn(*s, dtype=torch.bfloat16) * 0.4)(B, H, Skv, ng)) * 0.1 + 0.01
    kzp = torch.full((B, H, Skv, ng), qmax / 2.0)
    vsc = torch.abs((lambda *s: torch.randn(*s, dtype=torch.bfloat16) * 0.4)(B, H, Skv, ng)) * 0.1 + 0.01
    vzp = torch.full((B, H, Skv, ng), qmax / 2.0)
    return {'q': _w((lambda *s: torch.randn(*s, dtype=torch.bfloat16) * 6.4)(B, H, Sq, Dh) * 0.5), 'qk': _w(qk_i), 'k_scales': _w(ksc), 'k_zeros': _w(kzp), 'qv': _w(qv_i), 'v_scales': _w(vsc), 'v_zeros': _w(vzp), 'q_cos': _w(qc), 'q_sin': _w(qs), 'k_cos': _w(kc), 'k_sin': _w(ks)}

def reference(q, qk, k_scales, k_zeros, qv, v_scales, v_zeros, q_cos, q_sin, k_cos, k_sin):
    B, H, Sq, Dh = q.shape
    ng = k_scales.shape[-1]
    G = Dh // ng
    half = Dh // 2
    ks = (lambda x, n, axis: torch.repeat_interleave(x, n, dim=axis))(k_scales, G, axis=-1)
    kz = (lambda x, n, axis: torch.repeat_interleave(x, n, dim=axis))(k_zeros, G, axis=-1)
    k = ((lambda x, dt: x.to(dt))(qk, q.dtype) - kz) * ks
    vs = (lambda x, n, axis: torch.repeat_interleave(x, n, dim=axis))(v_scales, G, axis=-1)
    vz = (lambda x, n, axis: torch.repeat_interleave(x, n, dim=axis))(v_zeros, G, axis=-1)
    v = ((lambda x, dt: x.to(dt))(qv, q.dtype) - vz) * vs
    k1 = k[..., :half].clone()
    k2 = k[..., half:].clone()
    krh = torch.concatenate([-k2, k1], axis=-1)
    kr = k * k_cos[None, None, :, :] + krh * k_sin[None, None, :, :]
    q1 = q[..., :half].clone()
    q2 = q[..., half:].clone()
    qrh = torch.concatenate([-q2, q1], axis=-1)
    qr = q * q_cos[None, None, :, :] + qrh * q_sin[None, None, :, :]
    logits = torch.einsum('bhqd,bhkd->bhqk', qr, kr) * float(Dh) ** (-0.5)
    attn = _softmax(logits, axis=-1)
    out = torch.einsum('bhqk,bhkd->bhqd', attn, v)
    return out
```

```python
import sys, struct, argparse
NAME = "standalone__kv_cache_quant_pre_rope_vs_post_rope__prompt"

def f32bits(x): return struct.unpack("<I", struct.pack("<f", x))[0]
CSCALE = 1.4426950408889634 * (128.0 ** -0.5)

V_KOFF0, V_KOFF1, V_VOFF0, V_VOFF1 = 1, 2, 3, 4
V_LANE = 5
V_T = {'a': 8, 'b': 9}
V_L = {'a': 10, 'b': 11}
V_TMP0, V_TMP1, V_TMP2, V_TMP3 = 12, 13, 14, 15
V_S = {'a': 16, 'b': 32}
V_NM = {'a': 48, 'b': 64}
V_E = {'a': 80, 'b': 96}
V_P = {'a': 112, 'b': 120}
V_K = [128, 160]
V_V = [192, 224]
def A_O(x, t): return ((0 if x == 'a' else 1) * 4 + t) * 16
def A_Q(x, ks): return 128 + ((0 if x == 'a' else 1) * 8 + ks) * 4
S_Q, S_QK, S_KS, S_KZ, S_QV, S_VS, S_VZ, S_QC, S_QS, S_KC, S_KSN, S_OUT, S_DBG, S_WS = [4 + 2 * i for i in range(14)]
S_H, S_I, S_W, S_TAG = 32, 33, 34, 35
S_T0, S_T1, S_T2, S_T3 = 36, 37, 38, 39
S_SRD = 40
S_OFF, S_THR = 44, 45
S_C = 46
S_TBL = 48
S_RET = 66
S_CNT = 68
S_EXEC = 70
L_KT = 0
L_Q = 9216
L_ST = L_Q + 16 * 1040
L_O = L_ST + 4096
LDS_BYTES = L_O + 96 * 1024
WS_FLAG = 8 << 20
WS_EPOCH = 9 << 20
THRESH = 1024.0

class Gen:
    def __init__(self, mode="fused", exact=False, stamps=False):
        self.L = []
        self.mode = mode
        self.exact = exact
        self.stamps = stamps
        self.uid = 0
    def A(self, s):
        for line in s.split("\n"):
            self.L.append(line)
    def label(self, base):
        self.uid += 1
        return "%s_%d" % (base, self.uid)

    def stamp(self, idx):
        if not self.stamps: return
        self.A("s_memtime s[76:77]\ns_waitcnt lgkmcnt(0)\ns_mov_b32 s%d, s76" % (80 + idx))

    def setup(self, endlabel):
        A = self.A
        A("s_cmp_ge_u32 s2, 256\ns_cbranch_scc1 %s" % endlabel)
        A("s_load_dwordx16 s[4:19], s[0:1], 0\ns_load_dwordx8 s[20:27], s[0:1], 64\ns_load_dwordx4 s[28:31], s[0:1], 96")
        A("v_lshrrev_b32 v1, 6, v0\nv_and_b32 v%d, 63, v0" % V_LANE)
        A("s_and_b32 s%d, s2, 7\ns_lshr_b32 s%d, s2, 3" % (S_H, S_I))
        A("v_readfirstlane_b32 s%d, v1" % S_W)
        A("s_mov_b32 s%d, 0x%08x\ns_mov_b32 s%d, 0x%08x" % (S_C, f32bits(CSCALE), S_C + 1, f32bits(CSCALE)))
        A("s_mov_b32 s%d, 0x%08x" % (S_THR, f32bits(THRESH)))

    def kv_addr(self):
        A = self.A
        ln = V_LANE
        A("s_lshl_b32 s%d, s%d, 6\ns_lshl_b32 s%d, s%d, 3\ns_add_u32 s%d, s%d, s%d" % (S_T0, S_I, S_T1, S_W, S_T0, S_T0, S_T1))
        A("v_lshrrev_b32 v11, 3, v%d\nv_add_u32 v11, s%d, v11" % (ln, S_T0))
        A("v_and_b32 v12, 7, v%d" % ln)
        A("s_lshl_b32 s%d, s%d, 20" % (S_T2, S_H))
        A("v_lshlrev_b32 v6, 9, v11\nv_lshl_add_u32 v6, v12, 5, v6\nv_add_u32 v6, s%d, v6" % S_T2)
        A("v_lshlrev_b32 v7, 8, v11\nv_lshl_add_u32 v7, v12, 4, v7")
        A("s_lshl_b32 s%d, s%d, 12" % (S_T3, S_H))
        A("v_lshlrev_b32 v8, 1, v11\nv_add_u32 v8, s%d, v8" % S_T3)
        A("s_lshl_b32 s%d, s%d, 6\ns_lshr_b32 s%d, s%d, 1\ns_lshl_b32 s%d, s%d, 4\ns_add_u32 s%d, s%d, s%d" % (S_T0, S_I, S_T1, S_W, S_T1, S_T1, S_T0, S_T0, S_T1))
        A("v_lshrrev_b32 v11, 5, v%d\nv_lshlrev_b32 v11, 2, v11\nv_add_u32 v11, s%d, v11" % (ln, S_T0))
        A("v_and_b32 v12, 31, v%d" % ln)
        A("s_and_b32 s%d, s%d, 1\ns_lshl_b32 s%d, s%d, 8\ns_add_u32 s%d, s%d, s%d\ns_add_u32 s%d, s%d, 2560" % (S_T1, S_W, S_T1, S_T1, S_T1, S_T1, S_T2, S_T1, S_T1))
        A("v_lshlrev_b32 v9, 9, v11\nv_lshl_add_u32 v9, v12, 3, v9\nv_add_u32 v9, s%d, v9" % S_T1)
        A("v_lshlrev_b32 v10, 1, v11\nv_add_u32 v10, s%d, v10" % S_T3)

    def kv_loads(self, rb):
        A = self.A
        n = 0
        def ld(s):
            nonlocal n
            A(s); n += 1
        sp = lambda r: "s[%d:%d]" % (r, r + 1)
        for k, off in enumerate((0, 16, 256, 272)):
            ld("global_load_dwordx4 v[%d:%d], v6, %s offset:%d" % (rb + 4 * k, rb + 4 * k + 3, sp(S_QK), off))
        for j in range(8):
            off = (8 * (j >> 2) + (j & 3)) * 512 - 2560
            ld("global_load_dwordx2 v[%d:%d], v9, %s offset:%d" % (rb + 34 + 2 * j, rb + 35 + 2 * j, sp(S_QV), off))
        ld("global_load_dwordx4 v[%d:%d], v7, %s" % (rb + 16, rb + 19, sp(S_KC)))
        ld("global_load_dwordx4 v[%d:%d], v7, %s offset:128" % (rb + 20, rb + 23, sp(S_KC)))
        ld("global_load_dwordx4 v[%d:%d], v7, %s" % (rb + 24, rb + 27, sp(S_KSN)))
        ld("global_load_dwordx4 v[%d:%d], v7, %s offset:128" % (rb + 28, rb + 31, sp(S_KSN)))
        ld("global_load_ushort v%d, v8, %s" % (rb + 32, sp(S_KS)))
        ld("global_load_ushort v%d, v8, %s" % (rb + 33, sp(S_KZ)))
        ld("global_load_dwordx2 v[%d:%d], v10, %s" % (rb + 50, rb + 51, sp(S_VS)))
        ld("global_load_dwordx2 v[%d:%d], v10, %s offset:16" % (rb + 52, rb + 53, sp(S_VS)))
        ld("global_load_dwordx2 v[%d:%d], v10, %s" % (rb + 54, rb + 55, sp(S_VZ)))
        ld("global_load_dwordx2 v[%d:%d], v10, %s offset:16" % (rb + 56, rb + 57, sp(S_VZ)))
        return n

    def kv_next_stage_addr(self):
        self.A("v_add_u32 v6, 16384, v6\nv_add_u32 v7, 8192, v7\nv_add_u32 v8, 64, v8\nv_add_u32 v9, 16384, v9\nv_add_u32 v10, 64, v10")

    def unpack(self, dst, src):
        self.A("v_lshlrev_b32 v%d, 16, v%d\nv_and_b32 v%d, 0xffff0000, v%d" % (dst, src, dst + 1, src))

    def round_pair(self, r):
        self.A("v_cvt_pk_bf16_f32 v%d, v%d, v%d" % (r + 1, r, r + 1))
        self.A("v_lshlrev_b32 v%d, 16, v%d\nv_and_b32 v%d, 0xffff0000, v%d" % (r, r + 1, r + 1, r + 1))

    def int_to_f32(self, regs, tmp):
        A = self.A
        for r in regs: A("v_cvt_f32_i32 v%d, v%d" % (r, r))
        A("v_max3_f32 v%d, |v%d|, |v%d|, 0" % (tmp, regs[0], regs[1]))
        for k in range(2, len(regs), 2):
            A("v_max3_f32 v%d, |v%d|, |v%d|, v%d" % (tmp, regs[k], regs[k + 1], tmp))
        lab = self.label("L_small")
        A("v_cmp_lt_f32 vcc, 0x43800000, v%d" % tmp)
        A("s_cbranch_vccz %s" % lab)
        for k in range(0, len(regs), 2): self.round_pair(regs[k])
        A("%s:" % lab)

    def rope(self, x1, x2, c1, c2, s1, s2, tb, out1, out2, scale_c):
        A = self.A
        P = lambda r: "v[%d:%d]" % (r, r + 1)
        for p in range(4):
            a, b = x1 + 2 * p, x2 + 2 * p
            c, s, t, u = tb, tb + 2, tb + 4, tb + 6
            self.unpack(c, c1 + p); self.unpack(s, s1 + p)
            if self.exact:
                A("v_pk_mul_f32 %s, %s, %s" % (P(t), P(a), P(c)))
                A("v_pk_mul_f32 %s, %s, %s neg_lo:[1,0] neg_hi:[1,0]" % (P(u), P(b), P(s)))
                self.round_pair(t); self.round_pair(u)
                A("v_pk_add_f32 %s, %s, %s" % (P(t), P(t), P(u)))
                if scale_c:
                    self.round_pair(t)
                    A("v_pk_mul_f32 %s, %s, s[%d:%d]" % (P(t), P(t), S_C, S_C + 1))
            else:
                A("v_pk_mul_f32 %s, %s, %s" % (P(t), P(a), P(c)))
                A("v_pk_fma_f32 %s, %s, %s, %s neg_lo:[1,0,0] neg_hi:[1,0,0]" % (P(t), P(b), P(s), P(t)))
            A("v_cvt_pk_bf16_f32 v%d, v%d, v%d" % (out1 + p, t, t + 1))
            self.unpack(c, c2 + p); self.unpack(s, s2 + p)
            if self.exact:
                A("v_pk_mul_f32 %s, %s, %s" % (P(t), P(b), P(c)))
                A("v_pk_mul_f32 %s, %s, %s" % (P(u), P(a), P(s)))
                self.round_pair(t); self.round_pair(u)
                A("v_pk_add_f32 %s, %s, %s" % (P(t), P(t), P(u)))
                if scale_c:
                    self.round_pair(t)
                    A("v_pk_mul_f32 %s, %s, s[%d:%d]" % (P(t), P(t), S_C, S_C + 1))
            else:
                A("v_pk_mul_f32 %s, %s, %s" % (P(t), P(b), P(c)))
                A("v_pk_fma_f32 %s, %s, %s, %s" % (P(t), P(a), P(s), P(t)))
            A("v_cvt_pk_bf16_f32 v%d, v%d, v%d" % (out2 + p, t, t + 1))

    def k_task(self, rb, tb, g, st):
        A = self.A
        P = lambda r: "v[%d:%d]" % (r, r + 1)
        sc, z = rb + 32, rb + 33
        self.int_to_f32(list(range(rb, rb + 16)), tb)
        A("v_lshlrev_b32 v%d, 16, v%d\nv_lshlrev_b32 v%d, 16, v%d" % (sc, sc, z, z))
        if self.exact:
            for p in range(8):
                r = rb + 2 * p
                A("v_pk_add_f32 %s, %s, %s op_sel:[0,1] op_sel_hi:[1,1] neg_lo:[0,1] neg_hi:[0,1]" % (P(r), P(r), P(sc)))
                self.round_pair(r)
                A("v_pk_mul_f32 %s, %s, %s op_sel_hi:[1,0]" % (P(r), P(r), P(sc)))
                self.round_pair(r)
        else:
            A("v_mul_f32 v%d, v%d, v%d" % (z, z, sc))
            for p in range(8):
                r = rb + 2 * p
                A("v_pk_fma_f32 %s, %s, %s, %s op_sel:[0,0,1] op_sel_hi:[1,0,1] neg_lo:[0,0,1] neg_hi:[0,0,1]" % (P(r), P(r), P(sc), P(sc)))
        o1, o2 = tb + 8, tb + 12
        self.rope(rb, rb + 8, rb + 16, rb + 20, rb + 24, rb + 28, tb, o1, o2, False)
        A("ds_write_b128 v11, v[%d:%d]" % (o1, o1 + 3))
        A("ds_write_b128 v11, v[%d:%d] offset:1152" % (o2, o2 + 3))
        A("s_waitcnt lgkmcnt(0)")
        A("ds_read_b128 v[%d:%d], v12" % (tb + 16, tb + 19))
        A("ds_read_b128 v[%d:%d], v12 offset:1152" % (tb + 20, tb + 23))
        A("s_waitcnt lgkmcnt(1)")
        A("global_store_dwordx4 v13, v[%d:%d], s[%d:%d] %s" % (tb + 16, tb + 19, S_WS, S_WS + 1, st))
        A("s_waitcnt lgkmcnt(0)")
        A("global_store_dwordx4 v13, v[%d:%d], s[%d:%d] offset:512 %s" % (tb + 20, tb + 23, S_WS, S_WS + 1, st))
        return 2

    def v_task(self, rb, tb, g, st):
        A = self.A
        P = lambda r: "v[%d:%d]" % (r, r + 1)
        x = rb + 34
        self.int_to_f32(list(range(x, x + 16)), tb)
        sc, nz = tb, tb + 8
        for p in range(4):
            self.unpack(sc + 2 * p, rb + 50 + p)
            self.unpack(nz + 2 * p, rb + 54 + p)
        if self.exact:
            for j in range(8):
                r = x + 2 * j
                o = j & 1
                A("v_pk_add_f32 %s, %s, %s op_sel:[0,%d] op_sel_hi:[1,%d] neg_lo:[0,1] neg_hi:[0,1]" % (P(r), P(r), P(nz + (j & ~1)), o, o))
                self.round_pair(r)
                A("v_pk_mul_f32 %s, %s, %s op_sel:[0,%d] op_sel_hi:[1,%d]" % (P(r), P(r), P(sc + (j & ~1)), o, o))
        else:
            for p in range(4):
                A("v_pk_mul_f32 %s, %s, %s" % (P(nz + 2 * p), P(nz + 2 * p), P(sc + 2 * p)))
            for j in range(8):
                r = x + 2 * j
                o = j & 1
                A("v_pk_fma_f32 %s, %s, %s, %s op_sel:[0,%d,%d] op_sel_hi:[1,%d,%d] neg_lo:[0,0,1] neg_hi:[0,0,1]" %
                  (P(r), P(r), P(sc + (j & ~1)), P(nz + (j & ~1)), o, o, o, o))
        o0, o1 = tb + 16, tb + 20
        for e, o in ((0, o0), (1, o1)):
            for jj in range(4):
                A("v_cvt_pk_bf16_f32 v%d, v%d, v%d" % (o + jj, x + 4 * jj + e, x + 4 * jj + 2 + e))
        A("global_store_dwordx4 v14, v[%d:%d], s[%d:%d] %s" % (o0, o0 + 3, S_WS, S_WS + 1, st))
        A("global_store_dwordx4 v14, v[%d:%d], s[%d:%d] offset:1024 %s" % (o1, o1 + 3, S_WS, S_WS + 1, st))
        return 2

    def kv_out_addr(self):
        A = self.A
        ln = V_LANE
        A("s_mul_i32 s%d, s%d, 2304" % (S_T0, S_W))
        A("v_and_b32 v15, 7, v%d\nv_lshrrev_b32 v14, 3, v%d" % (ln, ln))
        A("v_mul_u32_u24 v11, 144, v15\nv_lshl_add_u32 v11, v14, 4, v11\nv_add_u32 v11, s%d, v11" % S_T0)
        A("v_mul_u32_u24 v12, 144, v14\nv_lshl_add_u32 v12, v15, 4, v12\nv_add_u32 v12, s%d, v12" % S_T0)
        A("s_lshl_b32 s%d, s%d, 20\ns_lshl_b32 s%d, s%d, 15\ns_add_u32 s%d, s%d, s%d" % (S_T0, S_H, S_T1, S_I, S_T0, S_T0, S_T1))
        A("s_lshl_b32 s%d, s%d, 7\ns_add_u32 s%d, s%d, s%d" % (S_T1, S_W, S_T1, S_T1, S_T0))
        A("v_lshlrev_b32 v13, 10, v14\nv_lshl_add_u32 v13, v15, 4, v13\nv_add_u32 v13, s%d, v13" % S_T1)
        A("s_lshl_b32 s%d, s%d, 11\ns_add_u32 s%d, s%d, s%d\ns_add_u32 s%d, s%d, 8192" % (S_T1, S_W, S_T1, S_T1, S_T0, S_T1, S_T1))
        A("v_lshlrev_b32 v14, 4, v%d\nv_add_u32 v14, s%d, v14" % (ln, S_T1))

    def q_addr_loads(self, rb):
        A = self.A
        ln = V_LANE
        sp = lambda r: "s[%d:%d]" % (r, r + 1)
        A("s_lshl_b32 s%d, s%d, 6\ns_lshl_b32 s%d, s%d, 4\ns_add_u32 s%d, s%d, s%d" % (S_T0, S_I, S_T1, S_W, S_T0, S_T0, S_T1))
        A("v_lshrrev_b32 v6, 3, v%d\nv_add_u32 v6, s%d, v6\nv_and_b32 v7, 7, v%d" % (ln, S_T0, ln))
        A("v_lshlrev_b32 v6, 8, v6\nv_lshl_add_u32 v7, v7, 4, v6")
        A("s_lshl_b32 s%d, s%d, 19\nv_add_u32 v6, s%d, v7" % (S_T2, S_H, S_T2))
        n = 0
        for u in range(2):
            b = rb + 24 * u
            o = 2048 * u
            for (r, v, s, off) in ((0, 6, S_Q, 0), (4, 6, S_Q, 128), (8, 7, S_QC, 0), (12, 7, S_QC, 128), (16, 7, S_QS, 0), (20, 7, S_QS, 128)):
                A("global_load_dwordx4 v[%d:%d], v%d, %s offset:%d" % (b + r, b + r + 3, v, sp(s), o + off)); n += 1
        return n

    def q_task(self, rb, tb):
        A = self.A
        ln = V_LANE
        P = lambda r: "v[%d:%d]" % (r, r + 1)
        A("s_lshr_b32 s%d, s%d, 1\ns_mul_i32 s%d, s%d, 8320\ns_and_b32 s%d, s%d, 1\ns_lshl_b32 s%d, s%d, 8\ns_add_u32 s%d, s%d, s%d\ns_add_u32 s%d, s%d, %d" %
          (S_T0, S_W, S_T0, S_T0, S_T1, S_W, S_T1, S_T1, S_T0, S_T0, S_T1, S_T0, S_T0, L_Q))
        A("v_and_b32 v15, 7, v%d\nv_lshrrev_b32 v8, 3, v%d" % (ln, ln))
        A("v_mul_u32_u24 v15, 1040, v15\nv_lshl_add_u32 v15, v8, 4, v15\nv_add_u32 v15, s%d, v15" % S_T0)
        for u in range(2):
            b = rb + 24 * u
            x1, x2 = tb + 16, tb + 24
            for p in range(4):
                self.unpack(x1 + 2 * p, b + p); self.unpack(x2 + 2 * p, b + 4 + p)
            if not self.exact:
                for p in range(8):
                    A("v_pk_mul_f32 %s, %s, s[%d:%d]" % (P(x1 + 2 * p), P(x1 + 2 * p), S_C, S_C + 1))
            o1, o2 = tb + 8 + 24 * u + (0 if u == 0 else 0), tb + 12 + 24 * u
            if u == 1: o1, o2 = tb + 32, tb + 36
            self.rope(x1, x2, b + 8, b + 12, b + 16, b + 20, tb, o1, o2, True)
            A("ds_write_b128 v15, v[%d:%d] offset:%d" % (o1, o1 + 3, 128 * u))
            A("ds_write_b128 v15, v[%d:%d] offset:%d" % (o2, o2 + 3, 128 * u + 512))

    def flag_store(self, g):
        A = self.A
        A("s_lshl_b32 s%d, s%d, 2\ns_lshr_b32 s%d, s%d, 3\ns_add_u32 s%d, s%d, s%d\ns_lshl_b32 s%d, s%d, 8" % (S_T0, S_H, S_T1, S_I, S_T0, S_T0, S_T1, S_T0, S_T0))
        A("s_and_b32 s%d, s%d, 7\ns_lshl_b32 s%d, s%d, 2\ns_add_u32 s%d, s%d, s%d\ns_lshl_b32 s%d, s%d, 2" % (S_T1, S_I, S_T1, S_T1, S_T1, S_T1, S_W, S_T1, S_T1))
        A("s_add_u32 s%d, s%d, s%d\ns_add_u32 s%d, s%d, %d" % (S_T0, S_T0, S_T1, S_T0, S_T0, WS_FLAG + 128 * g))
        A("v_mov_b32 v%d, s%d\nv_mov_b32 v%d, s%d" % (V_TMP2 + 0, S_T0, V_TMP3, S_TAG))
        A("s_mov_b64 exec, 1")
        A("global_store_dword v%d, v%d, s[%d:%d] sc1" % (V_TMP2, V_TMP3, S_WS, S_WS + 1))
        A("s_mov_b64 exec, -1")

    def poll(self, both=True):
        A = self.A
        lab = self.label("L_poll"); done = self.label("L_polled")
        A("s_lshl_b32 s%d, s%d, 2\ns_add_u32 s%d, s%d, s%d\ns_lshl_b32 s%d, s%d, 8\ns_add_u32 s%d, s%d, %d" % (S_T0, S_H, S_T0, S_T0, S_W, S_T0, S_T0, S_T0, S_T0, WS_FLAG))
        A("v_lshlrev_b32 v%d, 2, v%d\nv_add_u32 v%d, s%d, v%d" % (V_TMP0, V_LANE, V_TMP0, S_T0, V_TMP0))
        A("s_mov_b32 s%d, 0" % S_CNT)
        A("%s:" % lab)
        A("global_load_dword v%d, v%d, s[%d:%d] sc1" % (V_TMP1, V_TMP0, S_WS, S_WS + 1))
        A("s_add_u32 s%d, s%d, 1" % (S_CNT, S_CNT))
        A("s_waitcnt vmcnt(0)")
        A("v_cmp_ne_u32 vcc, s%d, v%d" % (S_TAG, V_TMP1))
        A("s_cbranch_vccz %s" % done)
        A("s_cmp_lt_u32 s%d, 0x8000\ns_cbranch_scc1 %s" % (S_CNT, lab))
        A("%s:" % done)

    def mfma_qk(self, x, ks, kset, first_c=None):
        s = V_S[x]; k = V_K[kset] + 4 * ks; q = A_Q(x, ks)
        if ks == 0:
            c = first_c if first_c is not None else "v[%d:%d]" % (V_NM[x], V_NM[x] + 15)
        else:
            c = "v[%d:%d]" % (s, s + 15)
        return "v_mfma_f32_32x32x16_bf16 v[%d:%d], v[%d:%d], a[%d:%d], %s" % (s, s + 15, k, k + 3, q, q + 3, c)
    def mfma_pv(self, x, idx, vset, first=False):
        ks2, t = idx >> 2, idx & 3
        o = A_O(x, t); v = V_V[vset] + 4 * idx; p = V_P[x] + 4 * ks2
        c = "0" if (first and ks2 == 0) else "a[%d:%d]" % (o, o + 15)
        return "v_mfma_f32_32x32x16_bf16 a[%d:%d], v[%d:%d], v[%d:%d], %s" % (o, o + 15, v, v + 3, p, p + 3, c)
    def ld_k(self, ks, kset):
        r = V_K[kset] + 4 * ks
        return "buffer_load_dwordx4 v[%d:%d], v%d, s[%d:%d], s%d offen offset:%d %s" % (r, r + 3, V_KOFF0 + (ks >> 2), S_SRD, S_SRD + 3, S_OFF, (ks & 3) * 1024, self.ldmod)
    def ld_v(self, idx, vset):
        r = V_V[vset] + 4 * idx
        return "buffer_load_dwordx4 v[%d:%d], v%d, s[%d:%d], s%d offen offset:%d %s" % (r, r + 3, V_VOFF0 + (idx >> 2), S_SRD, S_SRD + 3, S_OFF, (idx & 3) * 1024, self.ldmod)
    def op_e(self, x, r): return "v_exp_f32 v%d, v%d" % (V_E[x] + r, V_S[x] + r)
    def op_a(self, x, r):
        if r == 1: return "v_add_f32 v%d, v%d, v%d" % (V_T[x], V_E[x], V_E[x] + 1)
        return "v_add_f32 v%d, v%d, v%d" % (V_T[x], V_T[x], V_E[x] + r)
    def op_c(self, x, k): return "v_cvt_pk_bf16_f32 v%d, v%d, v%d" % (V_P[x] + k, V_E[x] + 2 * k, V_E[x] + 2 * k + 1)
    def op_f(self, x): return "v_add_f32 v%d, v%d, v%d" % (V_L[x], V_L[x], V_T[x])
    def op_chk(self, x):
        stub = self.label("L_slow_%s" % x); ret = self.label("L_ret_%s" % x)
        self.stubs.append((stub, ret, x))
        return ["v_cmp_nge_f32 vcc, s%d, v%d" % (S_THR, V_T[x]), "s_cbranch_vccnz %s" % stub, "%s:" % ret]

    PERIOD = {
        8:  "F L o4",
        9:  "L o5 o6",
        10: "o7 e0 e1 S",
        11: "L e2",
        12: "a1 e3 a2 c0 S",
        13: "L e4",
        14: "a3 e5 a4 c1 W1",
        15: "L e6",
        16: "a5 e7 a6 c2",
        17: "L e8",
        18: "a7 e9 a8 c3",
        19: "L e10",
        20: "a9 e11 a10 W2",
        21: "L e12",
        22: "e13 a11 e14 a12",
        23: "e15 a13 a14 a15 K",
    }

    def iteration(self, jp, loads=True, skip_b_head=False, kloads_tail=True, last=False):
        out = []
        kq = (jp + 1) & 1
        for p in range(32):
            if p < 8: out.append(self.mfma_qk('a', p, kq))
            elif p < 16: out.append(self.mfma_pv('b', p - 8, jp))
            elif p < 24: out.append(self.mfma_qk('b', p - 16, kq))
            else: out.append(self.mfma_pv('a', p - 24, kq))
            if p < 8: x, u = 'b', p + 16
            elif p < 24: x, u = 'a', p
            else: x, u = 'b', p - 16
            y = 'a' if x == 'b' else 'b'
            for tok in self.PERIOD[u].split():
                c = tok[0]
                if c == 'L':
                    li = sum(self.PERIOD[v].split().count('L') for v in range(8, u)) + 0
                    if not loads: continue
                    if x == 'a': out.append(self.ld_v(li, jp))
                    elif p >= 24: out.append(self.ld_k(li, kq))
                    else: out.append(self.ld_k(li, jp))
                elif c == 'e': out.append(self.op_e(x, int(tok[1:])))
                elif c == 'a': out.append(self.op_a(x, int(tok[1:])))
                elif c == 'c': out.append(self.op_c(x, int(tok[1:])))
                elif c == 'o': out.append(self.op_c(y, int(tok[1:])))
                elif c == 'F': out.append(self.op_f(y))
                elif c == 'K': out += self.op_chk(x)
                elif c == 'W':
                    if tok == "W2" and x == 'a': out.append("@WAIT_V")
                    if tok == "W1" and x == 'b': out.append("@WAIT_K")
                elif c == 'S':
                    pass
        return out

    def slow_sub(self, x):
        A = self.A
        s, e, nm = V_S[x], V_E[x], V_NM[x]
        t0, t1 = V_TMP0, V_TMP1
        A("L_sub_%s:" % x)
        A("s_nop 7")
        A("v_max3_f32 v%d, v%d, v%d, v%d" % (t0, s, s + 1, s + 2))
        for r in range(3, 15, 2): A("v_max3_f32 v%d, v%d, v%d, v%d" % (t0, s + r, s + r + 1, t0))
        A("v_max3_f32 v%d, v%d, v%d, 0" % (t0, s + 15, t0))
        A("v_mov_b32 v%d, v%d\ns_nop 1\nv_permlane32_swap_b32 v%d, v%d\ns_nop 1\nv_max_f32 v%d, v%d, v%d" % (t1, t0, t0, t1, t0, t0, t1))
        A("v_exp_f32 v%d, -v%d" % (t1, t0))
        for r in range(16):
            A("v_sub_f32 v%d, v%d, v%d" % (s + r, s + r, t0))
            A("v_sub_f32 v%d, v%d, v%d" % (nm + r, nm + r, t0))
        A("v_mul_f32 v%d, v%d, v%d" % (V_L[x], V_L[x], t1))
        for t in range(4):
            for r in range(16):
                a = A_O(x, t) + r
                A("v_accvgpr_read_b32 v%d, a%d\nv_mul_f32 v%d, v%d, v%d\nv_accvgpr_write_b32 a%d, v%d" % (V_TMP2, a, V_TMP2, V_TMP2, t1, a, V_TMP2))
        for r in range(16): A(self.op_e(x, r))
        A("s_nop 0")
        for r in range(1, 16): A(self.op_a(x, r))
        for k in range(8): A(self.op_c(x, k))
        A("s_nop 3")
        A("s_setpc_b64 s[%d:%d]" % (S_RET, S_RET + 1))

    def first_fix(self, x):
        s, nm = V_S[x], V_NM[x]
        t0, t1 = (V_TMP0, V_TMP1) if x == 'a' else (V_TMP2, V_TMP3)
        o = []
        o.append("v_max3_f32 v%d, v%d, v%d, v%d" % (t0, s, s + 1, s + 2))
        for r in range(3, 15, 2): o.append("v_max3_f32 v%d, v%d, v%d, v%d" % (t0, s + r, s + r + 1, t0))
        o.append("v_max_f32 v%d, v%d, v%d" % (t0, s + 15, t0))
        o += ["v_mov_b32 v%d, v%d" % (t1, t0), "s_nop 1", "v_permlane32_swap_b32 v%d, v%d" % (t0, t1), "s_nop 1", "v_max_f32 v%d, v%d, v%d" % (t0, t0, t1)]
        for r in range(16): o.append("v_sub_f32 v%d, v%d, v%d" % (s + r, s + r, t0))
        for r in range(16): o.append("v_sub_f32 v%d, 0, v%d" % (nm + r, t0))
        return o

    def next_off(self):
        return ["s_add_u32 m0, m0, 1", "s_nop 0", "s_movrels_b32 s%d, s%d" % (S_OFF, S_TBL)]

    def main(self):
        A = self.A
        self.stubs = []
        ln = V_LANE
        A("v_lshlrev_b32 v%d, 4, v%d\nv_add_u32 v%d, 4096, v%d\nv_add_u32 v%d, 8192, v%d\nv_add_u32 v%d, 12288, v%d" %
          (V_KOFF0, ln, V_KOFF1, V_KOFF0, V_VOFF0, V_KOFF0, V_VOFF1, V_KOFF0))
        A("s_mov_b32 s%d, s%d\ns_mov_b32 s%d, s%d\ns_mov_b32 s%d, 0x800000\ns_mov_b32 s%d, 0x20000" % (S_SRD, S_WS, S_SRD + 1, S_WS + 1, S_SRD + 2, S_SRD + 3))
        A("s_lshl_b32 s%d, s%d, 20\ns_lshl_b32 s%d, s%d, 18\ns_add_u32 s%d, s%d, s%d" % (S_T0, S_H, S_T1, S_W, S_T0, S_T0, S_T1))
        for n in range(8):
            A("s_add_u32 s%d, s%d, %d\ns_and_b32 s%d, s%d, 7\ns_lshl_b32 s%d, s%d, 15\ns_add_u32 s%d, s%d, s%d\ns_add_u32 s%d, s%d, 16384" %
              (S_T1, S_I, n, S_T1, S_T1, S_T1, S_T1, S_TBL + n, S_T1, S_T0, S_TBL + 8 + n, S_TBL + n))
        A("s_mov_b32 s%d, s%d" % (S_TBL + 16, S_TBL))
        if self.mode == "fused":
            self.poll()
        self.stamp(3)
        A("s_mov_b32 s%d, s%d" % (S_OFF, S_TBL))
        for k in range(8): A(self.ld_k(k, 0))
        for k in range(8): A(self.ld_v(k, 0))
        A("s_mov_b32 s%d, s%d" % (S_OFF, S_TBL + 1))
        for k in range(8): A(self.ld_k(k, 1))
        for k in range(8): A(self.ld_v(k, 1))
        A("s_mov_b32 m0, 2\ns_mov_b32 s%d, s%d" % (S_OFF, S_TBL + 2))
        A("v_mov_b32 v%d, 0\nv_mov_b32 v%d, 0" % (V_L['a'], V_L['b']))
        for t in range(4):
            for r in range(16): A("v_accvgpr_write_b32 a%d, 0" % (A_O('b', t) + r))
        A("s_waitcnt lgkmcnt(0)")
        A("s_waitcnt vmcnt(24)")
        self.stamp(4)
        for ks in range(8): A(self.mfma_qk('a', ks, 0, first_c="0"))
        fa = self.first_fix('a')
        sa = [self.op_e('a', r) for r in range(16)]
        seq = fa + sa[:2]
        for r in range(2, 16):
            seq.append(sa[r]); seq.append(self.op_a('a', r - 1))
        seq += [self.op_c('a', 0), self.op_a('a', 15)] + [self.op_c('a', k) for k in range(1, 4)]
        per = 6
        pos = 0
        for ks in range(8):
            A(self.mfma_qk('b', ks, 0, first_c="0"))
            if ks >= 2:
                for s in seq[pos:pos + per]: A(s)
                pos += per
        for s in seq[pos:]: A(s)
        fb = self.first_fix('b')
        A("s_waitcnt vmcnt(16)")
        it = self.iteration(1)
        idx = [k for k, s in enumerate(it) if s.startswith("v_mfma")]
        tail = it[idx[24]:]
        self.stubs = [st for st in self.stubs if any(s.endswith(' '+st[0]) for s in tail)]
        for s in fb: A(s)
        nm = 0
        for s in tail:
            if s.startswith("v_mfma"):
                s = self.mfma_pv('a', nm, 0, first=True); nm += 1
            if s == "@WAIT_K": s = "s_waitcnt vmcnt(%d)" % self.wk
            A(s)
        self.stamp(5)
        A(".p2align 6")
        A("L_loop:")
        for jp in range(2):
            it = self.iteration(jp)
            self.emit_iter(it)
        A("s_cmp_lt_u32 m0, 16\ns_cbranch_scc1 L_loop")
        it = self.iteration(0, loads=False)
        for s in it:
            if s in ("@WAIT_V", "@WAIT_K"): s = "s_waitcnt vmcnt(0)"
            A(s)
        it = self.iteration(1, loads=False)
        idx = [k for k, s in enumerate(it) if s.startswith("v_mfma")]
        keep = it[:idx[16]]
        drop = it[idx[16]:]
        first = True
        used = []
        nm = 0
        for k, s in enumerate(keep):
            if s.startswith("v_mfma") and k < idx[8]: continue
            if k >= idx[8] and not s.startswith("v_mfma"):
                isb = (s == self.op_f('b')) or any(s == self.op_c('b', c) for c in range(8))
                if not isb: continue
            if s.startswith("@"): continue
            if s.startswith("v_exp"):
                A(s); A("s_nop 0"); used.append(s); continue
            if s.startswith("v_mfma"):
                if nm in (0, 4): A("s_nop 1")
                nm += 1
            A(s); used.append(s)
        self.stubs = [st for st in self.stubs if any(s.endswith(' '+st[0]) for s in self.L)]
        self.stamp(6)

    def emit_iter(self, it):
        A = self.A
        lastv = max(k for k, s in enumerate(it) if s.startswith("buffer_load") and (" v%d," % V_VOFF1) in s)
        for k, s in enumerate(it):
            if s == "@WAIT_V": s = "s_waitcnt vmcnt(%d)" % self.wv
            if s == "@WAIT_K": s = "s_waitcnt vmcnt(%d)" % self.wk
            A(s)
            if k == lastv - 3: A("s_add_u32 m0, m0, 1")
            if k == lastv + 2: A("s_movrels_b32 s%d, s%d" % (S_OFF, S_TBL))

    def compute_waits(self):
        self.stubs = []
        it = self.iteration(0)
        seq = it + it + it
        n = len(it)
        isld = lambda s: s.startswith("buffer_load")
        isv = lambda s: isld(s) and ((" v%d," % V_VOFF0) in s or (" v%d," % V_VOFF1) in s)
        kv = 2 * n + it.index("@WAIT_V")
        lastv = max(k for k in range(n, 2 * n) if isv(seq[k]))
        self.wv = sum(1 for k in range(lastv + 1, kv) if isld(seq[k]))
        kk = 2 * n + it.index("@WAIT_K")
        idx = [k for k, s in enumerate(it) if s.startswith("v_mfma")]
        lastk = 2 * n + max(k for k in range(0, idx[8]) if isld(it[k]))
        self.wk = sum(1 for k in range(lastk + 1, kk) if isld(seq[k]))
        self.uid = 0

    def epilogue(self):
        A = self.A
        ln = V_LANE
        A("; ---- epilogue ----")
        for x in 'ab':
            l = V_L[x]; t = V_T[x]
            A("v_mov_b32 v%d, v%d\ns_nop 1\nv_permlane32_swap_b32 v%d, v%d\ns_nop 1\nv_add_f32 v%d, v%d, v%d" % (t, l, l, t, V_NM[x] + 1, l, t))
        A("s_lshl_b32 s%d, s%d, 10\ns_add_u32 s%d, s%d, %d" % (S_T0, S_W, S_T0, S_T0, L_ST))
        A("v_lshlrev_b32 v6, 3, v%d\nv_add_u32 v7, s%d, v6" % (ln, S_T0))
        A("ds_write_b64 v7, v[%d:%d]" % (V_NM['a'], V_NM['a'] + 1))
        A("ds_write_b64 v7, v[%d:%d] offset:512" % (V_NM['b'], V_NM['b'] + 1))
        A("s_nop 7\ns_nop 7")
        for d in range(4):
            skip = self.label("L_skipw")
            A("s_cmp_eq_u32 s%d, %d\ns_cbranch_scc1 %s" % (S_W, d, skip))
            A("s_sub_u32 s%d, s%d, %d\ns_and_b32 s%d, s%d, 3\ns_lshl_b32 s%d, s%d, 13\ns_add_u32 s%d, s%d, %d" %
              (S_T0, S_W, d + 1, S_T0, S_T0, S_T0, S_T0, S_T0, S_T0, L_O + d * 3 * 8192))
            A("v_add_u32 v7, s%d, v%d" % (S_T0, V_KOFF0))
            dh, gh = d >> 1, d & 1
            idx = 0
            for x in 'ab':
                for e in range(2):
                    for gg in range(2):
                        a = A_O(x, 2 * dh + e) + 8 * gh + 4 * gg
                        A("ds_write_b128 v7, a[%d:%d] offset:%d" % (a, a + 3, idx * 1024)); idx += 1
            A("%s:" % skip)
        own = 128
        done = self.label("L_own")
        for d in range(4):
            nxt = self.label("L_ownn")
            if d < 3: A("s_cmp_lg_u32 s%d, %d\ns_cbranch_scc1 %s" % (S_W, d, nxt))
            dh, gh = d >> 1, d & 1
            idx = 0
            for x in 'ab':
                for e in range(2):
                    for gg in range(2):
                        a = A_O(x, 2 * dh + e) + 8 * gh + 4 * gg
                        for i in range(4): A("v_accvgpr_read_b32 v%d, a%d" % (own + idx * 4 + i, a + i))
                        idx += 1
            if d < 3: A("s_branch %s\n%s:" % (done, nxt))
        A("%s:" % done)
        A("s_waitcnt lgkmcnt(0)\ns_barrier")
        st = 16
        for k in range(3):
            A("s_add_u32 s%d, s%d, %d\ns_and_b32 s%d, s%d, 3\ns_lshl_b32 s%d, s%d, 10\ns_add_u32 s%d, s%d, %d" % (S_T0, S_W, k + 1, S_T0, S_T0, S_T0, S_T0, S_T0, S_T0, L_ST))
            A("v_add_u32 v7, s%d, v6" % S_T0)
            A("ds_read_b64 v[%d:%d], v7\nds_read_b64 v[%d:%d], v7 offset:512" % (st + 4 * k, st + 4 * k + 1, st + 4 * k + 2, st + 4 * k + 3))
        A("s_mul_i32 s%d, s%d, 24576\ns_add_u32 s%d, s%d, %d\nv_add_u32 v7, s%d, v%d" % (S_T0, S_W, S_T0, S_T0, L_O, S_T0, V_KOFF0))
        pb = 160
        for k in range(3):
            for idx in range(8):
                r = pb + (k * 8 + idx) * 4
                A("ds_read_b128 v[%d:%d], v7 offset:%d" % (r, r + 3, k * 8192 + idx * 1024))
        A("s_waitcnt lgkmcnt(15)")
        A("s_waitcnt lgkmcnt(0)")
        F = 32
        for xi, x in enumerate('ab'):
            nm0, l0 = V_NM[x], V_NM[x] + 1
            nms = [nm0] + [st + 4 * k + 2 * xi for k in range(3)]
            ls = [l0] + [st + 4 * k + 2 * xi + 1 for k in range(3)]
            mn = 40
            A("v_min3_f32 v%d, v%d, v%d, v%d\nv_min_f32 v%d, v%d, v%d" % (mn, nms[0], nms[1], nms[2], mn, mn, nms[3]))
            for s in range(4): A("v_sub_f32 v%d, v%d, v%d" % (F + 4 * xi + s, mn, nms[s]))
            for s in range(4): A("v_exp_f32 v%d, v%d" % (F + 4 * xi + s, F + 4 * xi + s))
            A("s_nop 0")
            A("v_mul_f32 v41, v%d, v%d" % (F + 4 * xi, ls[0]))
            for s in range(1, 4): A("v_fmac_f32 v41, v%d, v%d" % (F + 4 * xi + s, ls[s]))
            A("v_rcp_f32 v41, v41\ns_nop 0")
            for s in range(4): A("v_mul_f32 v%d, v%d, v41" % (F + 4 * xi + s, F + 4 * xi + s))
        for idx in range(8):
            xi = idx >> 2
            for i in range(4):
                r = own + idx * 4 + i
                A("v_mul_f32 v%d, v%d, v%d" % (r, r, F + 4 * xi))
                for k in range(3):
                    A("v_fmac_f32 v%d, v%d, v%d" % (r, pb + (k * 8 + idx) * 4 + i, F + 4 * xi + 1 + k))
        A("s_lshl_b32 s%d, s%d, 19\ns_lshl_b32 s%d, s%d, 14\ns_add_u32 s%d, s%d, s%d\ns_lshl_b32 s%d, s%d, 6\ns_add_u32 s%d, s%d, s%d" %
          (S_T0, S_H, S_T1, S_I, S_T0, S_T0, S_T1, S_T1, S_W, S_T0, S_T0, S_T1))
        A("v_and_b32 v6, 31, v%d\nv_lshrrev_b32 v7, 5, v%d\nv_lshlrev_b32 v6, 8, v6\nv_lshl_add_u32 v6, v7, 4, v6\nv_add_u32 v6, s%d, v6\nv_add_u32 v7, 8192, v6" % (ln, ln, S_T0))
        ob = 48
        for xi in range(2):
            for gg in range(2):
                o = ob + (xi * 2 + gg) * 4
                r0 = own + (xi * 4 + 0 * 2 + gg) * 4
                r1 = own + (xi * 4 + 1 * 2 + gg) * 4
                for i in range(4): A("v_cvt_pk_bf16_f32 v%d, v%d, v%d" % (o + i, r0 + i, r1 + i))
                A("global_store_dwordx4 v%d, v[%d:%d], s[%d:%d] offset:%d" % (6 + xi, o, o + 3, S_OUT, S_OUT + 1, 32 * gg))

    def q_frag_read(self):
        A = self.A
        A("v_lshlrev_b32 v6, 4, v%d" % V_LANE)
        for f in range(16):
            a = 128 + 4 * f
            A("ds_read_b128 a[%d:%d], v6 offset:%d" % (a, a + 3, L_Q + f * 1040))

    def dump_stamps(self):
        if not self.stamps: return
        A = self.A
        lab = self.label("L_nost")
        A("s_cmp_lg_u32 s2, 9\ns_cbranch_scc1 %s\ns_cmp_lg_u32 s%d, 1\ns_cbranch_scc1 %s" % (lab, S_W, lab))
        A("s_mov_b64 exec, 1")
        for k in range(1, 9):
            A("s_sub_u32 s76, s%d, s80\nv_mov_b32 v1, s76\nv_mov_b32 v2, %d\nglobal_store_dword v2, v1, s[%d:%d]" % (80 + k, 4 * k, S_DBG, S_DBG + 1))
        A("s_mov_b64 exec, -1")
        A("%s:" % lab)

    def kd(self, name, vgpr=512, acc=256):
        return ('.p2align 6\n.amdhsa_kernel %s\n  .amdhsa_next_free_vgpr %d\n  .amdhsa_next_free_sgpr 102\n  .amdhsa_accum_offset %d\n'
                '  .amdhsa_group_segment_fixed_size 0\n  .amdhsa_kernarg_size 112\n  .amdhsa_user_sgpr_count 2\n'
                '  .amdhsa_user_sgpr_kernarg_segment_ptr 1\n  .amdhsa_system_sgpr_workgroup_id_x 1\n.end_amdhsa_kernel\n' % (name, vgpr, acc))

    def head(self, name):
        self.A(".globl %s\n.p2align 8\n.type %s,@function\n%s:" % (name, name, name))

    def build(self):
        A = self.A
        K = NAME + "_kernel"
        fused = self.mode == "fused"
        self.ldmod = "sc1" if fused else ""
        st = "sc1" if fused else ""
        self.compute_waits()
        hdr = open("cdna_kernels/%s.s.ref" % NAME).read().split("; @launch")[0]
        A(hdr.rstrip("\n"))
        if fused:
            A("; @launch grid=(256,1,1) block=(256,1,1) lds=%d" % LDS_BYTES)
        else:
            A("; @launch kernel=prep_kernel grid=(256,1,1) block=(256,1,1) lds=%d" % 9216)
            A("; @launch kernel=%s grid=(256,1,1) block=(256,1,1) lds=%d" % (K, LDS_BYTES))
        A('.amdgcn_target "amdgcn-amd-amdhsa--gfx950"\n.text')
        RA, RB, RQ, TB = 16, 76, 136, 184
        if not fused:
            self.head("prep_kernel")
            self.setup("L_end0")
            self.kv_addr()
            A("s_waitcnt lgkmcnt(0)")
            nA = self.kv_loads(RA)
            self.kv_next_stage_addr()
            nB = self.kv_loads(RB)
            self.kv_out_addr()
            A("s_waitcnt vmcnt(%d)" % nB)
            self.k_task(RA, TB, 0, st); self.v_task(RA, TB + 24, 0, st)
            A("v_add_u32 v13, 16384, v13\nv_add_u32 v14, 16384, v14")
            A("s_waitcnt vmcnt(4)")
            self.k_task(RB, TB, 1, st); self.v_task(RB, TB + 24, 1, st)
            A("L_end0:\ns_endpgm")
        self.head(K)
        self.setup("L_end")
        self.stamp(0)
        if fused:
            self.kv_addr()
            A("s_waitcnt lgkmcnt(0)")
            A("s_lshl_b32 s%d, s%d, 8\ns_add_u32 s%d, s%d, %d\ns_load_dword s%d, s[%d:%d], s%d" % (S_T0, S_H, S_T0, S_T0, WS_EPOCH, S_TAG, S_WS, S_WS + 1, S_T0))
            nA = self.kv_loads(RA)
            self.kv_next_stage_addr()
            nB = self.kv_loads(RB)
            self.kv_out_addr()
            A("s_waitcnt vmcnt(%d)" % nB)
            self.stamp(1)
            ns = self.k_task(RA, TB, 0, st) + self.v_task(RA, TB + 24, 0, st)
            A("v_add_u32 v13, 16384, v13\nv_add_u32 v14, 16384, v14")
            nQ = self.q_addr_loads(RQ)
            A("s_add_u32 s%d, s%d, 0x9e3779b9" % (S_TAG, S_TAG))
            A("s_waitcnt vmcnt(%d)" % (ns + nQ))
            ns2 = self.k_task(RB, TB, 1, st) + self.v_task(RB, TB + 24, 1, st)
            A("s_waitcnt vmcnt(%d)" % (nQ + ns2))
            self.flag_store(0)
            A("s_waitcnt vmcnt(%d)" % (ns2 + 1))
            self.stamp(2)
            self.q_task(RQ, TB)
            A("s_waitcnt vmcnt(1)")
            self.flag_store(1)
        else:
            A("s_waitcnt lgkmcnt(0)")
            nQ = self.q_addr_loads(RQ)
            A("s_waitcnt vmcnt(0)")
            self.q_task(RQ, TB)
        A("s_waitcnt lgkmcnt(0)\ns_barrier")
        self.q_frag_read()
        self.main()
        self.epilogue()
        if fused:
            lab = self.label("L_noep")
            A("s_cmp_lg_u32 s%d, 0\ns_cbranch_scc1 %s\ns_cmp_lg_u32 s%d, 0\ns_cbranch_scc1 %s" % (S_I, lab, S_W, lab))
            A("s_lshl_b32 s%d, s%d, 8\ns_add_u32 s%d, s%d, %d" % (S_T0, S_H, S_T0, S_T0, WS_EPOCH))
            A("v_mov_b32 v1, s%d\nv_mov_b32 v2, s%d\ns_mov_b64 exec, 1\nglobal_store_dword v1, v2, s[%d:%d] sc1\ns_mov_b64 exec, -1" % (S_T0, S_TAG, S_WS, S_WS + 1))
            A("%s:" % lab)
        self.stamp(7)
        self.dump_stamps()
        A("L_end:\ns_endpgm")
        for stub, ret, x in self.stubs:
            A("%s:\ns_call_b64 s[%d:%d], L_sub_%s\ns_branch %s" % (stub, S_RET, S_RET + 1, x, ret))
        self.slow_sub('a'); self.slow_sub('b')
        A('.section .rodata,"a"')
        if not fused: A(self.kd("prep_kernel", 256, 256))
        A(self.kd(K))
        return "\n".join(self.L) + "\n"

if __name__ == "__main__":
    ap = argparse.ArgumentParser()
    ap.add_argument("out")
    ap.add_argument("--mode", default="fused")
    ap.add_argument("--exact", action="store_true")
    ap.add_argument("--stamps", action="store_true")
    a = ap.parse_args()
    g = Gen(a.mode, a.exact, a.stamps)
    open(a.out, "w").write(g.build())
    print("wv", g.wv, "wk", g.wk, "lines", len(g.L))
```

```python
import sys, struct, argparse
NAME = "standalone__kv_cache_quant_pre_rope_vs_post_rope__prompt"

def f32bits(x): return struct.unpack("<I", struct.pack("<f", x))[0]
CSCALE = 1.4426950408889634 * (128.0 ** -0.5)

V_KOFF0, V_KOFF1, V_VOFF0, V_VOFF1 = 1, 2, 3, 4
V_LANE = 5
V_T = {'a': 8, 'b': 9}
V_L = {'a': 10, 'b': 11}
V_TMP0, V_TMP1, V_TMP2, V_TMP3 = 12, 13, 14, 15
V_S = {'a': 16, 'b': 32}
V_NM = {'a': 48, 'b': 64}
V_E = {'a': 80, 'b': 96}
V_P = {'a': 112, 'b': 120}
V_K = [128, 160]
V_V = [192, 224]
def A_O(x, t): return ((0 if x == 'a' else 1) * 4 + t) * 16
def A_Q(x, ks): return 128 + ((0 if x == 'a' else 1) * 8 + ks) * 4
S_Q, S_QK, S_KS, S_KZ, S_QV, S_VS, S_VZ, S_QC, S_QS, S_KC, S_KSN, S_OUT, S_DBG, S_WS = [4 + 2 * i for i in range(14)]
S_H, S_I, S_W, S_TAG = 32, 33, 34, 35
S_T0, S_T1, S_T2, S_T3 = 36, 37, 38, 39
S_SRD = 40
S_OFF, S_THR = 44, 45
S_C = 46
S_TBL = 48
S_RET = 66
S_CNT = 68
S_EXEC = 70
S_BP, S_HA = 72, 73
V_PA, V_PB, V_FA = 6, 7, 0
S_FM, S_FX, S_G, S_LIM = 74, 78, 79, 69
L_KT = 0
L_Q = 9216
L_ST = L_Q + 16 * 1040
L_O = L_ST + 4096
LDS_BYTES = L_O + 96 * 1024
WS_FLAG = 8 << 20
WS_EPOCH = 9 << 20
THRESH = 1024.0

class Gen:
    def __init__(self, mode="fused", exact=False, stamps=False, abl="", sleep=0, qearly=False):
        self.abl = abl
        self.sleep = sleep
        self.qearly = qearly
        self.L = []
        self.mode = mode
        self.exact = exact
        self.stamps = stamps
        self.uid = 0
    def A(self, s):
        for line in s.split("\n"):
            self.L.append(line)
    def label(self, base):
        self.uid += 1
        return "%s_%d" % (base, self.uid)

    def cstamp(self, idx):
        if not self.stamps: return
        self.A("s_memtime s[76:77]\ns_waitcnt lgkmcnt(0)\ns_mov_b32 s%d, s76" % (80 + idx))

    def stamp(self, idx):
        if not self.stamps: return
        self.A("s_memrealtime s[76:77]\ns_waitcnt lgkmcnt(0)\ns_mov_b32 s%d, s76" % (80 + idx))

    def setup(self, endlabel):
        A = self.A
        A("s_cmp_ge_u32 s2, 256\ns_cbranch_scc1 %s" % endlabel)
        A("s_load_dwordx16 s[4:19], s[0:1], 0\ns_load_dwordx8 s[20:27], s[0:1], 64\ns_load_dwordx4 s[28:31], s[0:1], 96")
        A("v_lshrrev_b32 v1, 6, v0\nv_and_b32 v%d, 63, v0" % V_LANE)
        A("s_and_b32 s%d, s2, 7\ns_lshr_b32 s%d, s2, 3" % (S_H, S_I))
        A("v_readfirstlane_b32 s%d, v1" % S_W)
        A("s_mov_b32 s%d, 0x%08x\ns_mov_b32 s%d, 0x%08x" % (S_C, f32bits(CSCALE), S_C + 1, f32bits(CSCALE)))
        A("s_mov_b32 s%d, 0x%08x" % (S_THR, f32bits(THRESH)))

    def sp(self, r): return "s[%d:%d]" % (r, r + 1)

    def unpack(self, dst, src):
        self.A("v_lshlrev_b32 v%d, 16, v%d\nv_and_b32 v%d, 0xffff0000, v%d" % (dst, src, dst + 1, src))
    def round_pair(self, r):
        self.A("v_cvt_pk_bf16_f32 v%d, v%d, v%d" % (r + 1, r, r + 1))
        self.A("v_lshlrev_b32 v%d, 16, v%d\nv_and_b32 v%d, 0xffff0000, v%d" % (r, r + 1, r + 1, r + 1))
    def int_to_f32(self, regs, tmp):
        A = self.A
        for r in regs: A("v_cvt_f32_i32 v%d, v%d" % (r, r))
        A("v_max3_f32 v%d, |v%d|, |v%d|, 0" % (tmp, regs[0], regs[1]))
        for k in range(2, len(regs), 2):
            A("v_max3_f32 v%d, |v%d|, |v%d|, v%d" % (tmp, regs[k], regs[k + 1], tmp))
        lab = self.label("L_small")
        A("v_cmp_lt_f32 vcc, 0x43800000, v%d" % tmp)
        A("s_cbranch_vccz %s" % lab)
        for k in range(0, len(regs), 2): self.round_pair(regs[k])
        A("%s:" % lab)
    def unpack_tab(self, dst, src, scale):
        for k in range(16): self.unpack(dst + 2 * k, src + k)
        if scale:
            for k in range(16):
                self.A("v_pk_mul_f32 v[%d:%d], v[%d:%d], s[%d:%d]" % (dst + 2 * k, dst + 2 * k + 1, dst + 2 * k, dst + 2 * k + 1, S_C, S_C + 1))
    def rope(self, x1, x2, tab, tb, out1, out2):
        A = self.A
        P = lambda r: "v[%d:%d]" % (r, r + 1)
        for p in range(4):
            a, b = x1 + 2 * p, x2 + 2 * p
            t, u = tb, tb + 2
            A("v_pk_mul_f32 %s, %s, %s" % (P(t), P(a), P(tab + 2 * p)))
            A("v_pk_mul_f32 %s, %s, %s" % (P(u), P(b), P(tab + 8 + 2 * p)))
            A("v_pk_fma_f32 %s, %s, %s, %s neg_lo:[1,0,0] neg_hi:[1,0,0]" % (P(t), P(b), P(tab + 16 + 2 * p), P(t)))
            A("v_pk_fma_f32 %s, %s, %s, %s" % (P(u), P(a), P(tab + 24 + 2 * p), P(u)))
            A("v_cvt_pk_bf16_f32 v%d, v%d, v%d" % (out1 + p, t, t + 1))
            A("v_cvt_pk_bf16_f32 v%d, v%d, v%d" % (out2 + p, u, u + 1))
    def k_wave(self, st):
        A = self.A
        ln = V_LANE
        P = lambda r: "v[%d:%d]" % (r, r + 1)
        AQ, AS, AO = 16, 20, 24
        VT, LW, LR = 28, 29, 30
        RT, UT, RK, TB = 32, 48, 80, 160
        A("s_lshl_b32 s%d, s2, 3\ns_bfe_u32 s%d, s2, 0x10002" % (S_T0, S_BP))
        A("v_lshrrev_b32 v8, 3, v%d\nv_and_b32 v9, 7, v%d\nv_add_u32 v10, s%d, v8" % (ln, ln, S_T0))
        A("v_lshlrev_b32 v%d, 8, v10\nv_lshl_add_u32 v%d, v9, 4, v%d" % (VT, VT, VT))
        A("s_lshl_b32 s%d, s%d, 20\nv_lshlrev_b32 v%d, 1, v%d\nv_add_u32 v%d, s%d, v%d" % (S_T1, S_BP, AQ, VT, AQ, S_T1, AQ))
        A("s_lshl_b32 s%d, s%d, 12\nv_lshlrev_b32 v%d, 1, v10\nv_add_u32 v%d, s%d, v%d" % (S_T2, S_BP, AS, AS, S_T2, AS))
        for u in range(1, 4):
            A("v_add_u32 v%d, 0x%x, v%d\nv_add_u32 v%d, 0x%x, v%d" % (AQ + u, u << 21, AQ, AS + u, u << 13, AS))
        A("s_waitcnt lgkmcnt(0)")
        self.epoch_load()
        def loads():
            for u in range(4):
                rb = RK + 20 * u
                for k, off in enumerate((0, 16, 256, 272)):
                    A("global_load_dwordx4 v[%d:%d], v%d, %s offset:%d nt" % (rb + 4 * k, rb + 4 * k + 3, AQ + u, self.sp(S_QK), off))
                A("global_load_ushort v%d, v%d, %s" % (rb + 16, AS + u, self.sp(S_KS)))
                A("global_load_ushort v%d, v%d, %s" % (rb + 17, AS + u, self.sp(S_KZ)))
            return 24
        for k, (sr, off) in enumerate(((S_KC, 0), (S_KC, 128), (S_KSN, 0), (S_KSN, 128))):
            A("global_load_dwordx4 v[%d:%d], v%d, %s offset:%d nt" % (RT + 4 * k, RT + 4 * k + 3, VT, self.sp(sr), off))
        n = loads()
        A("v_mul_u32_u24 v%d, 144, v9\nv_lshl_add_u32 v%d, v8, 4, v%d" % (LW, LW, LW))
        A("v_mul_u32_u24 v%d, 144, v8\nv_lshl_add_u32 v%d, v9, 4, v%d" % (LR, LR, LR))
        A("s_lshr_b32 s%d, s2, 2\ns_lshl_b32 s%d, s%d, 14\ns_add_u32 s%d, s%d, s%d\ns_and_b32 s%d, s2, 3\ns_lshl_b32 s%d, s%d, 7\ns_add_u32 s%d, s%d, s%d" %
          (S_T0, S_T0, S_T0, S_T0, S_T0, S_T1, S_T2, S_T2, S_T2, S_T0, S_T0, S_T2))
        A("v_lshlrev_b32 v%d, 10, v8\nv_lshl_add_u32 v%d, v9, 4, v%d\nv_add_u32 v%d, s%d, v%d" % (AO, AO, AO, AO, S_T0, AO))
        for u in range(1, 4): A("v_add_u32 v%d, 0x%x, v%d" % (AO + u, u << 21, AO))
        A("s_lshl_b32 s%d, s%d, 11\ns_lshr_b32 s%d, s2, 6\ns_lshl_b32 s%d, s%d, 9\ns_add_u32 s%d, s%d, s%d" % (S_T0, S_BP, S_T1, S_T1, S_T1, S_T0, S_T0, S_T1))
        A("s_bfe_u32 s%d, s2, 0x30003\ns_lshl_b32 s%d, s%d, 5\ns_add_u32 s%d, s%d, s%d" % (S_T1, S_T1, S_T1, S_T0, S_T0, S_T1))
        A("s_and_b32 s%d, s2, 3\ns_lshl_b32 s%d, s%d, 2\ns_add_u32 s%d, s%d, s%d\ns_add_u32 s%d, s%d, %d" % (S_T1, S_T1, S_T1, S_T0, S_T0, S_T1, S_T0, S_T0, WS_FLAG))
        A("v_lshlrev_b32 v%d, 12, v%d\nv_add_u32 v%d, s%d, v%d" % (V_FA, ln, V_FA, S_T0, V_FA))
        A("s_mov_b64 s[%d:%d], 15\ns_mov_b32 s%d, 0x900\ns_mov_b32 s%d, 0" % (S_FM, S_FM + 1, S_FX, S_G))
        A("s_waitcnt vmcnt(%d)" % n)
        self.unpack_tab(UT, RT, False)
        A("s_waitcnt vmcnt(0) lgkmcnt(0)\ns_barrier")
        self.tag()
        self.stamp(1)
        A("L_kstage:")
        for u in range(4):
            rb = RK + 20 * u
            sc, z = rb + 16, rb + 17
            A("s_waitcnt vmcnt(%d)" % (6 * (3 - u) + 1))
            self.int_to_f32(list(range(rb, rb + 16)), TB)
            A("v_lshlrev_b32 v%d, 16, v%d\nv_lshlrev_b32 v%d, 16, v%d" % (sc, sc, z, z))
            A("v_mul_f32 v%d, v%d, v%d" % (z, z, sc))
            for p in range(8):
                r = rb + 2 * p
                A("v_pk_fma_f32 %s, %s, %s, %s op_sel:[0,0,1] op_sel_hi:[1,0,1] neg_lo:[0,0,1] neg_hi:[0,0,1]" % (P(r), P(r), P(sc), P(sc)))
            o = TB + 4 + 8 * (u & 1)
            self.rope(rb, rb + 8, UT, TB, o, o + 4)
            A("ds_write_b128 v%d, v[%d:%d] offset:%d" % (LW, o, o + 3, L_KT + u * 2304))
            A("ds_write_b128 v%d, v[%d:%d] offset:%d" % (LW, o + 4, o + 7, L_KT + u * 2304 + 1152))
        A("s_waitcnt lgkmcnt(0)")
        OB = TB + 20
        for u in range(4):
            A("ds_read_b128 v[%d:%d], v%d offset:%d" % (OB + 8 * u, OB + 8 * u + 3, LR, L_KT + u * 2304))
            A("ds_read_b128 v[%d:%d], v%d offset:%d" % (OB + 8 * u + 4, OB + 8 * u + 7, LR, L_KT + u * 2304 + 1152))
        for u in range(4):
            A("s_waitcnt lgkmcnt(%d)" % (6 - 2 * u))
            A("global_store_dwordx4 v%d, v[%d:%d], %s %s" % (AO + u, OB + 8 * u, OB + 8 * u + 3, self.sp(S_WS), st))
            A("global_store_dwordx4 v%d, v[%d:%d], %s offset:512 %s" % (AO + u, OB + 8 * u + 4, OB + 8 * u + 7, self.sp(S_WS), st))
        A("s_cmp_lg_u32 s%d, 0\ns_cbranch_scc1 L_p1done" % S_G)
        self.stamp(13)
        for u in range(4):
            A("v_xor_b32 v%d, 0x100000, v%d\nv_xor_b32 v%d, 0x1000, v%d\nv_xor_b32 v%d, 0x100000, v%d" % (AQ + u, AQ + u, AS + u, AS + u, AO + u, AO + u))
        n = loads()
        A("s_mov_b32 s%d, 1" % S_G)
        A("s_waitcnt vmcnt(%d)" % n)
        self.flag_store()
        self.stamp(2)
        A("s_branch L_kstage")

    def v_wave(self, st):
        A = self.A
        ln = V_LANE
        P = lambda r: "v[%d:%d]" % (r, r + 1)
        AV, AS, AO = 16, 18, 19
        RX, RS, TB = 32, 96, 112
        A("L_vwave:")
        A("s_lshl_b32 s%d, s%d, 6\ns_and_b32 s%d, s%d, 1\ns_lshl_b32 s%d, s%d, 5\ns_add_u32 s%d, s%d, s%d" % (S_T0, S_I, S_T1, S_H, S_T1, S_T1, S_T0, S_T0, S_T1))
        A("v_lshrrev_b32 v8, 5, v%d\nv_lshlrev_b32 v8, 2, v8\nv_add_u32 v8, s%d, v8\nv_and_b32 v9, 31, v%d" % (ln, S_T0, ln))
        A("s_lshl_b32 s%d, s%d, 20\nv_lshlrev_b32 v10, 9, v8\nv_lshl_add_u32 v10, v9, 4, v10\nv_add_u32 v10, s%d, v10" % (S_T2, S_H, S_T2))
        A("v_add_u32 v%d, 2560, v10\nv_add_u32 v%d, %d, v10" % (AV, AV + 1, 2560 + 8192))
        A("s_lshl_b32 s%d, s%d, 12\nv_lshlrev_b32 v%d, 1, v8\nv_add_u32 v%d, s%d, v%d" % (S_T3, S_H, AS, AS, S_T3, AS))
        A("s_waitcnt lgkmcnt(0)")
        self.epoch_load()
        def loads():
            for k2 in range(2):
                for j in range(8):
                    off = (8 * (j >> 2) + (j & 3)) * 512 - 2560
                    r = RX + 32 * k2 + 4 * j
                    A("global_load_dwordx4 v[%d:%d], v%d, %s offset:%d nt" % (r, r + 3, AV + k2, self.sp(S_QV), off))
                for q, sr in enumerate((S_VS, S_VZ)):
                    for hf in range(2):
                        r = RS + 8 * k2 + 4 * q + 2 * hf
                        A("global_load_dwordx2 v[%d:%d], v%d, %s offset:%d" % (r, r + 1, AS, self.sp(sr), 32 * k2 + 16 * hf))
            return 24
        n = loads()
        A("s_lshl_b32 s%d, s%d, 9\ns_add_u32 s%d, s%d, s%d\ns_add_u32 s%d, s%d, 12288" % (S_T0, S_T0, S_T0, S_T0, S_T2, S_T0, S_T0))
        A("v_lshlrev_b32 v%d, 4, v%d\nv_add_u32 v%d, s%d, v%d" % (AO, ln, AO, S_T0, AO))
        A("s_lshl_b32 s%d, s%d, 11\ns_lshr_b32 s%d, s%d, 3\ns_lshl_b32 s%d, s%d, 9\ns_add_u32 s%d, s%d, s%d" % (S_T0, S_H, S_T1, S_I, S_T1, S_T1, S_T0, S_T0, S_T1))
        A("s_and_b32 s%d, s%d, 7\ns_lshl_b32 s%d, s%d, 5\ns_add_u32 s%d, s%d, s%d\ns_add_u32 s%d, s%d, %d" % (S_T1, S_I, S_T1, S_T1, S_T0, S_T0, S_T1, S_T0, S_T0, WS_FLAG + 16))
        A("v_mov_b32 v%d, s%d" % (V_FA, S_T0))
        A("s_mov_b64 s[%d:%d], 1\ns_mov_b32 s%d, 0x100\ns_mov_b32 s%d, 0" % (S_FM, S_FM + 1, S_FX, S_G))
        A("s_waitcnt vmcnt(0) lgkmcnt(0)\ns_barrier")
        self.tag()
        self.stamp(1)
        A("L_vstage:")
        for k2 in range(2):
            x = RX + 32 * k2
            A("s_waitcnt vmcnt(%d)" % (13 if k2 == 0 else 5))
            self.int_to_f32(list(range(x, x + 32)), TB)
            sc, nz = TB, TB + 8
            for p in range(4):
                self.unpack(sc + 2 * p, RS + 8 * k2 + p)
                self.unpack(nz + 2 * p, RS + 8 * k2 + 4 + p)
            for p in range(4):
                A("v_pk_mul_f32 %s, %s, %s" % (P(nz + 2 * p), P(nz + 2 * p), P(sc + 2 * p)))
            for j in range(8):
                o = j & 1
                for hf in range(2):
                    r = x + 4 * j + 2 * hf
                    A("v_pk_fma_f32 %s, %s, %s, %s op_sel:[0,%d,%d] op_sel_hi:[1,%d,%d] neg_lo:[0,0,1] neg_hi:[0,0,1]" %
                      (P(r), P(r), P(sc + (j & ~1)), P(nz + (j & ~1)), o, o, o, o))
            for t in range(4):
                o = TB + 16 + 16 * k2 + 4 * t
                for jj in range(4):
                    A("v_cvt_pk_bf16_f32 v%d, v%d, v%d" % (o + jj, x + 8 * jj + t, x + 8 * jj + 4 + t))
                A("global_store_dwordx4 v%d, v[%d:%d], %s offset:%d %s" % (AO, o, o + 3, self.sp(S_WS), (4 * k2 + t) * 1024 - 4096, st))
        A("s_cmp_lg_u32 s%d, 0\ns_cbranch_scc1 L_p1done" % S_G)
        self.stamp(13)
        A("v_xor_b32 v10, 16384, v10\nv_add_u32 v%d, 2560, v10\nv_add_u32 v%d, %d, v10\nv_xor_b32 v%d, 64, v%d\nv_xor_b32 v%d, 16384, v%d" % (AV, AV + 1, 2560 + 8192, AS, AS, AO, AO))
        n = loads()
        A("s_mov_b32 s%d, 1" % S_G)
        A("s_waitcnt vmcnt(%d)" % n)
        self.flag_store()
        self.stamp(2)
        A("s_branch L_vstage")

    def q_wave(self):
        A = self.A
        ln = V_LANE
        AQ, AT, LW = 16, 17, 18
        RQ, UT, TB = 32, 128, 160
        A("L_qwave:")
        A("s_lshl_b32 s%d, s%d, 6\ns_and_b32 s%d, s%d, 1\ns_lshl_b32 s%d, s%d, 5\ns_add_u32 s%d, s%d, s%d" % (S_T0, S_I, S_T3, S_W, S_T1, S_T3, S_T0, S_T0, S_T1))
        A("v_lshrrev_b32 v8, 3, v%d\nv_and_b32 v9, 7, v%d\nv_add_u32 v10, s%d, v8" % (ln, ln, S_T0))
        A("v_lshlrev_b32 v%d, 8, v10\nv_lshl_add_u32 v%d, v9, 4, v%d\nv_add_u32 v%d, 4096, v%d" % (AT, AT, AT, AT, AT))
        A("s_lshl_b32 s%d, s%d, 19\nv_add_u32 v%d, s%d, v%d" % (S_T2, S_H, AQ, S_T2, AT))
        A("s_mul_i32 s%d, s%d, 8320\ns_add_u32 s%d, s%d, %d" % (S_T0, S_T3, S_T0, S_T0, L_Q))
        A("v_mul_u32_u24 v%d, 1040, v9\nv_lshl_add_u32 v%d, v8, 4, v%d\nv_add_u32 v%d, s%d, v%d" % (LW, LW, LW, LW, S_T0, LW))
        A("s_mov_b64 s[%d:%d], 0" % (S_FM, S_FM + 1))
        A("s_waitcnt lgkmcnt(0)")
        self.epoch_load()
        def loads():
            for u in range(4):
                b = RQ + 24 * u
                for (r, v, sr, off, m) in ((0, AQ, S_Q, 0, "nt"), (4, AQ, S_Q, 128, "nt"), (8, AT, S_QC, 0, ""), (12, AT, S_QC, 128, ""), (16, AT, S_QS, 0, ""), (20, AT, S_QS, 128, "")):
                    A("global_load_dwordx4 v[%d:%d], v%d, %s offset:%d %s" % (b + r, b + r + 3, v, self.sp(sr), 2048 * u + off - 4096, m))
        if self.qearly: loads()
        A("s_waitcnt lgkmcnt(0)\ns_barrier")
        if not self.qearly: loads()
        self.tag()
        self.stamp(1)
        for u in range(4):
            b = RQ + 24 * u
            A("s_waitcnt vmcnt(%d)" % (6 * (3 - u)))
            self.unpack_tab(UT, b + 8, False)
            x1, x2 = TB + 12, TB + 20
            for p in range(4):
                self.unpack(x1 + 2 * p, b + p); self.unpack(x2 + 2 * p, b + 4 + p)
            for p in range(8):
                A("v_pk_mul_f32 v[%d:%d], v[%d:%d], s[%d:%d]" % (x1 + 2 * p, x1 + 2 * p + 1, x1 + 2 * p, x1 + 2 * p + 1, S_C, S_C + 1))
            self.rope(x1, x2, UT, TB, b, b + 4)
            A("ds_write_b128 v%d, v[%d:%d] offset:%d" % (LW, b, b + 3, 128 * u))
            A("ds_write_b128 v%d, v[%d:%d] offset:%d" % (LW, b + 4, b + 7, 128 * u + 512))
        self.stamp(13); self.stamp(2)

    def epoch_load(self):
        self.A("s_mov_b32 s%d, %d\ns_load_dword s%d, %s, s%d" % (S_CNT, WS_EPOCH, S_TAG, self.sp(S_WS), S_CNT))
    def tag(self):
        self.A("s_add_u32 s%d, s%d, 0x9e3779b9" % (S_TAG, S_TAG))

    def flag_store(self):
        A = self.A
        A("v_mov_b32 v%d, s%d" % (V_TMP3, S_TAG))
        A("s_mov_b64 exec, s[%d:%d]" % (S_FM, S_FM + 1))
        A("global_store_dword v%d, v%d, %s sc1" % (V_FA, V_TMP3, self.sp(S_WS)))
        A("s_mov_b64 exec, -1")
        A("v_xor_b32 v%d, s%d, v%d" % (V_FA, S_FX, V_FA))

    def flag_store_b(self):
        lab = self.label("L_nofl")
        self.A("s_cmp_eq_u32 s%d, 0\ns_cbranch_scc1 %s" % (S_FM, lab))
        self.flag_store()
        self.A("%s:" % lab)

    def poll_addr(self):
        A = self.A
        ln = V_LANE
        A("s_lshl_b32 s%d, s%d, 11\ns_lshl_b32 s%d, s%d, 9\ns_add_u32 s%d, s%d, s%d\ns_add_u32 s%d, s%d, %d" % (S_T0, S_H, S_T1, S_W, S_T0, S_T0, S_T1, S_T0, S_T0, WS_FLAG))
        A("v_and_b32 v%d, 7, v%d\nv_min_u32 v%d, 4, v%d\nv_and_b32 v%d, 0x38, v%d\nv_add_u32 v%d, v%d, v%d" % (V_PA, ln, V_PA, V_PA, V_PB, ln, V_PA, V_PA, V_PB))
        A("v_lshlrev_b32 v%d, 2, v%d\nv_add_u32 v%d, s%d, v%d\nv_add_u32 v%d, 256, v%d" % (V_PA, V_PA, V_PA, S_T0, V_PA, V_PB, V_PA))

    def poll(self, regs, after_first=None):
        A = self.A
        lab = self.label("L_poll"); done = self.label("L_polled")
        A("s_mov_b32 s%d, 0" % S_CNT)
        if after_first:
            for k, r in enumerate(regs):
                A("global_load_dword v%d, v%d, %s sc1" % (V_TMP0 + k, r, self.sp(S_WS)))
            A("s_waitcnt vmcnt(0)")
            after_first()
            chk = self.label("L_pchk")
            A("s_branch %s" % chk)
        A("%s:" % lab)
        if self.sleep: A("s_sleep %d" % self.sleep)
        for k, r in enumerate(regs):
            A("global_load_dword v%d, v%d, %s sc1" % (V_TMP0 + k, r, self.sp(S_WS)))
        A("s_waitcnt vmcnt(0)")
        if after_first: A("%s:" % chk)
        A("s_add_u32 s%d, s%d, 1" % (S_CNT, S_CNT))
        for k in range(len(regs)): A("v_xor_b32 v%d, s%d, v%d" % (V_TMP0 + k, S_TAG, V_TMP0 + k))
        for k in range(1, len(regs)): A("v_or_b32 v%d, v%d, v%d" % (V_TMP0, V_TMP0, V_TMP0 + k))
        A("v_cmp_ne_u32 vcc, 0, v%d" % V_TMP0)
        A("s_cbranch_vccz %s" % done)
        A("s_cmp_lt_u32 s%d, 0x8000\ns_cbranch_scc1 %s" % (S_CNT, lab))
        A("%s:" % done)

    def mfma_qk(self, x, ks, kset, first_c=None):
        s = V_S[x]; k = V_K[kset] + 4 * ks; q = A_Q(x, ks)
        if ks == 0:
            c = first_c if first_c is not None else "v[%d:%d]" % (V_NM[x], V_NM[x] + 15)
        else:
            c = "v[%d:%d]" % (s, s + 15)
        return "v_mfma_f32_32x32x16_bf16 v[%d:%d], v[%d:%d], a[%d:%d], %s" % (s, s + 15, k, k + 3, q, q + 3, c)
    def mfma_pv(self, x, idx, vset, first=False):
        ks2, t = idx >> 2, idx & 3
        o = A_O(x, t); v = V_V[vset] + 4 * idx; p = V_P[x] + 4 * ks2
        c = "0" if (first and ks2 == 0) else "a[%d:%d]" % (o, o + 15)
        return "v_mfma_f32_32x32x16_bf16 a[%d:%d], v[%d:%d], v[%d:%d], %s" % (o, o + 15, v, v + 3, p, p + 3, c)
    def ld_k(self, ks, kset):
        r = V_K[kset] + 4 * ks
        return "buffer_load_dwordx4 v[%d:%d], v%d, s[%d:%d], s%d offen offset:%d %s" % (r, r + 3, V_KOFF0 + (ks >> 2), S_SRD, S_SRD + 3, S_OFF, (ks & 3) * 1024, self.ldmod)
    def ld_v(self, idx, vset):
        r = V_V[vset] + 4 * idx
        return "buffer_load_dwordx4 v[%d:%d], v%d, s[%d:%d], s%d offen offset:%d %s" % (r, r + 3, V_VOFF0 + (idx >> 2), S_SRD, S_SRD + 3, S_OFF, (idx & 3) * 1024, self.ldmod)
    def op_e(self, x, r): return "v_exp_f32 v%d, v%d" % (V_E[x] + r, V_S[x] + r)
    def op_a(self, x, r):
        if r == 1: return "v_add_f32 v%d, v%d, v%d" % (V_T[x], V_E[x], V_E[x] + 1)
        return "v_add_f32 v%d, v%d, v%d" % (V_T[x], V_T[x], V_E[x] + r)
    def op_c(self, x, k): return "v_cvt_pk_bf16_f32 v%d, v%d, v%d" % (V_P[x] + k, V_E[x] + 2 * k, V_E[x] + 2 * k + 1)
    def op_f(self, x): return "v_add_f32 v%d, v%d, v%d" % (V_L[x], V_L[x], V_T[x])
    def op_chk(self, x):
        stub = self.label("L_slow_%s" % x); ret = self.label("L_ret_%s" % x)
        self.stubs.append((stub, ret, x))
        return ["v_cmp_nge_f32 vcc, s%d, v%d" % (S_THR, V_T[x]), "s_cbranch_vccnz %s" % stub, "%s:" % ret]

    PERIOD = {
        8:  "F L o4",
        9:  "L o5 o6",
        10: "o7 e0 e1 S",
        11: "L e2",
        12: "a1 e3 a2 c0 S",
        13: "L e4",
        14: "a3 e5 a4 c1 W1",
        15: "L e6",
        16: "a5 e7 a6 c2",
        17: "L e8",
        18: "a7 e9 a8 c3",
        19: "L e10",
        20: "a9 e11 a10 W2",
        21: "L e12",
        22: "e13 a11 e14 a12",
        23: "e15 a13 a14 a15 K",
    }

    def iteration(self, jp, loads=True, skip_b_head=False, kloads_tail=True, last=False):
        out = []
        kq = (jp + 1) & 1
        for p in range(32):
            if p < 8: out.append(self.mfma_qk('a', p, kq))
            elif p < 16: out.append(self.mfma_pv('b', p - 8, jp))
            elif p < 24: out.append(self.mfma_qk('b', p - 16, kq))
            else: out.append(self.mfma_pv('a', p - 24, kq))
            if p < 8: x, u = 'b', p + 16
            elif p < 24: x, u = 'a', p
            else: x, u = 'b', p - 16
            y = 'a' if x == 'b' else 'b'
            for tok in self.PERIOD[u].split():
                c = tok[0]
                if c == 'L':
                    li = sum(self.PERIOD[v].split().count('L') for v in range(8, u)) + 0
                    if not loads: continue
                    if x == 'a': out.append(self.ld_v(li, jp))
                    elif p >= 24: out.append(self.ld_k(li, kq))
                    else: out.append(self.ld_k(li, jp))
                elif c == 'e': out.append(self.op_e(x, int(tok[1:])))
                elif c == 'a': out.append(self.op_a(x, int(tok[1:])))
                elif c == 'c': out.append(self.op_c(x, int(tok[1:])))
                elif c == 'o': out.append(self.op_c(y, int(tok[1:])))
                elif c == 'F': out.append(self.op_f(y))
                elif c == 'K': out += self.op_chk(x)
                elif c == 'W':
                    if tok == "W2" and x == 'a': out.append("@WAIT_V")
                    if tok == "W1" and x == 'b': out.append("@WAIT_K")
                elif c == 'S':
                    pass
        return out

    def slow_sub(self, x):
        A = self.A
        s, e, nm = V_S[x], V_E[x], V_NM[x]
        t0, t1 = V_TMP0, V_TMP1
        A("L_sub_%s:" % x)
        A("s_nop 7")
        A("v_max3_f32 v%d, v%d, v%d, v%d" % (t0, s, s + 1, s + 2))
        for r in range(3, 15, 2): A("v_max3_f32 v%d, v%d, v%d, v%d" % (t0, s + r, s + r + 1, t0))
        A("v_max3_f32 v%d, v%d, v%d, 0" % (t0, s + 15, t0))
        A("v_mov_b32 v%d, v%d\ns_nop 1\nv_permlane32_swap_b32 v%d, v%d\ns_nop 1\nv_max_f32 v%d, v%d, v%d" % (t1, t0, t0, t1, t0, t0, t1))
        A("v_exp_f32 v%d, -v%d" % (t1, t0))
        for r in range(16):
            A("v_sub_f32 v%d, v%d, v%d" % (s + r, s + r, t0))
            A("v_sub_f32 v%d, v%d, v%d" % (nm + r, nm + r, t0))
        A("v_mul_f32 v%d, v%d, v%d" % (V_L[x], V_L[x], t1))
        for t in range(4):
            for r in range(16):
                a = A_O(x, t) + r
                A("v_accvgpr_read_b32 v%d, a%d\nv_mul_f32 v%d, v%d, v%d\nv_accvgpr_write_b32 a%d, v%d" % (V_TMP2, a, V_TMP2, V_TMP2, t1, a, V_TMP2))
        for r in range(16): A(self.op_e(x, r))
        A("s_nop 0")
        for r in range(1, 16): A(self.op_a(x, r))
        for k in range(8): A(self.op_c(x, k))
        A("s_nop 3")
        A("s_setpc_b64 s[%d:%d]" % (S_RET, S_RET + 1))

    def first_fix(self, x):
        s, nm = V_S[x], V_NM[x]
        t0, t1 = (V_TMP0, V_TMP1) if x == 'a' else (V_TMP2, V_TMP3)
        o = []
        o.append("v_max3_f32 v%d, v%d, v%d, v%d" % (t0, s, s + 1, s + 2))
        for r in range(3, 15, 2): o.append("v_max3_f32 v%d, v%d, v%d, v%d" % (t0, s + r, s + r + 1, t0))
        o.append("v_max_f32 v%d, v%d, v%d" % (t0, s + 15, t0))
        o += ["v_mov_b32 v%d, v%d" % (t1, t0), "s_nop 1", "v_permlane32_swap_b32 v%d, v%d" % (t0, t1), "s_nop 1", "v_max_f32 v%d, v%d, v%d" % (t0, t0, t1)]
        for r in range(16): o.append("v_sub_f32 v%d, v%d, v%d" % (s + r, s + r, t0))
        for r in range(16): o.append("v_sub_f32 v%d, 0, v%d" % (nm + r, t0))
        return o

    def next_off(self):
        return ["s_add_u32 m0, m0, 1", "s_nop 0", "s_movrels_b32 s%d, s%d" % (S_OFF, S_TBL)]

    def main(self):
        A = self.A
        self.stubs = []
        ln = V_LANE
        A("v_lshlrev_b32 v%d, 4, v%d\nv_add_u32 v%d, 4096, v%d\nv_add_u32 v%d, 8192, v%d\nv_add_u32 v%d, 12288, v%d" %
          (V_KOFF0, ln, V_KOFF1, V_KOFF0, V_VOFF0, V_KOFF0, V_VOFF1, V_KOFF0))
        A("s_mov_b32 s%d, s%d\ns_mov_b32 s%d, s%d\ns_mov_b32 s%d, 0x800000\ns_mov_b32 s%d, 0x20000" % (S_SRD, S_WS, S_SRD + 1, S_WS + 1, S_SRD + 2, S_SRD + 3))
        A("s_lshl_b32 s%d, s%d, 20\ns_lshl_b32 s%d, s%d, 18\ns_add_u32 s%d, s%d, s%d" % (S_T0, S_H, S_T1, S_W, S_T0, S_T0, S_T1))
        A("s_and_b32 s%d, s%d, 1\ns_lshl_b32 s%d, s%d, 14\ns_add_u32 s%d, s%d, s%d" % (S_T1, S_H, S_T1, S_T1, S_T0, S_T0, S_T1))
        for n in range(8):
            A("s_add_u32 s%d, s%d, %d\ns_and_b32 s%d, s%d, 7\ns_lshl_b32 s%d, s%d, 15\ns_add_u32 s%d, s%d, s%d\ns_xor_b32 s%d, s%d, 16384" %
              (S_T1, S_I, n, S_T1, S_T1, S_T1, S_T1, S_TBL + n, S_T1, S_T0, S_TBL + 8 + n, S_TBL + n))
        A("s_mov_b32 s%d, s%d" % (S_TBL + 16, S_TBL))
        self.poll([V_PA], after_first=lambda: (self.flag_store_b(), self.stamp(15)))
        self.stamp(3)
        A("s_mov_b32 s%d, s%d" % (S_OFF, S_TBL))
        for k in range(8): A(self.ld_k(k, 0))
        for k in range(8): A(self.ld_v(k, 0))
        A("s_mov_b32 s%d, s%d" % (S_OFF, S_TBL + 1))
        for k in range(8): A(self.ld_k(k, 1))
        for k in range(8): A(self.ld_v(k, 1))
        A("s_mov_b32 m0, 2\ns_mov_b32 s%d, s%d" % (S_OFF, S_TBL + 2))
        A("v_mov_b32 v%d, 0\nv_mov_b32 v%d, 0" % (V_L['a'], V_L['b']))
        for t in range(4):
            for r in range(16): A("v_accvgpr_write_b32 a%d, 0" % (A_O('b', t) + r))
        A("s_waitcnt vmcnt(24) lgkmcnt(0)")
        self.stamp(4)
        for ks in range(8): A(self.mfma_qk('a', ks, 0, first_c="0"))
        fa = self.first_fix('a')
        sa = [self.op_e('a', r) for r in range(16)]
        seq = fa + sa[:2]
        for r in range(2, 16):
            seq.append(sa[r]); seq.append(self.op_a('a', r - 1))
        seq += [self.op_c('a', 0), self.op_a('a', 15)] + [self.op_c('a', k) for k in range(1, 4)]
        per = 6
        pos = 0
        for ks in range(8):
            A(self.mfma_qk('b', ks, 0, first_c="0"))
            if ks >= 2:
                for s in seq[pos:pos + per]: A(s)
                pos += per
        for s in seq[pos:]: A(s)
        fb = self.first_fix('b')
        A("s_waitcnt vmcnt(16)")
        it = self.iteration(1)
        idx = [k for k, s in enumerate(it) if s.startswith("v_mfma")]
        tail = it[idx[24]:]
        self.stubs = [st for st in self.stubs if any(s.endswith(' '+st[0]) for s in tail)]
        for s in fb: A(s)
        nm = 0
        for s in tail:
            if s.startswith("v_mfma"):
                s = self.mfma_pv('a', nm, 0, first=True); nm += 1
            if s == "@WAIT_K": s = "s_waitcnt vmcnt(%d)" % self.wk
            A(s)
        self.stamp(5)
        self.cstamp(8)
        A("s_mov_b32 s%d, 4" % S_LIM)
        A(".p2align 6")
        A("L_loop:")
        for jp in range(2):
            it = self.iteration(jp)
            self.emit_iter(it)
        A("s_cmp_lt_u32 m0, s%d\ns_cbranch_scc1 L_loop" % S_LIM)
        A("s_cmp_lg_u32 s%d, 4\ns_cbranch_scc1 L_disp2" % S_LIM)
        A("global_load_dword v%d, v%d, %s sc1" % (V_FA, V_PB, self.sp(S_WS)))
        A("s_mov_b32 s%d, 6\ns_branch L_loop" % S_LIM)
        A("L_disp2:")
        A("s_cmp_lg_u32 s%d, 6\ns_cbranch_scc1 L_tail" % S_LIM)
        A("s_mov_b32 s%d, 16" % S_LIM)
        A("v_cmp_ne_u32 vcc, s%d, v%d\ns_cbranch_vccz L_loop" % (S_TAG, V_FA))
        self.poll([V_PB])
        A("s_branch L_loop")
        A("L_tail:")
        it = self.iteration(0, loads=False)
        for s in it:
            if s in ("@WAIT_V", "@WAIT_K"): s = "s_waitcnt vmcnt(0)"
            A(s)
        it = self.iteration(1, loads=False)
        idx = [k for k, s in enumerate(it) if s.startswith("v_mfma")]
        keep = it[:idx[16]]
        drop = it[idx[16]:]
        first = True
        used = []
        nm = 0
        for k, s in enumerate(keep):
            if s.startswith("v_mfma") and k < idx[8]: continue
            if k >= idx[8] and not s.startswith("v_mfma"):
                isb = (s == self.op_f('b')) or any(s == self.op_c('b', c) for c in range(8))
                if not isb: continue
            if s.startswith("@"): continue
            if s.startswith("v_exp"):
                A(s); A("s_nop 0"); used.append(s); continue
            if s.startswith("v_mfma"):
                if nm in (0, 4): A("s_nop 1")
                nm += 1
            A(s); used.append(s)
        self.stubs = [st for st in self.stubs if any(s.endswith(' '+st[0]) for s in self.L)]
        self.stamp(6)
        self.cstamp(9)

    def emit_iter(self, it):
        A = self.A
        lastv = max(k for k, s in enumerate(it) if s.startswith("buffer_load") and (" v%d," % V_VOFF1) in s)
        for k, s in enumerate(it):
            if s == "@WAIT_V": s = "s_waitcnt vmcnt(%d)" % self.wv
            if s == "@WAIT_K": s = "s_waitcnt vmcnt(%d)" % self.wk
            if 'noload' in self.abl and s.startswith("buffer_load"): s = "s_nop 0"
            if 'novalu' in self.abl and (s.startswith("v_exp") or s.startswith("v_add") or s.startswith("v_cvt")): s = "s_nop 0"
            if 'nomfma' in self.abl and s.startswith("v_mfma"): s = "s_nop 1"
            if 'halfload' in self.abl and s.startswith("buffer_load") and ("offset:1024" in s or "offset:3072" in s): s = "s_nop 0"
            A(s)
            if k == lastv - 3: A("s_add_u32 m0, m0, 1")
            if k == lastv + 2: A("s_movrels_b32 s%d, s%d" % (S_OFF, S_TBL))

    def compute_waits(self):
        self.stubs = []
        it = self.iteration(0)
        seq = it + it + it
        n = len(it)
        isld = lambda s: s.startswith("buffer_load")
        isv = lambda s: isld(s) and ((" v%d," % V_VOFF0) in s or (" v%d," % V_VOFF1) in s)
        kv = 2 * n + it.index("@WAIT_V")
        lastv = max(k for k in range(n, 2 * n) if isv(seq[k]))
        self.wv = sum(1 for k in range(lastv + 1, kv) if isld(seq[k]))
        kk = 2 * n + it.index("@WAIT_K")
        idx = [k for k, s in enumerate(it) if s.startswith("v_mfma")]
        lastk = 2 * n + max(k for k in range(0, idx[8]) if isld(it[k]))
        self.wk = sum(1 for k in range(lastk + 1, kk) if isld(seq[k]))
        self.uid = 0

    def epilogue(self):
        A = self.A
        ln = V_LANE
        A("; ---- epilogue ----")
        for x in 'ab':
            l = V_L[x]; t = V_T[x]
            A("v_mov_b32 v%d, v%d\ns_nop 1\nv_permlane32_swap_b32 v%d, v%d\ns_nop 1\nv_add_f32 v%d, v%d, v%d" % (t, l, l, t, V_NM[x] + 1, l, t))
        A("s_lshl_b32 s%d, s%d, 10\ns_add_u32 s%d, s%d, %d" % (S_T0, S_W, S_T0, S_T0, L_ST))
        A("v_lshlrev_b32 v6, 3, v%d\nv_add_u32 v7, s%d, v6" % (ln, S_T0))
        A("ds_write_b64 v7, v[%d:%d]" % (V_NM['a'], V_NM['a'] + 1))
        A("ds_write_b64 v7, v[%d:%d] offset:512" % (V_NM['b'], V_NM['b'] + 1))
        A("s_nop 7\ns_nop 7")
        for d in range(4):
            skip = self.label("L_skipw")
            A("s_cmp_eq_u32 s%d, %d\ns_cbranch_scc1 %s" % (S_W, d, skip))
            A("s_sub_u32 s%d, s%d, %d\ns_and_b32 s%d, s%d, 3\ns_lshl_b32 s%d, s%d, 13\ns_add_u32 s%d, s%d, %d" %
              (S_T0, S_W, d + 1, S_T0, S_T0, S_T0, S_T0, S_T0, S_T0, L_O + d * 3 * 8192))
            A("v_add_u32 v7, s%d, v%d" % (S_T0, V_KOFF0))
            idx = 0
            for x in 'ab':
                for t in range(4):
                    a = A_O(x, t) + 4 * d
                    A("ds_write_b128 v7, a[%d:%d] offset:%d" % (a, a + 3, idx * 1024)); idx += 1
            A("%s:" % skip)
        own = 128
        done = self.label("L_own")
        for d in range(4):
            nxt = self.label("L_ownn")
            if d < 3: A("s_cmp_lg_u32 s%d, %d\ns_cbranch_scc1 %s" % (S_W, d, nxt))
            idx = 0
            for x in 'ab':
                for t in range(4):
                    a = A_O(x, t) + 4 * d
                    for i in range(4): A("v_accvgpr_read_b32 v%d, a%d" % (own + idx * 4 + i, a + i))
                    idx += 1
            if d < 3: A("s_branch %s\n%s:" % (done, nxt))
        A("%s:" % done)
        A("s_waitcnt lgkmcnt(0)\ns_barrier")
        st = 16
        for k in range(3):
            A("s_add_u32 s%d, s%d, %d\ns_and_b32 s%d, s%d, 3\ns_lshl_b32 s%d, s%d, 10\ns_add_u32 s%d, s%d, %d" % (S_T0, S_W, k + 1, S_T0, S_T0, S_T0, S_T0, S_T0, S_T0, L_ST))
            A("v_add_u32 v7, s%d, v6" % S_T0)
            A("ds_read_b64 v[%d:%d], v7\nds_read_b64 v[%d:%d], v7 offset:512" % (st + 4 * k, st + 4 * k + 1, st + 4 * k + 2, st + 4 * k + 3))
        A("s_mul_i32 s%d, s%d, 24576\ns_add_u32 s%d, s%d, %d\nv_add_u32 v7, s%d, v%d" % (S_T0, S_W, S_T0, S_T0, L_O, S_T0, V_KOFF0))
        pb = 160
        for k in range(3):
            for idx in range(8):
                r = pb + (k * 8 + idx) * 4
                A("ds_read_b128 v[%d:%d], v7 offset:%d" % (r, r + 3, k * 8192 + idx * 1024))
        A("s_waitcnt lgkmcnt(15)")
        A("s_waitcnt lgkmcnt(0)")
        F = 32
        for xi, x in enumerate('ab'):
            nm0, l0 = V_NM[x], V_NM[x] + 1
            nms = [nm0] + [st + 4 * k + 2 * xi for k in range(3)]
            ls = [l0] + [st + 4 * k + 2 * xi + 1 for k in range(3)]
            mn = 40
            A("v_min3_f32 v%d, v%d, v%d, v%d\nv_min_f32 v%d, v%d, v%d" % (mn, nms[0], nms[1], nms[2], mn, mn, nms[3]))
            for s in range(4): A("v_sub_f32 v%d, v%d, v%d" % (F + 4 * xi + s, mn, nms[s]))
            for s in range(4): A("v_exp_f32 v%d, v%d" % (F + 4 * xi + s, F + 4 * xi + s))
            A("s_nop 0")
            A("v_mul_f32 v41, v%d, v%d" % (F + 4 * xi, ls[0]))
            for s in range(1, 4): A("v_fmac_f32 v41, v%d, v%d" % (F + 4 * xi + s, ls[s]))
            A("v_rcp_f32 v41, v41\ns_nop 0")
            for s in range(4): A("v_mul_f32 v%d, v%d, v41" % (F + 4 * xi + s, F + 4 * xi + s))
        for idx in range(8):
            xi = idx >> 2
            for i in range(4):
                r = own + idx * 4 + i
                A("v_mul_f32 v%d, v%d, v%d" % (r, r, F + 4 * xi))
                for k in range(3):
                    A("v_fmac_f32 v%d, v%d, v%d" % (r, pb + (k * 8 + idx) * 4 + i, F + 4 * xi + 1 + k))
        A("s_lshl_b32 s%d, s%d, 19\ns_lshl_b32 s%d, s%d, 14\ns_add_u32 s%d, s%d, s%d\ns_lshl_b32 s%d, s%d, 6\ns_add_u32 s%d, s%d, s%d" %
          (S_T0, S_H, S_T1, S_I, S_T0, S_T0, S_T1, S_T1, S_W, S_T0, S_T0, S_T1))
        A("v_and_b32 v6, 31, v%d\nv_lshrrev_b32 v7, 5, v%d\nv_lshlrev_b32 v6, 8, v6\nv_lshl_add_u32 v6, v7, 5, v6\nv_add_u32 v6, s%d, v6\nv_add_u32 v7, 8192, v6" % (ln, ln, S_T0))
        ob = 48
        for xi in range(2):
            for hf in range(2):
                o = ob + (xi * 2 + hf) * 4
                for ii in range(2):
                    i = 2 * hf + ii
                    for tp in range(2):
                        r0 = own + (xi * 4 + 2 * tp) * 4 + i
                        r1 = own + (xi * 4 + 2 * tp + 1) * 4 + i
                        A("v_cvt_pk_bf16_f32 v%d, v%d, v%d" % (o + 2 * ii + tp, r0, r1))
                A("global_store_dwordx4 v%d, v[%d:%d], s[%d:%d] offset:%d" % (6 + xi, o, o + 3, S_OUT, S_OUT + 1, 16 * hf))

    def q_frag_read(self):
        A = self.A
        A("v_lshlrev_b32 v1, 4, v%d" % V_LANE)
        for f in range(16):
            a = 128 + 4 * f
            A("ds_read_b128 a[%d:%d], v1 offset:%d" % (a, a + 3, L_Q + f * 1040))

    def dump_stamps(self):
        if not self.stamps: return
        A = self.A
        A("s_lshl_b32 s76, s2, 2\ns_add_u32 s76, s76, s%d\ns_lshl_b32 s76, s76, 6\ns_add_u32 s76, s76, %d" % (S_W, 16 << 20))
        A("v_mov_b32 v2, s76")
        A("s_mov_b64 exec, 1")
        for k in range(0, 16):
            A("v_mov_b32 v1, s%d\nglobal_store_dword v2, v1, s[%d:%d] offset:%d" % (80 + k, S_WS, S_WS + 1, 4 * k))
        A("s_mov_b64 exec, -1")

    def kd(self, name, vgpr=512, acc=256):
        return ('.p2align 6\n.amdhsa_kernel %s\n  .amdhsa_next_free_vgpr %d\n  .amdhsa_next_free_sgpr 102\n  .amdhsa_accum_offset %d\n'
                '  .amdhsa_group_segment_fixed_size 0\n  .amdhsa_kernarg_size 112\n  .amdhsa_user_sgpr_count 2\n'
                '  .amdhsa_user_sgpr_kernarg_segment_ptr 1\n  .amdhsa_system_sgpr_workgroup_id_x 1\n.end_amdhsa_kernel\n' % (name, vgpr, acc))

    def head(self, name):
        self.A(".globl %s\n.p2align 8\n.type %s,@function\n%s:" % (name, name, name))

    def build(self):
        A = self.A
        K = NAME + "_kernel"
        fused = self.mode == "fused"
        self.ldmod = "sc1" if fused else ""
        st = "sc1" if fused else ""
        self.compute_waits()
        hdr = open("cdna_kernels/%s.s.ref" % NAME).read().split("; @launch")[0]
        A(hdr.rstrip("\n"))
        if fused:
            A("; @launch grid=(256,1,1) block=(256,1,1) lds=%d" % LDS_BYTES)
        else:
            A("; @launch kernel=prep_kernel grid=(256,1,1) block=(256,1,1) lds=%d" % 9216)
            A("; @launch kernel=%s grid=(256,1,1) block=(256,1,1) lds=%d" % (K, LDS_BYTES))
        A('.amdgcn_target "amdgcn-amd-amdhsa--gfx950"\n.text')
        self.head(K)
        self.setup("L_end")
        self.stamp(0)
        self.poll_addr()
        A("s_cmp_eq_u32 s%d, 1\ns_cbranch_scc1 L_vwave\ns_cmp_ge_u32 s%d, 2\ns_cbranch_scc1 L_qwave" % (S_W, S_W))
        self.k_wave(st)
        self.v_wave(st)
        self.q_wave()
        A("L_p1done:")
        self.stamp(10)
        A("s_waitcnt lgkmcnt(0)\ns_barrier")
        self.stamp(11)
        self.q_frag_read()
        self.main()
        self.epilogue()
        if fused:
            lab = self.label("L_noep")
            A("s_cmp_lg_u32 s2, 0\ns_cbranch_scc1 %s\ns_cmp_lg_u32 s%d, 0\ns_cbranch_scc1 %s" % (lab, S_W, lab))
            A("s_mov_b32 s%d, %d" % (S_T0, WS_EPOCH))
            A("v_mov_b32 v1, s%d\nv_mov_b32 v2, s%d\ns_mov_b64 exec, 1\nglobal_store_dword v1, v2, s[%d:%d] sc1\ns_mov_b64 exec, -1" % (S_T0, S_TAG, S_WS, S_WS + 1))
            A("%s:" % lab)
        self.stamp(7)
        self.dump_stamps()
        A("L_end:\ns_endpgm")
        for stub, ret, x in self.stubs:
            A("%s:\ns_call_b64 s[%d:%d], L_sub_%s\ns_branch %s" % (stub, S_RET, S_RET + 1, x, ret))
        self.slow_sub('a'); self.slow_sub('b')
        A('.section .rodata,"a"')
        A(self.kd(K))
        return "\n".join(self.L) + "\n"

if __name__ == "__main__":
    ap = argparse.ArgumentParser()
    ap.add_argument("out")
    ap.add_argument("--mode", default="fused")
    ap.add_argument("--exact", action="store_true")
    ap.add_argument("--stamps", action="store_true")
    ap.add_argument("--abl", default="")
    ap.add_argument("--qearly", action="store_true")
    ap.add_argument("--sleep", type=int, default=0)
    a = ap.parse_args()
    g = Gen(a.mode, a.exact, a.stamps, a.abl, a.sleep, a.qearly)
    open(a.out, "w").write(g.build())
    print("wv", g.wv, "wk", g.wk, "lines", len(g.L))
```

```python
import sys, struct, argparse
NAME = "standalone__kv_cache_quant_pre_rope_vs_post_rope__prompt"

def f32bits(x): return struct.unpack("<I", struct.pack("<f", x))[0]
CSCALE = 1.4426950408889634 * (128.0 ** -0.5)

V_KOFF0, V_KOFF1, V_VOFF0, V_VOFF1 = 1, 2, 3, 4
V_LANE = 5
V_T = {'a': 8, 'b': 9}
V_L = {'a': 10, 'b': 11}
V_TMP0, V_TMP1, V_TMP2, V_TMP3 = 12, 13, 14, 15
V_S = {'a': 16, 'b': 32}
V_NM = {'a': 48, 'b': 64}
V_E = {'a': 80, 'b': 96}
V_P = {'a': 112, 'b': 120}
V_K = [128, 160]
V_V = [192, 224]
def A_O(x, t): return ((0 if x == 'a' else 1) * 4 + t) * 16
def A_Q(x, ks): return 128 + ((0 if x == 'a' else 1) * 8 + ks) * 4
S_Q, S_QK, S_KS, S_KZ, S_QV, S_VS, S_VZ, S_QC, S_QS, S_KC, S_KSN, S_OUT, S_DBG, S_WS = [4 + 2 * i for i in range(14)]
S_H, S_I, S_W, S_TAG = 32, 33, 34, 35
S_T0, S_T1, S_T2, S_T3 = 36, 37, 38, 39
S_SRD = 40
S_OFF, S_THR = 44, 45
S_C = 46
S_TBL = 48
S_RET = 66
S_CNT = 68
S_EXEC = 70
S_BP, S_HA = 72, 73
V_PA, V_PB, V_FA = 6, 7, 0
S_FM, S_FX, S_G, S_LIM = 74, 78, 79, 69
L_KT = 0
L_Q = 9216
L_ST = L_Q + 16 * 1040
L_O = L_ST + 4096
LDS_BYTES = L_O + 96 * 1024
WS_FLAG = 8 << 20
WS_EPOCH = 9 << 20
THRESH = 1024.0

class Gen:
    def __init__(self, mode="fused", exact=False, stamps=False, abl="", sleep=0, qearly=False, probe=None):
        self.abl = abl
        self.sleep = sleep
        self.qearly = qearly
        self.probe = probe
        self.L = []
        self.mode = mode
        self.exact = exact
        self.stamps = stamps
        self.uid = 0
    def A(self, s):
        for line in s.split("\n"):
            self.L.append(line)
    def label(self, base):
        self.uid += 1
        return "%s_%d" % (base, self.uid)

    def cstamp(self, idx):
        if not self.stamps: return
        self.A("s_memtime s[76:77]\ns_waitcnt lgkmcnt(0)\ns_mov_b32 s%d, s76" % (80 + idx))

    def stamp(self, idx):
        if self.probe is not None:
            if idx != self.probe: return
        elif not self.stamps: return
        self.A("s_memrealtime s[76:77]\ns_waitcnt lgkmcnt(0)\ns_mov_b32 s%d, s76" % (80 + idx))

    def setup(self, endlabel):
        A = self.A
        A("s_cmp_ge_u32 s2, 256\ns_cbranch_scc1 %s" % endlabel)
        A("s_load_dwordx16 s[4:19], s[0:1], 0\ns_load_dwordx8 s[20:27], s[0:1], 64\ns_load_dwordx4 s[28:31], s[0:1], 96")
        A("v_lshrrev_b32 v1, 6, v0\nv_and_b32 v%d, 63, v0" % V_LANE)
        A("s_and_b32 s%d, s2, 7\ns_lshr_b32 s%d, s2, 3" % (S_H, S_I))
        A("v_readfirstlane_b32 s%d, v1" % S_W)
        A("s_mov_b32 s%d, 0x%08x\ns_mov_b32 s%d, 0x%08x" % (S_C, f32bits(CSCALE), S_C + 1, f32bits(CSCALE)))
        A("s_mov_b32 s%d, 0x%08x" % (S_THR, f32bits(THRESH)))

    def sp(self, r): return "s[%d:%d]" % (r, r + 1)

    def unpack(self, dst, src):
        self.A("v_lshlrev_b32 v%d, 16, v%d\nv_and_b32 v%d, 0xffff0000, v%d" % (dst, src, dst + 1, src))
    def round_pair(self, r):
        self.A("v_cvt_pk_bf16_f32 v%d, v%d, v%d" % (r + 1, r, r + 1))
        self.A("v_lshlrev_b32 v%d, 16, v%d\nv_and_b32 v%d, 0xffff0000, v%d" % (r, r + 1, r + 1, r + 1))
    def int_to_f32(self, regs, tmp):
        A = self.A
        for r in regs: A("v_cvt_f32_i32 v%d, v%d" % (r, r))
        A("v_max3_f32 v%d, |v%d|, |v%d|, 0" % (tmp, regs[0], regs[1]))
        for k in range(2, len(regs), 2):
            A("v_max3_f32 v%d, |v%d|, |v%d|, v%d" % (tmp, regs[k], regs[k + 1], tmp))
        lab = self.label("L_small")
        A("v_cmp_lt_f32 vcc, 0x43800000, v%d" % tmp)
        A("s_cbranch_vccz %s" % lab)
        for k in range(0, len(regs), 2): self.round_pair(regs[k])
        A("%s:" % lab)
    def unpack_tab(self, dst, src, scale):
        for k in range(16): self.unpack(dst + 2 * k, src + k)
        if scale:
            for k in range(16):
                self.A("v_pk_mul_f32 v[%d:%d], v[%d:%d], s[%d:%d]" % (dst + 2 * k, dst + 2 * k + 1, dst + 2 * k, dst + 2 * k + 1, S_C, S_C + 1))
    def rope(self, x1, x2, tab, tb, out1, out2):
        A = self.A
        P = lambda r: "v[%d:%d]" % (r, r + 1)
        for p in range(4):
            a, b = x1 + 2 * p, x2 + 2 * p
            t, u = tb, tb + 2
            A("v_pk_mul_f32 %s, %s, %s" % (P(t), P(a), P(tab + 2 * p)))
            A("v_pk_mul_f32 %s, %s, %s" % (P(u), P(b), P(tab + 8 + 2 * p)))
            A("v_pk_fma_f32 %s, %s, %s, %s neg_lo:[1,0,0] neg_hi:[1,0,0]" % (P(t), P(b), P(tab + 16 + 2 * p), P(t)))
            A("v_pk_fma_f32 %s, %s, %s, %s" % (P(u), P(a), P(tab + 24 + 2 * p), P(u)))
            A("v_cvt_pk_bf16_f32 v%d, v%d, v%d" % (out1 + p, t, t + 1))
            A("v_cvt_pk_bf16_f32 v%d, v%d, v%d" % (out2 + p, u, u + 1))
    def k_wave(self, st):
        A = self.A
        ln = V_LANE
        P = lambda r: "v[%d:%d]" % (r, r + 1)
        AQ, AS, AO = 16, 20, 24
        VT, LW, LR = 28, 29, 30
        RT, UT, RK, TB = 32, 48, 80, 160
        A("s_lshl_b32 s%d, s2, 3\ns_bfe_u32 s%d, s2, 0x10002" % (S_T0, S_BP))
        A("v_lshrrev_b32 v8, 3, v%d\nv_and_b32 v9, 7, v%d\nv_add_u32 v10, s%d, v8" % (ln, ln, S_T0))
        A("v_lshlrev_b32 v%d, 8, v10\nv_lshl_add_u32 v%d, v9, 4, v%d" % (VT, VT, VT))
        A("s_lshl_b32 s%d, s%d, 20\nv_lshlrev_b32 v%d, 1, v%d\nv_add_u32 v%d, s%d, v%d" % (S_T1, S_BP, AQ, VT, AQ, S_T1, AQ))
        A("s_lshl_b32 s%d, s%d, 12\nv_lshlrev_b32 v%d, 1, v10\nv_add_u32 v%d, s%d, v%d" % (S_T2, S_BP, AS, AS, S_T2, AS))
        for u in range(1, 4):
            A("v_add_u32 v%d, 0x%x, v%d\nv_add_u32 v%d, 0x%x, v%d" % (AQ + u, u << 21, AQ, AS + u, u << 13, AS))
        A("s_waitcnt lgkmcnt(0)")
        self.epoch_load()
        def loads():
            for u in range(4):
                rb = RK + 20 * u
                for k, off in enumerate((0, 16, 256, 272)):
                    A("global_load_dwordx4 v[%d:%d], v%d, %s offset:%d nt" % (rb + 4 * k, rb + 4 * k + 3, AQ + u, self.sp(S_QK), off))
                A("global_load_ushort v%d, v%d, %s" % (rb + 16, AS + u, self.sp(S_KS)))
                A("global_load_ushort v%d, v%d, %s" % (rb + 17, AS + u, self.sp(S_KZ)))
            return 24
        for k, (sr, off) in enumerate(((S_KC, 0), (S_KC, 128), (S_KSN, 0), (S_KSN, 128))):
            A("global_load_dwordx4 v[%d:%d], v%d, %s offset:%d nt" % (RT + 4 * k, RT + 4 * k + 3, VT, self.sp(sr), off))
        n = loads()
        A("v_mul_u32_u24 v%d, 144, v9\nv_lshl_add_u32 v%d, v8, 4, v%d" % (LW, LW, LW))
        A("v_mul_u32_u24 v%d, 144, v8\nv_lshl_add_u32 v%d, v9, 4, v%d" % (LR, LR, LR))
        A("s_lshr_b32 s%d, s2, 2\ns_lshl_b32 s%d, s%d, 14\ns_add_u32 s%d, s%d, s%d\ns_and_b32 s%d, s2, 3\ns_lshl_b32 s%d, s%d, 7\ns_add_u32 s%d, s%d, s%d" %
          (S_T0, S_T0, S_T0, S_T0, S_T0, S_T1, S_T2, S_T2, S_T2, S_T0, S_T0, S_T2))
        A("v_lshlrev_b32 v%d, 10, v8\nv_lshl_add_u32 v%d, v9, 4, v%d\nv_add_u32 v%d, s%d, v%d" % (AO, AO, AO, AO, S_T0, AO))
        for u in range(1, 4): A("v_add_u32 v%d, 0x%x, v%d" % (AO + u, u << 21, AO))
        A("s_lshl_b32 s%d, s%d, 11\ns_lshr_b32 s%d, s2, 6\ns_lshl_b32 s%d, s%d, 9\ns_add_u32 s%d, s%d, s%d" % (S_T0, S_BP, S_T1, S_T1, S_T1, S_T0, S_T0, S_T1))
        A("s_bfe_u32 s%d, s2, 0x30003\ns_lshl_b32 s%d, s%d, 5\ns_add_u32 s%d, s%d, s%d" % (S_T1, S_T1, S_T1, S_T0, S_T0, S_T1))
        A("s_and_b32 s%d, s2, 3\ns_lshl_b32 s%d, s%d, 2\ns_add_u32 s%d, s%d, s%d\ns_add_u32 s%d, s%d, %d" % (S_T1, S_T1, S_T1, S_T0, S_T0, S_T1, S_T0, S_T0, WS_FLAG))
        A("v_lshlrev_b32 v%d, 12, v%d\nv_add_u32 v%d, s%d, v%d" % (V_FA, ln, V_FA, S_T0, V_FA))
        A("s_mov_b64 s[%d:%d], 15\ns_mov_b32 s%d, 0x900\ns_mov_b32 s%d, 0" % (S_FM, S_FM + 1, S_FX, S_G))
        A("s_waitcnt vmcnt(%d)" % n)
        self.unpack_tab(UT, RT, False)
        A("s_waitcnt vmcnt(0) lgkmcnt(0)\ns_barrier")
        self.tag()
        self.stamp(1)
        A("L_kstage:")
        for u in range(4):
            rb = RK + 20 * u
            sc, z = rb + 16, rb + 17
            A("s_waitcnt vmcnt(%d)" % (6 * (3 - u) + 1))
            self.int_to_f32(list(range(rb, rb + 16)), TB)
            A("v_lshlrev_b32 v%d, 16, v%d\nv_lshlrev_b32 v%d, 16, v%d" % (sc, sc, z, z))
            A("v_mul_f32 v%d, v%d, v%d" % (z, z, sc))
            for p in range(8):
                r = rb + 2 * p
                A("v_pk_fma_f32 %s, %s, %s, %s op_sel:[0,0,1] op_sel_hi:[1,0,1] neg_lo:[0,0,1] neg_hi:[0,0,1]" % (P(r), P(r), P(sc), P(sc)))
            o = TB + 4 + 8 * (u & 1)
            self.rope(rb, rb + 8, UT, TB, o, o + 4)
            A("ds_write_b128 v%d, v[%d:%d] offset:%d" % (LW, o, o + 3, L_KT + u * 2304))
            A("ds_write_b128 v%d, v[%d:%d] offset:%d" % (LW, o + 4, o + 7, L_KT + u * 2304 + 1152))
        A("s_waitcnt lgkmcnt(0)")
        OB = TB + 20
        for u in range(4):
            A("ds_read_b128 v[%d:%d], v%d offset:%d" % (OB + 8 * u, OB + 8 * u + 3, LR, L_KT + u * 2304))
            A("ds_read_b128 v[%d:%d], v%d offset:%d" % (OB + 8 * u + 4, OB + 8 * u + 7, LR, L_KT + u * 2304 + 1152))
        for u in range(4):
            A("s_waitcnt lgkmcnt(%d)" % (6 - 2 * u))
            A("global_store_dwordx4 v%d, v[%d:%d], %s %s" % (AO + u, OB + 8 * u, OB + 8 * u + 3, self.sp(S_WS), st))
            A("global_store_dwordx4 v%d, v[%d:%d], %s offset:512 %s" % (AO + u, OB + 8 * u + 4, OB + 8 * u + 7, self.sp(S_WS), st))
        A("s_cmp_lg_u32 s%d, 0\ns_cbranch_scc1 L_p1done" % S_G)
        self.stamp(13)
        for u in range(4):
            A("v_xor_b32 v%d, 0x100000, v%d\nv_xor_b32 v%d, 0x1000, v%d\nv_xor_b32 v%d, 0x100000, v%d" % (AQ + u, AQ + u, AS + u, AS + u, AO + u, AO + u))
        n = loads()
        A("s_mov_b32 s%d, 1" % S_G)
        A("s_waitcnt vmcnt(%d)" % n)
        self.flag_store()
        self.stamp(2)
        A("s_branch L_kstage")

    def v_wave(self, st):
        A = self.A
        ln = V_LANE
        P = lambda r: "v[%d:%d]" % (r, r + 1)
        AV, AS, AO = 16, 18, 19
        RX, RS, TB = 32, 96, 112
        A("L_vwave:")
        A("s_lshl_b32 s%d, s%d, 6\ns_and_b32 s%d, s%d, 1\ns_lshl_b32 s%d, s%d, 5\ns_add_u32 s%d, s%d, s%d" % (S_T0, S_I, S_T1, S_H, S_T1, S_T1, S_T0, S_T0, S_T1))
        A("v_lshrrev_b32 v8, 5, v%d\nv_lshlrev_b32 v8, 2, v8\nv_add_u32 v8, s%d, v8\nv_and_b32 v9, 31, v%d" % (ln, S_T0, ln))
        A("s_lshl_b32 s%d, s%d, 20\nv_lshlrev_b32 v10, 9, v8\nv_lshl_add_u32 v10, v9, 4, v10\nv_add_u32 v10, s%d, v10" % (S_T2, S_H, S_T2))
        A("v_add_u32 v%d, 2560, v10\nv_add_u32 v%d, %d, v10" % (AV, AV + 1, 2560 + 8192))
        A("s_lshl_b32 s%d, s%d, 12\nv_lshlrev_b32 v%d, 1, v8\nv_add_u32 v%d, s%d, v%d" % (S_T3, S_H, AS, AS, S_T3, AS))
        A("s_waitcnt lgkmcnt(0)")
        self.epoch_load()
        def loads():
            for k2 in range(2):
                for j in range(8):
                    off = (8 * (j >> 2) + (j & 3)) * 512 - 2560
                    r = RX + 32 * k2 + 4 * j
                    A("global_load_dwordx4 v[%d:%d], v%d, %s offset:%d nt" % (r, r + 3, AV + k2, self.sp(S_QV), off))
                for q, sr in enumerate((S_VS, S_VZ)):
                    for hf in range(2):
                        r = RS + 8 * k2 + 4 * q + 2 * hf
                        A("global_load_dwordx2 v[%d:%d], v%d, %s offset:%d" % (r, r + 1, AS, self.sp(sr), 32 * k2 + 16 * hf))
            return 24
        n = loads()
        A("s_lshl_b32 s%d, s%d, 9\ns_add_u32 s%d, s%d, s%d\ns_add_u32 s%d, s%d, 12288" % (S_T0, S_T0, S_T0, S_T0, S_T2, S_T0, S_T0))
        A("v_lshlrev_b32 v%d, 4, v%d\nv_add_u32 v%d, s%d, v%d" % (AO, ln, AO, S_T0, AO))
        A("s_lshl_b32 s%d, s%d, 11\ns_lshr_b32 s%d, s%d, 3\ns_lshl_b32 s%d, s%d, 9\ns_add_u32 s%d, s%d, s%d" % (S_T0, S_H, S_T1, S_I, S_T1, S_T1, S_T0, S_T0, S_T1))
        A("s_and_b32 s%d, s%d, 7\ns_lshl_b32 s%d, s%d, 5\ns_add_u32 s%d, s%d, s%d\ns_add_u32 s%d, s%d, %d" % (S_T1, S_I, S_T1, S_T1, S_T0, S_T0, S_T1, S_T0, S_T0, WS_FLAG + 16))
        A("v_mov_b32 v%d, s%d" % (V_FA, S_T0))
        A("s_mov_b64 s[%d:%d], 1\ns_mov_b32 s%d, 0x100\ns_mov_b32 s%d, 0" % (S_FM, S_FM + 1, S_FX, S_G))
        A("s_waitcnt vmcnt(0) lgkmcnt(0)\ns_barrier")
        self.tag()
        self.stamp(1)
        A("L_vstage:")
        for k2 in range(2):
            x = RX + 32 * k2
            A("s_waitcnt vmcnt(%d)" % (13 if k2 == 0 else 5))
            self.int_to_f32(list(range(x, x + 32)), TB)
            sc, nz = TB, TB + 8
            for p in range(4):
                self.unpack(sc + 2 * p, RS + 8 * k2 + p)
                self.unpack(nz + 2 * p, RS + 8 * k2 + 4 + p)
            for p in range(4):
                A("v_pk_mul_f32 %s, %s, %s" % (P(nz + 2 * p), P(nz + 2 * p), P(sc + 2 * p)))
            for j in range(8):
                o = j & 1
                for hf in range(2):
                    r = x + 4 * j + 2 * hf
                    A("v_pk_fma_f32 %s, %s, %s, %s op_sel:[0,%d,%d] op_sel_hi:[1,%d,%d] neg_lo:[0,0,1] neg_hi:[0,0,1]" %
                      (P(r), P(r), P(sc + (j & ~1)), P(nz + (j & ~1)), o, o, o, o))
            for t in range(4):
                o = TB + 16 + 16 * k2 + 4 * t
                for jj in range(4):
                    A("v_cvt_pk_bf16_f32 v%d, v%d, v%d" % (o + jj, x + 8 * jj + t, x + 8 * jj + 4 + t))
                A("global_store_dwordx4 v%d, v[%d:%d], %s offset:%d %s" % (AO, o, o + 3, self.sp(S_WS), (4 * k2 + t) * 1024 - 4096, st))
        A("s_cmp_lg_u32 s%d, 0\ns_cbranch_scc1 L_p1done" % S_G)
        self.stamp(13)
        A("v_xor_b32 v10, 16384, v10\nv_add_u32 v%d, 2560, v10\nv_add_u32 v%d, %d, v10\nv_xor_b32 v%d, 64, v%d\nv_xor_b32 v%d, 16384, v%d" % (AV, AV + 1, 2560 + 8192, AS, AS, AO, AO))
        n = loads()
        A("s_mov_b32 s%d, 1" % S_G)
        A("s_waitcnt vmcnt(%d)" % n)
        self.flag_store()
        self.stamp(2)
        A("s_branch L_vstage")

    def q_wave(self):
        A = self.A
        ln = V_LANE
        AQ, AT, LW = 16, 17, 18
        RQ, UT, TB = 32, 128, 160
        A("L_qwave:")
        A("s_lshl_b32 s%d, s%d, 6\ns_and_b32 s%d, s%d, 1\ns_lshl_b32 s%d, s%d, 5\ns_add_u32 s%d, s%d, s%d" % (S_T0, S_I, S_T3, S_W, S_T1, S_T3, S_T0, S_T0, S_T1))
        A("v_lshrrev_b32 v8, 3, v%d\nv_and_b32 v9, 7, v%d\nv_add_u32 v10, s%d, v8" % (ln, ln, S_T0))
        A("v_lshlrev_b32 v%d, 8, v10\nv_lshl_add_u32 v%d, v9, 4, v%d\nv_add_u32 v%d, 4096, v%d" % (AT, AT, AT, AT, AT))
        A("s_lshl_b32 s%d, s%d, 19\nv_add_u32 v%d, s%d, v%d" % (S_T2, S_H, AQ, S_T2, AT))
        A("s_mul_i32 s%d, s%d, 8320\ns_add_u32 s%d, s%d, %d" % (S_T0, S_T3, S_T0, S_T0, L_Q))
        A("v_mul_u32_u24 v%d, 1040, v9\nv_lshl_add_u32 v%d, v8, 4, v%d\nv_add_u32 v%d, s%d, v%d" % (LW, LW, LW, LW, S_T0, LW))
        A("s_mov_b64 s[%d:%d], 0" % (S_FM, S_FM + 1))
        A("s_waitcnt lgkmcnt(0)")
        self.epoch_load()
        def loads():
            for u in range(4):
                b = RQ + 24 * u
                for (r, v, sr, off, m) in ((0, AQ, S_Q, 0, "nt"), (4, AQ, S_Q, 128, "nt"), (8, AT, S_QC, 0, ""), (12, AT, S_QC, 128, ""), (16, AT, S_QS, 0, ""), (20, AT, S_QS, 128, "")):
                    A("global_load_dwordx4 v[%d:%d], v%d, %s offset:%d %s" % (b + r, b + r + 3, v, self.sp(sr), 2048 * u + off - 4096, m))
        if self.qearly: loads()
        A("s_waitcnt lgkmcnt(0)\ns_barrier")
        if not self.qearly: loads()
        self.tag()
        self.stamp(1)
        for u in range(4):
            b = RQ + 24 * u
            A("s_waitcnt vmcnt(%d)" % (6 * (3 - u)))
            self.unpack_tab(UT, b + 8, False)
            x1, x2 = TB + 12, TB + 20
            for p in range(4):
                self.unpack(x1 + 2 * p, b + p); self.unpack(x2 + 2 * p, b + 4 + p)
            for p in range(8):
                A("v_pk_mul_f32 v[%d:%d], v[%d:%d], s[%d:%d]" % (x1 + 2 * p, x1 + 2 * p + 1, x1 + 2 * p, x1 + 2 * p + 1, S_C, S_C + 1))
            self.rope(x1, x2, UT, TB, b, b + 4)
            A("ds_write_b128 v%d, v[%d:%d] offset:%d" % (LW, b, b + 3, 128 * u))
            A("ds_write_b128 v%d, v[%d:%d] offset:%d" % (LW, b + 4, b + 7, 128 * u + 512))
        self.stamp(13); self.stamp(2)

    def epoch_load(self):
        self.A("s_mov_b32 s%d, %d\ns_load_dword s%d, %s, s%d" % (S_CNT, WS_EPOCH, S_TAG, self.sp(S_WS), S_CNT))
    def tag(self):
        self.A("s_add_u32 s%d, s%d, 0x9e3779b9" % (S_TAG, S_TAG))

    def flag_store(self):
        A = self.A
        A("v_mov_b32 v%d, s%d" % (V_TMP3, S_TAG))
        A("s_mov_b64 exec, s[%d:%d]" % (S_FM, S_FM + 1))
        A("global_store_dword v%d, v%d, %s sc1" % (V_FA, V_TMP3, self.sp(S_WS)))
        A("s_mov_b64 exec, -1")
        A("v_xor_b32 v%d, s%d, v%d" % (V_FA, S_FX, V_FA))

    def flag_store_b(self):
        lab = self.label("L_nofl")
        self.A("s_cmp_eq_u32 s%d, 0\ns_cbranch_scc1 %s" % (S_FM, lab))
        self.flag_store()
        self.A("%s:" % lab)

    def poll_addr(self):
        A = self.A
        ln = V_LANE
        A("s_lshl_b32 s%d, s%d, 11\ns_lshl_b32 s%d, s%d, 9\ns_add_u32 s%d, s%d, s%d\ns_add_u32 s%d, s%d, %d" % (S_T0, S_H, S_T1, S_W, S_T0, S_T0, S_T1, S_T0, S_T0, WS_FLAG))
        A("v_and_b32 v%d, 7, v%d\nv_min_u32 v%d, 4, v%d\nv_and_b32 v%d, 0x38, v%d\nv_add_u32 v%d, v%d, v%d" % (V_PA, ln, V_PA, V_PA, V_PB, ln, V_PA, V_PA, V_PB))
        A("v_lshlrev_b32 v%d, 2, v%d\nv_add_u32 v%d, s%d, v%d\nv_add_u32 v%d, 256, v%d" % (V_PA, V_PA, V_PA, S_T0, V_PA, V_PB, V_PA))

    def poll(self, regs, after_first=None):
        A = self.A
        lab = self.label("L_poll"); done = self.label("L_polled")
        A("s_mov_b32 s%d, 0" % S_CNT)
        if after_first:
            for k, r in enumerate(regs):
                A("global_load_dword v%d, v%d, %s sc1" % (V_TMP0 + k, r, self.sp(S_WS)))
            A("s_waitcnt vmcnt(0)")
            after_first()
            chk = self.label("L_pchk")
            A("s_branch %s" % chk)
        A("%s:" % lab)
        if self.sleep: A("s_sleep %d" % self.sleep)
        for k, r in enumerate(regs):
            A("global_load_dword v%d, v%d, %s sc1" % (V_TMP0 + k, r, self.sp(S_WS)))
        A("s_waitcnt vmcnt(0)")
        if after_first: A("%s:" % chk)
        A("s_add_u32 s%d, s%d, 1" % (S_CNT, S_CNT))
        for k in range(len(regs)): A("v_xor_b32 v%d, s%d, v%d" % (V_TMP0 + k, S_TAG, V_TMP0 + k))
        for k in range(1, len(regs)): A("v_or_b32 v%d, v%d, v%d" % (V_TMP0, V_TMP0, V_TMP0 + k))
        A("v_cmp_ne_u32 vcc, 0, v%d" % V_TMP0)
        A("s_cbranch_vccz %s" % done)
        A("s_cmp_lt_u32 s%d, 0x8000\ns_cbranch_scc1 %s" % (S_CNT, lab))
        A("%s:" % done)

    def mfma_qk(self, x, ks, kset, first_c=None):
        s = V_S[x]; k = V_K[kset] + 4 * ks; q = A_Q(x, ks)
        if ks == 0:
            c = first_c if first_c is not None else "v[%d:%d]" % (V_NM[x], V_NM[x] + 15)
        else:
            c = "v[%d:%d]" % (s, s + 15)
        return "v_mfma_f32_32x32x16_bf16 v[%d:%d], v[%d:%d], a[%d:%d], %s" % (s, s + 15, k, k + 3, q, q + 3, c)
    def mfma_pv(self, x, idx, vset, first=False):
        ks2, t = idx >> 2, idx & 3
        o = A_O(x, t); v = V_V[vset] + 4 * idx; p = V_P[x] + 4 * ks2
        c = "0" if (first and ks2 == 0) else "a[%d:%d]" % (o, o + 15)
        return "v_mfma_f32_32x32x16_bf16 a[%d:%d], v[%d:%d], v[%d:%d], %s" % (o, o + 15, v, v + 3, p, p + 3, c)
    def ld_k(self, ks, kset):
        r = V_K[kset] + 4 * ks
        return "buffer_load_dwordx4 v[%d:%d], v%d, s[%d:%d], s%d offen offset:%d %s" % (r, r + 3, V_KOFF0 + (ks >> 2), S_SRD, S_SRD + 3, S_OFF, (ks & 3) * 1024, self.ldmod)
    def ld_v(self, idx, vset):
        r = V_V[vset] + 4 * idx
        return "buffer_load_dwordx4 v[%d:%d], v%d, s[%d:%d], s%d offen offset:%d %s" % (r, r + 3, V_VOFF0 + (idx >> 2), S_SRD, S_SRD + 3, S_OFF, (idx & 3) * 1024, self.ldmod)
    def op_e(self, x, r): return "v_exp_f32 v%d, v%d" % (V_E[x] + r, V_S[x] + r)
    def op_a(self, x, r):
        if r == 1: return "v_add_f32 v%d, v%d, v%d" % (V_T[x], V_E[x], V_E[x] + 1)
        return "v_add_f32 v%d, v%d, v%d" % (V_T[x], V_T[x], V_E[x] + r)
    def op_c(self, x, k): return "v_cvt_pk_bf16_f32 v%d, v%d, v%d" % (V_P[x] + k, V_E[x] + 2 * k, V_E[x] + 2 * k + 1)
    def op_f(self, x): return "v_add_f32 v%d, v%d, v%d" % (V_L[x], V_L[x], V_T[x])
    def op_chk(self, x):
        stub = self.label("L_slow_%s" % x); ret = self.label("L_ret_%s" % x)
        self.stubs.append((stub, ret, x))
        return ["v_cmp_nge_f32 vcc, s%d, v%d" % (S_THR, V_T[x]), "s_cbranch_vccnz %s" % stub, "%s:" % ret]

    PERIOD = {
        8:  "F L o4",
        9:  "L o5 o6",
        10: "o7 e0 e1 S",
        11: "L e2",
        12: "a1 e3 a2 c0 S",
        13: "L e4",
        14: "a3 e5 a4 c1 W1",
        15: "L e6",
        16: "a5 e7 a6 c2",
        17: "L e8",
        18: "a7 e9 a8 c3",
        19: "L e10",
        20: "a9 e11 a10 W2",
        21: "L e12",
        22: "e13 a11 e14 a12",
        23: "e15 a13 a14 a15 K",
    }

    def iteration(self, jp, loads=True, skip_b_head=False, kloads_tail=True, last=False):
        out = []
        kq = (jp + 1) & 1
        for p in range(32):
            if p < 8: out.append(self.mfma_qk('a', p, kq))
            elif p < 16: out.append(self.mfma_pv('b', p - 8, jp))
            elif p < 24: out.append(self.mfma_qk('b', p - 16, kq))
            else: out.append(self.mfma_pv('a', p - 24, kq))
            if p < 8: x, u = 'b', p + 16
            elif p < 24: x, u = 'a', p
            else: x, u = 'b', p - 16
            y = 'a' if x == 'b' else 'b'
            for tok in self.PERIOD[u].split():
                c = tok[0]
                if c == 'L':
                    li = sum(self.PERIOD[v].split().count('L') for v in range(8, u)) + 0
                    if not loads: continue
                    if x == 'a': out.append(self.ld_v(li, jp))
                    elif p >= 24: out.append(self.ld_k(li, kq))
                    else: out.append(self.ld_k(li, jp))
                elif c == 'e': out.append(self.op_e(x, int(tok[1:])))
                elif c == 'a': out.append(self.op_a(x, int(tok[1:])))
                elif c == 'c': out.append(self.op_c(x, int(tok[1:])))
                elif c == 'o': out.append(self.op_c(y, int(tok[1:])))
                elif c == 'F': out.append(self.op_f(y))
                elif c == 'K': out += self.op_chk(x)
                elif c == 'W':
                    if tok == "W2" and x == 'a': out.append("@WAIT_V")
                    if tok == "W1" and x == 'b': out.append("@WAIT_K")
                elif c == 'S':
                    pass
        return out

    def slow_sub(self, x):
        A = self.A
        s, e, nm = V_S[x], V_E[x], V_NM[x]
        t0, t1 = V_TMP0, V_TMP1
        A("L_sub_%s:" % x)
        A("s_nop 7")
        A("v_max3_f32 v%d, v%d, v%d, v%d" % (t0, s, s + 1, s + 2))
        for r in range(3, 15, 2): A("v_max3_f32 v%d, v%d, v%d, v%d" % (t0, s + r, s + r + 1, t0))
        A("v_max3_f32 v%d, v%d, v%d, 0" % (t0, s + 15, t0))
        A("v_mov_b32 v%d, v%d\ns_nop 1\nv_permlane32_swap_b32 v%d, v%d\ns_nop 1\nv_max_f32 v%d, v%d, v%d" % (t1, t0, t0, t1, t0, t0, t1))
        A("v_exp_f32 v%d, -v%d" % (t1, t0))
        for r in range(16):
            A("v_sub_f32 v%d, v%d, v%d" % (s + r, s + r, t0))
            A("v_sub_f32 v%d, v%d, v%d" % (nm + r, nm + r, t0))
        A("v_mul_f32 v%d, v%d, v%d" % (V_L[x], V_L[x], t1))
        for t in range(4):
            for r in range(16):
                a = A_O(x, t) + r
                A("v_accvgpr_read_b32 v%d, a%d\nv_mul_f32 v%d, v%d, v%d\nv_accvgpr_write_b32 a%d, v%d" % (V_TMP2, a, V_TMP2, V_TMP2, t1, a, V_TMP2))
        for r in range(16): A(self.op_e(x, r))
        A("s_nop 0")
        for r in range(1, 16): A(self.op_a(x, r))
        for k in range(8): A(self.op_c(x, k))
        A("s_nop 3")
        A("s_setpc_b64 s[%d:%d]" % (S_RET, S_RET + 1))

    def first_fix(self, x):
        s, nm = V_S[x], V_NM[x]
        t0, t1 = (V_TMP0, V_TMP1) if x == 'a' else (V_TMP2, V_TMP3)
        o = []
        o.append("v_max3_f32 v%d, v%d, v%d, v%d" % (t0, s, s + 1, s + 2))
        for r in range(3, 15, 2): o.append("v_max3_f32 v%d, v%d, v%d, v%d" % (t0, s + r, s + r + 1, t0))
        o.append("v_max_f32 v%d, v%d, v%d" % (t0, s + 15, t0))
        o += ["v_mov_b32 v%d, v%d" % (t1, t0), "s_nop 1", "v_permlane32_swap_b32 v%d, v%d" % (t0, t1), "s_nop 1", "v_max_f32 v%d, v%d, v%d" % (t0, t0, t1)]
        for r in range(16): o.append("v_sub_f32 v%d, v%d, v%d" % (s + r, s + r, t0))
        for r in range(16): o.append("v_sub_f32 v%d, 0, v%d" % (nm + r, t0))
        return o

    def next_off(self):
        return ["s_add_u32 m0, m0, 1", "s_nop 0", "s_movrels_b32 s%d, s%d" % (S_OFF, S_TBL)]

    def main(self):
        A = self.A
        self.stubs = []
        ln = V_LANE
        A("v_lshlrev_b32 v%d, 4, v%d\nv_add_u32 v%d, 4096, v%d\nv_add_u32 v%d, 8192, v%d\nv_add_u32 v%d, 12288, v%d" %
          (V_KOFF0, ln, V_KOFF1, V_KOFF0, V_VOFF0, V_KOFF0, V_VOFF1, V_KOFF0))
        A("s_mov_b32 s%d, s%d\ns_mov_b32 s%d, s%d\ns_mov_b32 s%d, 0x800000\ns_mov_b32 s%d, 0x20000" % (S_SRD, S_WS, S_SRD + 1, S_WS + 1, S_SRD + 2, S_SRD + 3))
        A("s_lshl_b32 s%d, s%d, 20\ns_lshl_b32 s%d, s%d, 18\ns_add_u32 s%d, s%d, s%d" % (S_T0, S_H, S_T1, S_W, S_T0, S_T0, S_T1))
        A("s_and_b32 s%d, s%d, 1\ns_lshl_b32 s%d, s%d, 14\ns_add_u32 s%d, s%d, s%d" % (S_T1, S_H, S_T1, S_T1, S_T0, S_T0, S_T1))
        for n in range(8):
            A("s_add_u32 s%d, s%d, %d\ns_and_b32 s%d, s%d, 7\ns_lshl_b32 s%d, s%d, 15\ns_add_u32 s%d, s%d, s%d\ns_xor_b32 s%d, s%d, 16384" %
              (S_T1, S_I, n, S_T1, S_T1, S_T1, S_T1, S_TBL + n, S_T1, S_T0, S_TBL + 8 + n, S_TBL + n))
        A("s_mov_b32 s%d, s%d" % (S_TBL + 16, S_TBL))
        self.poll([V_PA], after_first=lambda: (self.flag_store_b(), self.stamp(15)))
        self.stamp(3)
        A("s_mov_b32 s%d, s%d" % (S_OFF, S_TBL))
        for k in range(8): A(self.ld_k(k, 0))
        for k in range(8): A(self.ld_v(k, 0))
        A("s_mov_b32 s%d, s%d" % (S_OFF, S_TBL + 1))
        for k in range(8): A(self.ld_k(k, 1))
        for k in range(8): A(self.ld_v(k, 1))
        A("s_mov_b32 m0, 2\ns_mov_b32 s%d, s%d" % (S_OFF, S_TBL + 2))
        A("v_mov_b32 v%d, 0\nv_mov_b32 v%d, 0" % (V_L['a'], V_L['b']))
        for t in range(4):
            for r in range(16): A("v_accvgpr_write_b32 a%d, 0" % (A_O('b', t) + r))
        A("s_waitcnt vmcnt(24) lgkmcnt(0)")
        self.stamp(4)
        for ks in range(8): A(self.mfma_qk('a', ks, 0, first_c="0"))
        fa = self.first_fix('a')
        sa = [self.op_e('a', r) for r in range(16)]
        seq = fa + sa[:2]
        for r in range(2, 16):
            seq.append(sa[r]); seq.append(self.op_a('a', r - 1))
        seq += [self.op_c('a', 0), self.op_a('a', 15)] + [self.op_c('a', k) for k in range(1, 4)]
        per = 6
        pos = 0
        for ks in range(8):
            A(self.mfma_qk('b', ks, 0, first_c="0"))
            if ks >= 2:
                for s in seq[pos:pos + per]: A(s)
                pos += per
        for s in seq[pos:]: A(s)
        fb = self.first_fix('b')
        A("s_waitcnt vmcnt(16)")
        it = self.iteration(1)
        idx = [k for k, s in enumerate(it) if s.startswith("v_mfma")]
        tail = it[idx[24]:]
        self.stubs = [st for st in self.stubs if any(s.endswith(' '+st[0]) for s in tail)]
        for s in fb: A(s)
        nm = 0
        for s in tail:
            if s.startswith("v_mfma"):
                s = self.mfma_pv('a', nm, 0, first=True); nm += 1
            if s == "@WAIT_K": s = "s_waitcnt vmcnt(%d)" % self.wk
            A(s)
        self.stamp(5)
        self.cstamp(8)
        A("s_mov_b32 s%d, 4" % S_LIM)
        A(".p2align 6")
        A("L_loop:")
        for jp in range(2):
            it = self.iteration(jp)
            self.emit_iter(it)
        A("s_cmp_lt_u32 m0, s%d\ns_cbranch_scc1 L_loop" % S_LIM)
        A("s_cmp_lg_u32 s%d, 4\ns_cbranch_scc1 L_disp2" % S_LIM)
        A("global_load_dword v%d, v%d, %s sc1" % (V_FA, V_PB, self.sp(S_WS)))
        A("s_mov_b32 s%d, 6\ns_branch L_loop" % S_LIM)
        A("L_disp2:")
        A("s_cmp_lg_u32 s%d, 6\ns_cbranch_scc1 L_tail" % S_LIM)
        A("s_mov_b32 s%d, 16" % S_LIM)
        A("v_cmp_ne_u32 vcc, s%d, v%d\ns_cbranch_vccz L_loop" % (S_TAG, V_FA))
        self.poll([V_PB])
        A("s_branch L_loop")
        A("L_tail:")
        it = self.iteration(0, loads=False)
        for s in it:
            if s in ("@WAIT_V", "@WAIT_K"): s = "s_waitcnt vmcnt(0)"
            A(s)
        it = self.iteration(1, loads=False)
        idx = [k for k, s in enumerate(it) if s.startswith("v_mfma")]
        keep = it[:idx[16]]
        drop = it[idx[16]:]
        first = True
        used = []
        nm = 0
        for k, s in enumerate(keep):
            if s.startswith("v_mfma") and k < idx[8]: continue
            if k >= idx[8] and not s.startswith("v_mfma"):
                isb = (s == self.op_f('b')) or any(s == self.op_c('b', c) for c in range(8))
                if not isb: continue
            if s.startswith("@"): continue
            if s.startswith("v_exp"):
                A(s); A("s_nop 0"); used.append(s); continue
            if s.startswith("v_mfma"):
                if nm in (0, 4): A("s_nop 1")
                nm += 1
            A(s); used.append(s)
        self.stubs = [st for st in self.stubs if any(s.endswith(' '+st[0]) for s in self.L)]
        self.stamp(6)
        self.cstamp(9)

    def emit_iter(self, it):
        A = self.A
        lastv = max(k for k, s in enumerate(it) if s.startswith("buffer_load") and (" v%d," % V_VOFF1) in s)
        for k, s in enumerate(it):
            if s == "@WAIT_V": s = "s_waitcnt vmcnt(%d)" % self.wv
            if s == "@WAIT_K": s = "s_waitcnt vmcnt(%d)" % self.wk
            if 'noload' in self.abl and s.startswith("buffer_load"): s = "s_nop 0"
            if 'novalu' in self.abl and (s.startswith("v_exp") or s.startswith("v_add") or s.startswith("v_cvt")): s = "s_nop 0"
            if 'nomfma' in self.abl and s.startswith("v_mfma"): s = "s_nop 1"
            if 'halfload' in self.abl and s.startswith("buffer_load") and ("offset:1024" in s or "offset:3072" in s): s = "s_nop 0"
            A(s)
            if k == lastv - 3: A("s_add_u32 m0, m0, 1")
            if k == lastv + 2: A("s_movrels_b32 s%d, s%d" % (S_OFF, S_TBL))

    def compute_waits(self):
        self.stubs = []
        it = self.iteration(0)
        seq = it + it + it
        n = len(it)
        isld = lambda s: s.startswith("buffer_load")
        isv = lambda s: isld(s) and ((" v%d," % V_VOFF0) in s or (" v%d," % V_VOFF1) in s)
        kv = 2 * n + it.index("@WAIT_V")
        lastv = max(k for k in range(n, 2 * n) if isv(seq[k]))
        self.wv = sum(1 for k in range(lastv + 1, kv) if isld(seq[k]))
        kk = 2 * n + it.index("@WAIT_K")
        idx = [k for k, s in enumerate(it) if s.startswith("v_mfma")]
        lastk = 2 * n + max(k for k in range(0, idx[8]) if isld(it[k]))
        self.wk = sum(1 for k in range(lastk + 1, kk) if isld(seq[k]))
        self.uid = 0

    def epilogue(self):
        A = self.A
        ln = V_LANE
        A("; ---- epilogue ----")
        for x in 'ab':
            l = V_L[x]; t = V_T[x]
            A("v_mov_b32 v%d, v%d\ns_nop 1\nv_permlane32_swap_b32 v%d, v%d\ns_nop 1\nv_add_f32 v%d, v%d, v%d" % (t, l, l, t, V_NM[x] + 1, l, t))
        A("s_lshl_b32 s%d, s%d, 10\ns_add_u32 s%d, s%d, %d" % (S_T0, S_W, S_T0, S_T0, L_ST))
        A("v_lshlrev_b32 v6, 3, v%d\nv_add_u32 v7, s%d, v6" % (ln, S_T0))
        A("ds_write_b64 v7, v[%d:%d]" % (V_NM['a'], V_NM['a'] + 1))
        A("ds_write_b64 v7, v[%d:%d] offset:512" % (V_NM['b'], V_NM['b'] + 1))
        A("s_nop 7\ns_nop 7")
        for d in range(4):
            skip = self.label("L_skipw")
            A("s_cmp_eq_u32 s%d, %d\ns_cbranch_scc1 %s" % (S_W, d, skip))
            A("s_sub_u32 s%d, s%d, %d\ns_and_b32 s%d, s%d, 3\ns_lshl_b32 s%d, s%d, 13\ns_add_u32 s%d, s%d, %d" %
              (S_T0, S_W, d + 1, S_T0, S_T0, S_T0, S_T0, S_T0, S_T0, L_O + d * 3 * 8192))
            A("v_add_u32 v7, s%d, v%d" % (S_T0, V_KOFF0))
            idx = 0
            for x in 'ab':
                for t in range(4):
                    a = A_O(x, t) + 4 * d
                    A("ds_write_b128 v7, a[%d:%d] offset:%d" % (a, a + 3, idx * 1024)); idx += 1
            A("%s:" % skip)
        own = 128
        done = self.label("L_own")
        for d in range(4):
            nxt = self.label("L_ownn")
            if d < 3: A("s_cmp_lg_u32 s%d, %d\ns_cbranch_scc1 %s" % (S_W, d, nxt))
            idx = 0
            for x in 'ab':
                for t in range(4):
                    a = A_O(x, t) + 4 * d
                    for i in range(4): A("v_accvgpr_read_b32 v%d, a%d" % (own + idx * 4 + i, a + i))
                    idx += 1
            if d < 3: A("s_branch %s\n%s:" % (done, nxt))
        A("%s:" % done)
        A("s_waitcnt lgkmcnt(0)\ns_barrier")
        st = 16
        for k in range(3):
            A("s_add_u32 s%d, s%d, %d\ns_and_b32 s%d, s%d, 3\ns_lshl_b32 s%d, s%d, 10\ns_add_u32 s%d, s%d, %d" % (S_T0, S_W, k + 1, S_T0, S_T0, S_T0, S_T0, S_T0, S_T0, L_ST))
            A("v_add_u32 v7, s%d, v6" % S_T0)
            A("ds_read_b64 v[%d:%d], v7\nds_read_b64 v[%d:%d], v7 offset:512" % (st + 4 * k, st + 4 * k + 1, st + 4 * k + 2, st + 4 * k + 3))
        A("s_mul_i32 s%d, s%d, 24576\ns_add_u32 s%d, s%d, %d\nv_add_u32 v7, s%d, v%d" % (S_T0, S_W, S_T0, S_T0, L_O, S_T0, V_KOFF0))
        pb = 160
        for k in range(3):
            for idx in range(8):
                r = pb + (k * 8 + idx) * 4
                A("ds_read_b128 v[%d:%d], v7 offset:%d" % (r, r + 3, k * 8192 + idx * 1024))
        A("s_waitcnt lgkmcnt(15)")
        A("s_waitcnt lgkmcnt(0)")
        F = 32
        for xi, x in enumerate('ab'):
            nm0, l0 = V_NM[x], V_NM[x] + 1
            nms = [nm0] + [st + 4 * k + 2 * xi for k in range(3)]
            ls = [l0] + [st + 4 * k + 2 * xi + 1 for k in range(3)]
            mn = 40
            A("v_min3_f32 v%d, v%d, v%d, v%d\nv_min_f32 v%d, v%d, v%d" % (mn, nms[0], nms[1], nms[2], mn, mn, nms[3]))
            for s in range(4): A("v_sub_f32 v%d, v%d, v%d" % (F + 4 * xi + s, mn, nms[s]))
            for s in range(4): A("v_exp_f32 v%d, v%d" % (F + 4 * xi + s, F + 4 * xi + s))
            A("s_nop 0")
            A("v_mul_f32 v41, v%d, v%d" % (F + 4 * xi, ls[0]))
            for s in range(1, 4): A("v_fmac_f32 v41, v%d, v%d" % (F + 4 * xi + s, ls[s]))
            A("v_rcp_f32 v41, v41\ns_nop 0")
            for s in range(4): A("v_mul_f32 v%d, v%d, v41" % (F + 4 * xi + s, F + 4 * xi + s))
        for idx in range(8):
            xi = idx >> 2
            for i in range(4):
                r = own + idx * 4 + i
                A("v_mul_f32 v%d, v%d, v%d" % (r, r, F + 4 * xi))
                for k in range(3):
                    A("v_fmac_f32 v%d, v%d, v%d" % (r, pb + (k * 8 + idx) * 4 + i, F + 4 * xi + 1 + k))
        A("s_lshl_b32 s%d, s%d, 19\ns_lshl_b32 s%d, s%d, 14\ns_add_u32 s%d, s%d, s%d\ns_lshl_b32 s%d, s%d, 6\ns_add_u32 s%d, s%d, s%d" %
          (S_T0, S_H, S_T1, S_I, S_T0, S_T0, S_T1, S_T1, S_W, S_T0, S_T0, S_T1))
        A("v_and_b32 v6, 31, v%d\nv_lshrrev_b32 v7, 5, v%d\nv_lshlrev_b32 v6, 8, v6\nv_lshl_add_u32 v6, v7, 5, v6\nv_add_u32 v6, s%d, v6\nv_add_u32 v7, 8192, v6" % (ln, ln, S_T0))
        ob = 48
        for xi in range(2):
            for hf in range(2):
                o = ob + (xi * 2 + hf) * 4
                for ii in range(2):
                    i = 2 * hf + ii
                    for tp in range(2):
                        r0 = own + (xi * 4 + 2 * tp) * 4 + i
                        r1 = own + (xi * 4 + 2 * tp + 1) * 4 + i
                        A("v_cvt_pk_bf16_f32 v%d, v%d, v%d" % (o + 2 * ii + tp, r0, r1))
                A("global_store_dwordx4 v%d, v[%d:%d], s[%d:%d] offset:%d" % (6 + xi, o, o + 3, S_OUT, S_OUT + 1, 16 * hf))

    def q_frag_read(self):
        A = self.A
        A("v_lshlrev_b32 v1, 4, v%d" % V_LANE)
        for f in range(16):
            a = 128 + 4 * f
            A("ds_read_b128 a[%d:%d], v1 offset:%d" % (a, a + 3, L_Q + f * 1040))

    def dump_stamps(self):
        if not self.stamps: return
        A = self.A
        A("s_lshl_b32 s76, s2, 2\ns_add_u32 s76, s76, s%d\ns_lshl_b32 s76, s76, 6\ns_add_u32 s76, s76, %d" % (S_W, 16 << 20))
        A("v_mov_b32 v2, s76")
        A("s_mov_b64 exec, 1")
        for k in range(0, 16):
            A("v_mov_b32 v1, s%d\nglobal_store_dword v2, v1, s[%d:%d] offset:%d" % (80 + k, S_WS, S_WS + 1, 4 * k))
        A("s_mov_b64 exec, -1")

    def kd(self, name, vgpr=512, acc=256):
        return ('.p2align 6\n.amdhsa_kernel %s\n  .amdhsa_next_free_vgpr %d\n  .amdhsa_next_free_sgpr 102\n  .amdhsa_accum_offset %d\n'
                '  .amdhsa_group_segment_fixed_size 0\n  .amdhsa_kernarg_size 112\n  .amdhsa_user_sgpr_count 2\n'
                '  .amdhsa_user_sgpr_kernarg_segment_ptr 1\n  .amdhsa_system_sgpr_workgroup_id_x 1\n.end_amdhsa_kernel\n' % (name, vgpr, acc))

    def head(self, name):
        self.A(".globl %s\n.p2align 8\n.type %s,@function\n%s:" % (name, name, name))

    def build(self):
        A = self.A
        K = NAME + "_kernel"
        fused = self.mode == "fused"
        self.ldmod = "sc1" if fused else ""
        st = "sc1" if fused else ""
        self.compute_waits()
        hdr = open("cdna_kernels/%s.s.ref" % NAME).read().split("; @launch")[0]
        A(hdr.rstrip("\n"))
        if fused:
            A("; @launch grid=(256,1,1) block=(256,1,1) lds=%d" % LDS_BYTES)
        else:
            A("; @launch kernel=prep_kernel grid=(256,1,1) block=(256,1,1) lds=%d" % 9216)
            A("; @launch kernel=%s grid=(256,1,1) block=(256,1,1) lds=%d" % (K, LDS_BYTES))
        A('.amdgcn_target "amdgcn-amd-amdhsa--gfx950"\n.text')
        self.head(K)
        self.setup("L_end")
        self.stamp(0)
        self.poll_addr()
        A("s_cmp_eq_u32 s%d, 1\ns_cbranch_scc1 L_vwave\ns_cmp_ge_u32 s%d, 2\ns_cbranch_scc1 L_qwave" % (S_W, S_W))
        self.k_wave(st)
        self.v_wave(st)
        self.q_wave()
        A("L_p1done:")
        self.stamp(10)
        A("s_waitcnt lgkmcnt(0)\ns_barrier")
        self.stamp(11)
        self.q_frag_read()
        self.main()
        self.epilogue()
        if fused:
            lab = self.label("L_noep")
            A("s_cmp_lg_u32 s2, 0\ns_cbranch_scc1 %s\ns_cmp_lg_u32 s%d, 0\ns_cbranch_scc1 %s" % (lab, S_W, lab))
            A("s_mov_b32 s%d, %d" % (S_T0, WS_EPOCH))
            A("v_mov_b32 v1, s%d\nv_mov_b32 v2, s%d\ns_mov_b64 exec, 1\nglobal_store_dword v1, v2, s[%d:%d] sc1\ns_mov_b64 exec, -1" % (S_T0, S_TAG, S_WS, S_WS + 1))
            A("%s:" % lab)
        self.stamp(7)
        self.dump_stamps()
        if self.probe is not None:
            A("s_add_u32 s78, s%d, 3000\nL_spin:\ns_memrealtime s[76:77]\ns_waitcnt lgkmcnt(0)\ns_sub_u32 s79, s78, s76\ns_cmp_gt_i32 s79, 0\ns_cbranch_scc1 L_spin" % (80 + self.probe))
        A("L_end:\ns_endpgm")
        for stub, ret, x in self.stubs:
            A("%s:\ns_call_b64 s[%d:%d], L_sub_%s\ns_branch %s" % (stub, S_RET, S_RET + 1, x, ret))
        self.slow_sub('a'); self.slow_sub('b')
        A('.section .rodata,"a"')
        A(self.kd(K))
        return "\n".join(self.L) + "\n"

if __name__ == "__main__":
    ap = argparse.ArgumentParser()
    ap.add_argument("out")
    ap.add_argument("--mode", default="fused")
    ap.add_argument("--exact", action="store_true")
    ap.add_argument("--stamps", action="store_true")
    ap.add_argument("--abl", default="")
    ap.add_argument("--probe", type=int, default=None)
    ap.add_argument("--qearly", action="store_true")
    ap.add_argument("--sleep", type=int, default=0)
    a = ap.parse_args()
    g = Gen(a.mode, a.exact, a.stamps, a.abl, a.sleep, a.qearly, a.probe)
    open(a.out, "w").write(g.build())
    print("wv", g.wv, "wk", g.wk, "lines", len(g.L))
```

```python
import sys, struct, argparse
NAME = "standalone__kv_cache_quant_pre_rope_vs_post_rope__prompt"
def f32bits(x): return struct.unpack("<I", struct.pack("<f", x))[0]
CSCALE = 1.4426950408889634 * (128.0 ** -0.5)

V_FA = 0
V_KOFF0, V_KOFF1, V_VOFF0, V_VOFF1 = 1, 2, 3, 4
V_LANE, V_PA, V_PB = 5, 6, 7
V_T = {'a': 8, 'b': 9}
V_L = {'a': 10, 'b': 11}
V_TMP0, V_TMP1, V_TMP2, V_TMP3 = 12, 13, 14, 15
V_S = {'a': 16, 'b': 32}
V_NM = {'a': 48, 'b': 64}
V_E = {'a': 80, 'b': 96}
V_P = {'a': 112, 'b': 120}
V_K = [128, 160]
V_V = [192, 224]
def A_O(x, t): return ((0 if x == 'a' else 1) * 4 + t) * 16
def A_Q(x, ks): return 128 + ((0 if x == 'a' else 1) * 8 + ks) * 4
A_RK, A_RV, A_SAVE = 192, 212, 240
S_Q, S_QK, S_KS, S_KZ, S_QV, S_VS, S_VZ, S_QC, S_QS, S_KC, S_KSN, S_OUT, S_DBG, S_WS = [4 + 2 * i for i in range(14)]
S_H, S_I, S_W, S_TAG = 32, 33, 34, 35
S_T0, S_T1, S_T2, S_T3 = 36, 37, 38, 39
S_SRD = 40
S_OFF, S_THR = 44, 45
S_C = 46
S_TBL = 48
S_RET = 66
S_CNT, S_HA, S_LIM, S_HOOK, S_OK = 68, 69, 70, 71, 72
L_KT = 0
L_Q = 9216
L_ST = L_Q + 16 * 1040
L_O = L_ST + 4096
LDS_BYTES = L_O + 96 * 1024
WS_FK = 8 << 20
WS_FV = WS_FK + (512 << 10)
WS_EPOCH = 9 << 20
THRESH = 1024.0
P2 = lambda r: "v[%d:%d]" % (r, r + 1)
sp = lambda r: "s[%d:%d]" % (r, r + 1)

class Gen:
    def __init__(self, **kw):
        self.L = []
        self.uid = 0
        self.stamps = kw.get("stamps", False)
        self.probe = kw.get("probe", None)
        self.sleep = kw.get("sleep", 4)
        self.fs = kw.get("fs", 6)
        self.abl = kw.get("abl", "")
        self.omod = kw.get("omod", "")
        self.qsplit = kw.get("qsplit", 9)
        self.qt = kw.get("qt", ""); self.kt = kw.get("kt", "")
        self.vm = []
    def A(self, s):
        for line in s.split("\n"): self.L.append(line)
    def label(self, base):
        self.uid += 1
        return "%s_%d" % (base, self.uid)
    def M(self, s, tag):
        self.A(s); self.vm.append(tag)
    def wait(self, tag, extra=""):
        last = max(k for k, t in enumerate(self.vm) if t == tag)
        n = len(self.vm) - 1 - last
        assert n <= 63
        self.A("s_waitcnt vmcnt(%d)%s" % (n, extra))
    def cstamp(self, idx):
        if self.stamps: self.A("s_memtime s[76:77]\ns_waitcnt lgkmcnt(0)\ns_mov_b32 s%d, s76" % (80 + idx))
    def stamp(self, idx):
        if self.probe is not None:
            if idx != self.probe: return
        elif not self.stamps: return
        self.A("s_memrealtime s[76:77]\ns_waitcnt lgkmcnt(0)\ns_mov_b32 s%d, s76" % (80 + idx))

    def unpack(self, dst, src):
        self.A("v_lshlrev_b32 v%d, 16, v%d\nv_and_b32 v%d, 0xffff0000, v%d" % (dst, src, dst + 1, src))
    def round_pair(self, r):
        self.A("v_cvt_pk_bf16_f32 v%d, v%d, v%d" % (r + 1, r, r + 1))
        self.A("v_lshlrev_b32 v%d, 16, v%d\nv_and_b32 v%d, 0xffff0000, v%d" % (r, r + 1, r + 1, r + 1))
    def int_to_f32(self, regs, tmp):
        A = self.A
        for r in regs: A("v_cvt_f32_i32 v%d, v%d" % (r, r))
        A("v_max3_f32 v%d, |v%d|, |v%d|, 0" % (tmp, regs[0], regs[1]))
        for k in range(2, len(regs), 2):
            A("v_max3_f32 v%d, |v%d|, |v%d|, v%d" % (tmp, regs[k], regs[k + 1], tmp))
        lab = self.label("L_big"); ret = self.label("L_bigret")
        A("v_cmp_lt_f32 vcc, 0x43800000, v%d" % tmp)
        A("s_cbranch_vccnz %s" % lab)
        A("%s:" % ret)
        self.cold.append((lab, ret, list(regs)))
    def unpack_tab(self, dst, src):
        for p in range(4):
            for k in range(4): self.unpack(dst + 8 * p + 2 * k, src + 4 * k + p)
    def rope_p(self, a, b, tab, t, u, o1, o2):
        A = self.A
        A("v_pk_mul_f32 %s, %s, %s" % (P2(t), P2(a), P2(tab)))
        A("v_pk_mul_f32 %s, %s, %s" % (P2(u), P2(b), P2(tab + 2)))
        A("v_pk_fma_f32 %s, %s, %s, %s neg_lo:[1,0,0] neg_hi:[1,0,0]" % (P2(t), P2(b), P2(tab + 4), P2(t)))
        A("v_pk_fma_f32 %s, %s, %s, %s" % (P2(u), P2(a), P2(tab + 6), P2(u)))
        A("v_cvt_pk_bf16_f32 v%d, v%d, v%d" % (o1, t, t + 1))
        A("v_cvt_pk_bf16_f32 v%d, v%d, v%d" % (o2, u, u + 1))
    def k_dequant(self, rb, sc, tmp):
        A = self.A
        z = sc + 1
        self.int_to_f32(list(range(rb, rb + 16)), tmp)
        A("v_lshlrev_b32 v%d, 16, v%d\nv_lshlrev_b32 v%d, 16, v%d" % (sc, sc, z, z))
        A("v_mul_f32 v%d, v%d, v%d" % (z, z, sc))
        for p in range(8):
            r = rb + 2 * p
            A("v_pk_fma_f32 %s, %s, %s, %s op_sel:[0,0,1] op_sel_hi:[1,0,1] neg_lo:[0,0,1] neg_hi:[0,0,1]" % (P2(r), P2(r), P2(sc), P2(sc)))
    def v_compute(self, x, rawsc, sc, nz, tmp, o):
        A = self.A
        for p in range(4):
            self.unpack(sc + 2 * p, rawsc + p)
            self.unpack(nz + 2 * p, rawsc + 4 + p)
        for p in range(4): A("v_pk_mul_f32 %s, %s, %s" % (P2(nz + 2 * p), P2(nz + 2 * p), P2(sc + 2 * p)))
    def v_compute2(self, x, sc, nz, tmp, o):
        A = self.A
        self.int_to_f32(list(range(x, x + 16)), tmp)
        for j in range(8):
            r = x + 2 * j; q = j & 1
            A("v_pk_fma_f32 %s, %s, %s, %s op_sel:[0,%d,%d] op_sel_hi:[1,%d,%d] neg_lo:[0,0,1] neg_hi:[0,0,1]" %
              (P2(r), P2(r), P2(sc + (j & ~1)), P2(nz + (j & ~1)), q, q, q, q))
        for e in range(2):
            for jj in range(4):
                A("v_cvt_pk_bf16_f32 v%d, v%d, v%d" % (o + 4 * e + jj, x + 4 * jj + e, x + 4 * jj + 2 + e))

    def raw_loads(self, f, rk, rv, bq, bs, bv, bvs, tagk, tagv):
        o = []
        for k, off in enumerate((0, 16, 256, 272)):
            o.append(("global_load_dwordx4 %s[%d:%d], v%d, %s offset:%d nt" % (f, rk + 4 * k, rk + 4 * k + 3, bq, sp(S_QK), off), tagk))
        o.append(("global_load_ushort %s%d, v%d, %s" % (f, rk + 16, bs, sp(S_KS)), tagk))
        o.append(("global_load_ushort %s%d, v%d, %s" % (f, rk + 17, bs, sp(S_KZ)), tagk))
        for j in range(8):
            off = (8 * (j >> 2) + (j & 3)) * 512 - 2560
            o.append(("global_load_dwordx2 %s[%d:%d], v%d, %s offset:%d nt" % (f, rv + 2 * j, rv + 2 * j + 1, bv, sp(S_QV), off), tagv))
        for q, sr in enumerate((S_VS, S_VZ)):
            for hf in range(2):
                r = rv + 16 + 4 * q + 2 * hf
                o.append(("global_load_dwordx2 %s[%d:%d], v%d, %s offset:%d" % (f, r, r + 1, bvs, sp(sr), 16 * hf), tagv))
        return o

    def flag_store(self):
        A = self.A
        A("v_mov_b32 v%d, s%d" % (V_TMP3, S_TAG))
        A("s_mov_b64 exec, 3")
        self.M("global_store_dword v%d, v%d, %s sc1" % (V_FA, V_TMP3, sp(S_WS)), "flag")
        A("s_mov_b64 exec, -1")

    def poll(self, reg):
        A = self.A
        lab = self.label("L_poll"); done = self.label("L_polled")
        A("s_mov_b32 s%d, 0" % S_CNT)
        A("%s:" % lab)
        A("global_load_dword v%d, v%d, %s sc1" % (V_TMP0, reg, sp(S_WS)))
        A("s_add_u32 s%d, s%d, 1" % (S_CNT, S_CNT))
        A("s_waitcnt vmcnt(0)")
        A("v_cmp_ne_u32 vcc, s%d, v%d" % (S_TAG, V_TMP0))
        A("s_cbranch_vccz %s" % done)
        if self.sleep: A("s_sleep %d" % self.sleep)
        A("s_cmp_lt_u32 s%d, 0x8000\ns_cbranch_scc1 %s" % (S_CNT, lab))
        A("%s:" % done)

    def phase1(self):
        A = self.A; M = self.M
        ln = V_LANE
        BQ, BS, VT, BV, BVS, LW, LR, BO, BVO, AQ, AT, LQ, LT = range(16, 29)
        RT, UT, RK, RV, TB = 32, 48, 80, 100, 160
        RQ = 80
        RKB, RVB = 192, 212
        fs = self.fs
        A("s_cmp_ge_u32 s2, 256\ns_cbranch_scc1 L_end")
        A("s_load_dwordx16 s[4:19], s[0:1], 0\ns_load_dwordx8 s[20:27], s[0:1], 64\ns_load_dwordx4 s[28:31], s[0:1], 96")
        A("v_lshrrev_b32 v1, 6, v0\nv_and_b32 v%d, 63, v0" % ln)
        A("s_and_b32 s%d, s2, 7\ns_lshr_b32 s%d, s2, 3" % (S_H, S_I))
        A("v_readfirstlane_b32 s%d, v1" % S_W)
        self.stamp(0)
        A("s_lshl_b32 s%d, s2, 3\ns_bfe_u32 s%d, s2, 0x10002" % (S_T0, S_T1))
        A("v_lshrrev_b32 v8, 3, v%d\nv_and_b32 v9, 7, v%d\nv_add_u32 v10, s%d, v8" % (ln, ln, S_T0))
        A("s_lshl_b32 s%d, s%d, 1\ns_add_u32 s%d, s%d, s%d\ns_lshl_b32 s%d, s%d, 20\ns_lshl_b32 s%d, s%d, 12" % (S_HA, S_W, S_HA, S_HA, S_T1, S_T2, S_HA, S_T3, S_HA))
        A("v_lshlrev_b32 v%d, 8, v10\nv_lshl_add_u32 v%d, v9, 4, v%d" % (VT, VT, VT))
        A("v_lshl_add_u32 v%d, v%d, 1, s%d\nv_lshl_add_u32 v%d, v10, 1, s%d" % (BQ, VT, S_T2, BS, S_T3))
        A("s_lshl_b32 s%d, s%d, 6\ns_and_b32 s%d, s%d, 1\ns_lshl_b32 s%d, s%d, 5\ns_add_u32 s%d, s%d, s%d\ns_lshr_b32 s%d, s%d, 1\ns_lshl_b32 s%d, s%d, 4\ns_add_u32 s%d, s%d, s%d" %
          (S_T0, S_I, S_T1, S_H, S_T1, S_T1, S_T0, S_T0, S_T1, S_T1, S_W, S_T1, S_T1, S_T0, S_T0, S_T1))
        A("v_lshrrev_b32 v11, 5, v%d\nv_lshl_add_u32 v11, v11, 2, s%d\nv_and_b32 v12, 31, v%d" % (ln, S_T0, ln))
        A("s_lshl_b32 s%d, s%d, 20\ns_and_b32 s%d, s%d, 1\ns_lshl_b32 s%d, s%d, 8\ns_add_u32 s%d, s%d, s%d\ns_lshl_b32 s%d, s%d, 12" % (S_T0, S_H, S_T1, S_W, S_T1, S_T1, S_T1, S_T1, S_T0, S_T3, S_H))
        A("v_lshlrev_b32 v13, 9, v11\nv_lshl_add_u32 v13, v12, 3, v13\nv_add_u32 v13, s%d, v13\nv_add_u32 v%d, 2560, v13" % (S_T1, BV))
        A("v_lshl_add_u32 v%d, v11, 1, s%d" % (BVS, S_T3))
        A("s_mov_b32 s%d, %d" % (S_CNT, WS_EPOCH))
        A("s_waitcnt lgkmcnt(0)")
        A("s_load_dword s%d, %s, s%d" % (S_TAG, sp(S_WS), S_CNT))
        rl = self.raw_loads('v', RK, RV, BQ, BS, BV, BVS, "kraw", "vraw")
        for s, t in rl[:4]: M(s, t)
        for k, (sr, off) in enumerate(((S_KC, 0), (S_KC, 128), (S_KSN, 0), (S_KSN, 128))):
            M("global_load_dwordx4 v[%d:%d], v%d, %s offset:%d %s" % (RT + 4 * k, RT + 4 * k + 3, VT, sp(sr), off, self.kt), "kraw")
        for s, t in rl[4:]: M(s, t)
        A("v_xor_b32 v%d, 0x100000, v%d\nv_xor_b32 v%d, 0x1000, v%d\nv_xor_b32 v13, 16384, v13\nv_add_u32 v%d, 2560, v13\nv_xor_b32 v%d, 64, v%d" % (BQ, BQ, BS, BS, BV, BVS, BVS))
        for s, t in self.raw_loads('v', RKB, RVB, BQ, BS, BV, BVS, "kraw2", "vraw2"): M(s, t)
        A("s_mov_b32 s%d, 0x%08x\ns_mov_b32 s%d, 0x%08x\ns_mov_b32 s%d, 0x%08x" % (S_C, f32bits(CSCALE), S_C + 1, f32bits(CSCALE), S_THR, f32bits(THRESH)))
        A("s_mul_i32 s%d, s%d, 2304" % (S_T0, S_W))
        A("v_mul_u32_u24 v%d, 144, v9\nv_lshl_add_u32 v%d, v8, 4, v%d\nv_add_u32 v%d, s%d, v%d" % (LW, LW, LW, LW, S_T0, LW))
        A("v_mul_u32_u24 v%d, 144, v8\nv_lshl_add_u32 v%d, v9, 4, v%d\nv_add_u32 v%d, s%d, v%d" % (LR, LR, LR, LR, S_T0, LR))
        A("s_lshr_b32 s%d, s2, 2\ns_lshl_b32 s%d, s%d, 14\ns_and_b32 s%d, s2, 3\ns_lshl_b32 s%d, s%d, 7\ns_add_u32 s%d, s%d, s%d\ns_add_u32 s%d, s%d, s%d" %
          (S_T0, S_T0, S_T0, S_T1, S_T1, S_T1, S_T0, S_T0, S_T1, S_T0, S_T0, S_T2))
        A("v_lshlrev_b32 v%d, 10, v8\nv_lshl_add_u32 v%d, v9, 4, v%d\nv_add_u32 v%d, s%d, v%d" % (BO, BO, BO, BO, S_T0, BO))
        A("; V' offset: h<<20 + (2i + (h&1))*16384 + 8192 + w*2048 + l*16")
        A("s_lshl_b32 s%d, s%d, 20\ns_lshl_b32 s%d, s%d, 15\ns_add_u32 s%d, s%d, s%d\ns_and_b32 s%d, s%d, 1\ns_lshl_b32 s%d, s%d, 14\ns_add_u32 s%d, s%d, s%d" %
          (S_T0, S_H, S_T1, S_I, S_T0, S_T0, S_T1, S_T1, S_H, S_T1, S_T1, S_T0, S_T0, S_T1))
        A("s_lshl_b32 s%d, s%d, 11\ns_add_u32 s%d, s%d, s%d\ns_add_u32 s%d, s%d, 8192" % (S_T1, S_W, S_T0, S_T0, S_T1, S_T0, S_T0))
        A("v_lshlrev_b32 v%d, 4, v%d\nv_add_u32 v%d, s%d, v%d" % (V_KOFF0, ln, BVO, S_T0, V_KOFF0))
        A("v_add_u32 v%d, 4096, v%d\nv_add_u32 v%d, 8192, v%d\nv_add_u32 v%d, 12288, v%d" % (V_KOFF1, V_KOFF0, V_VOFF0, V_KOFF0, V_VOFF1, V_KOFF0))
        A("; Q: row = 64 i + 16 w + 8u + (l>>3)")
        A("s_lshl_b32 s%d, s%d, 6\ns_lshl_b32 s%d, s%d, 4\ns_add_u32 s%d, s%d, s%d\ns_lshl_b32 s%d, s%d, 19" % (S_T0, S_I, S_T1, S_W, S_T0, S_T0, S_T1, S_T1, S_H))
        A("v_add_u32 v10, s%d, v8\nv_lshlrev_b32 v%d, 8, v10\nv_lshl_add_u32 v%d, v9, 4, v%d\nv_add_u32 v%d, s%d, v%d" % (S_T0, AT, AT, AT, AQ, S_T1, AT))
        A("s_lshr_b32 s%d, s%d, 1\ns_mul_i32 s%d, s%d, 8320\ns_and_b32 s%d, s%d, 1\ns_lshl_b32 s%d, s%d, 8\ns_add_u32 s%d, s%d, s%d\ns_add_u32 s%d, s%d, %d" %
          (S_T0, S_W, S_T0, S_T0, S_T1, S_W, S_T1, S_T1, S_T0, S_T0, S_T1, S_T0, S_T0, L_Q))
        A("v_mul_u32_u24 v%d, 1040, v9\nv_lshl_add_u32 v%d, v8, 4, v%d\nv_add_u32 v%d, s%d, v%d" % (LQ, LQ, LQ, LQ, S_T0, LQ))
        A("s_lshl_b32 s%d, s%d, 8\ns_add_u32 s%d, s%d, s2\ns_lshl_b32 s%d, s%d, %d\ns_add_u32 s%d, s%d, %d\nv_mov_b32 v%d, s%d" % (S_T0, S_HA, S_T0, S_T0, S_T0, S_T0, fs, S_T0, S_T0, WS_FK, V_FA, S_T0))
        A("s_xor_b32 s%d, s%d, %d\nv_mov_b32 v14, s%d" % (S_T0, S_T0, 256 << fs, S_T0))
        A("s_lshl_b32 s%d, s%d, 5\ns_add_u32 s%d, s%d, s%d\ns_lshl_b32 s%d, s%d, 3\ns_add_u32 s%d, s%d, s%d\ns_lshl_b32 s%d, s%d, %d\ns_add_u32 s%d, s%d, %d" %
          (S_T0, S_H, S_T0, S_T0, S_I, S_T0, S_T0, S_T0, S_T0, S_W, S_T0, S_T0, fs, S_T0, S_T0, WS_FV))
        A("v_writelane_b32 v%d, s%d, 1\ns_add_u32 s%d, s%d, %d\nv_writelane_b32 v14, s%d, 1" % (V_FA, S_T0, S_T0, S_T0, 4 << fs, S_T0))
        A("v_mov_b32 v%d, v14" % LT)
        A("v_bfe_u32 v10, v%d, 2, 3\nv_and_b32 v11, 3, v%d\nv_lshl_add_u32 v10, v10, 3, v11" % (ln, ln))
        A("s_lshl_b32 s%d, s%d, 8\ns_lshl_b32 s%d, s%d, 6\ns_add_u32 s%d, s%d, s%d\ns_and_b32 s%d, s%d, 1\ns_lshl_b32 s%d, s%d, 2\ns_add_u32 s%d, s%d, s%d" %
          (S_T0, S_H, S_T1, S_W, S_T0, S_T0, S_T1, S_T1, S_H, S_T1, S_T1, S_T1, S_T1, S_T0))
        A("v_add_u32 v11, s%d, v10\nv_lshlrev_b32 v11, %d, v11\nv_add_u32 v11, %d, v11" % (S_T1, fs, WS_FK))
        A("v_add_u32 v12, s%d, v10\nv_lshlrev_b32 v12, %d, v12\nv_add_u32 v12, %d, v12" % (S_T0, fs, WS_FV))
        A("v_cmp_gt_u32 vcc, 32, v%d\ns_nop 1\nv_cndmask_b32 v%d, v12, v11, vcc\nv_xor_b32 v%d, %d, v%d" % (ln, V_PA, V_PB, 4 << fs, V_PA))
        A("s_mov_b32 s%d, s%d\ns_mov_b32 s%d, s%d\ns_mov_b32 s%d, 0x800000\ns_mov_b32 s%d, 0x20000" % (S_SRD, S_WS, S_SRD + 1, S_WS + 1, S_SRD + 2, S_SRD + 3))
        A("s_lshl_b32 s%d, s%d, 20\ns_lshl_b32 s%d, s%d, 18\ns_add_u32 s%d, s%d, s%d" % (S_T0, S_H, S_T1, S_W, S_T0, S_T0, S_T1))
        A("s_and_b32 s%d, s%d, 1\ns_lshl_b32 s%d, s%d, 14\ns_add_u32 s%d, s%d, s%d" % (S_T1, S_H, S_T1, S_T1, S_T0, S_T0, S_T1))
        for n in range(8):
            A("s_add_u32 s%d, s%d, %d\ns_and_b32 s%d, s%d, 7\ns_lshl_b32 s%d, s%d, 15\ns_add_u32 s%d, s%d, s%d\ns_xor_b32 s%d, s%d, 16384" %
              (S_T1, S_I, n, S_T1, S_T1, S_T1, S_T1, S_TBL + n, S_T1, S_T0, S_TBL + 8 + n, S_TBL + n))
        A("s_mov_b32 s%d, s%d\ns_mov_b32 s%d, s%d" % (S_TBL + 16, S_TBL, S_OFF, S_TBL))
        for t in range(4):
            for r in range(16): A("v_accvgpr_write_b32 a%d, 0" % (A_O('b', t) + r))
        def stage(rk, rv, tk, tv, tag, first):
            self.wait(tk)
            if first:
                self.stamp(1)
                self.unpack_tab(UT, RT)
            self.k_dequant(rk, rk + 16, TB)
            for p in range(4): self.rope_p(rk + 2 * p, rk + 8 + 2 * p, UT + 8 * p, TB, TB + 2, TB + 4 + p, TB + 8 + p)
            A("ds_write_b128 v%d, v[%d:%d]\nds_write_b128 v%d, v[%d:%d] offset:1152" % (LW, TB + 4, TB + 7, LW, TB + 8, TB + 11))
            A("s_waitcnt lgkmcnt(0)")
            A("ds_read_b128 v[%d:%d], v%d\nds_read_b128 v[%d:%d], v%d offset:1152" % (rk, rk + 3, LR, rk + 4, rk + 7, LR))
            self.wait(tv)
            self.v_compute(rv, rv + 16, TB, TB + 8, None, None)
            A("s_waitcnt lgkmcnt(0)")
            M("global_store_dwordx4 v%d, v[%d:%d], %s sc1" % (BO, rk, rk + 3, sp(S_WS)), tag)
            M("global_store_dwordx4 v%d, v[%d:%d], %s offset:512 sc1" % (BO, rk + 4, rk + 7, sp(S_WS)), tag)
            self.v_compute2(rv, TB, TB + 8, TB + 16, rk + 8)
            M("global_store_dwordx4 v%d, v[%d:%d], %s sc1" % (BVO, rk + 8, rk + 11, sp(S_WS)), tag)
            M("global_store_dwordx4 v%d, v[%d:%d], %s offset:1024 sc1" % (BVO, rk + 12, rk + 15, sp(S_WS)), tag)
        A("; ---- stage A")
        stage(RK, RV, "kraw", "vraw", "st", True)
        self.stamp(13)
        A("s_barrier")
        ql = []
        for u in range(2):
            b = RQ + 24 * u
            for (r, v, sr, off, m) in ((0, AQ, S_Q, 0, "nt"), (4, AQ, S_Q, 128, "nt"), (8, AT, S_QC, 0, self.qt), (12, AT, S_QC, 128, self.qt), (16, AT, S_QS, 0, self.qt), (20, AT, S_QS, 128, self.qt)):
                ql.append(("global_load_dwordx4 v[%d:%d], v%d, %s offset:%d %s" % (b + r, b + r + 3, v, sp(sr), 2048 * u + off, m), "q%d" % u))
        A("v_xor_b32 v%d, 0x100000, v%d\nv_xor_b32 v%d, 16384, v%d" % (BO, BO, BVO, BVO))
        for s, t in ql[:self.qsplit]: M(s, t)
        A("s_add_u32 s%d, s%d, 0x9e3779b9" % (S_TAG, S_TAG))
        self.wait("st")
        self.flag_store()
        A("v_mov_b32 v%d, v%d" % (V_FA, LT))
        self.stamp(2)
        for s, t in ql[self.qsplit:]: M(s, t)
        stage(RKB, RVB, "kraw2", "vraw2", "st2", False)
        self.stamp(12)
        def qunit(u):
            b = RQ + 24 * u
            self.unpack_tab(UT, b + 8)
            x1, x2 = TB + 4, TB + 12
            for p in range(4):
                self.unpack(x1 + 2 * p, b + p); self.unpack(x2 + 2 * p, b + 4 + p)
            for p in range(8): A("v_pk_mul_f32 %s, %s, %s" % (P2(x1 + 2 * p), P2(x1 + 2 * p), sp(S_C)))
            for p in range(4): self.rope_p(x1 + 2 * p, x2 + 2 * p, UT + 8 * p, TB, TB + 2, b + p, b + 4 + p)
            A("ds_write_b128 v%d, v[%d:%d] offset:%d\nds_write_b128 v%d, v[%d:%d] offset:%d" % (LQ, b, b + 3, 128 * u, LQ, b + 4, b + 7, 128 * u + 512))
        self.wait("q0")
        self.stamp(10)
        qunit(0)
        self.wait("q1")
        self.stamp(14)
        M("global_load_dword v%d, v%d, %s sc1" % (V_TMP0, V_PA, sp(S_WS)), "poll")
        qunit(1)
        self.wait("poll")
        self.flag_store()
        self.stamp(15)
        A("s_mov_b32 s%d, 0\ns_mov_b32 s%d, 0" % (S_HOOK, S_CNT))
        A("v_cmp_ne_u32 vcc, s%d, v%d\ns_cbranch_vccnz L_reorder" % (S_TAG, V_TMP0))
        A("L_havek:")
        self.stamp(3)
        self.vm = []
        A("s_mov_b32 s%d, s%d" % (S_OFF, S_TBL))
        for k in range(8): M(self.ld_k(k, 0), "K0")
        A("s_waitcnt lgkmcnt(0)\ns_barrier")
        self.stamp(11)
        for f in range(16):
            a = 128 + 4 * f
            A("ds_read_b128 a[%d:%d], v%d offset:%d" % (a, a + 3, V_KOFF0, L_Q + f * 1040))

    def reorder(self):
        A = self.A
        A("L_reorder:")
        A("s_or_b32 s%d, vcc_lo, vcc_hi" % S_T0)
        A("s_xor_b32 s%d, s%d, 16384\ns_and_b32 s%d, s%d, 0xfffc7fff" % (S_T1, S_TBL + 8, S_T1, S_T1))
        A("s_mov_b32 s%d, 0\ns_mov_b32 s%d, 7\ns_mov_b32 s%d, s%d\ns_add_u32 s%d, s%d, 8" % (S_OK, S_LIM, S_HA, S_I, S_RET, S_I))
        A("L_ro_loop:")
        A("s_and_b32 s%d, s%d, 7\ns_lshl_b32 s%d, s%d, 2\ns_lshr_b32 s%d, s%d, s%d\ns_lshl_b32 s%d, s%d, 15\ns_add_u32 s%d, s%d, s%d" %
          (S_T2, S_HA, S_T3, S_T2, S_T3, S_T0, S_T3, S_T2, S_T2, S_T2, S_T2, S_T1))
        A("s_and_b32 s%d, s%d, 15" % (S_T3, S_T3))
        A("s_cselect_b32 m0, s%d, s%d\ns_cselect_b32 s%d, 1, 0" % (S_LIM, S_OK, S_T3))
        A("s_movreld_b32 s%d, s%d" % (S_TBL, S_T2))
        A("s_sub_u32 s%d, s%d, s%d\ns_xor_b32 s%d, s%d, 1\ns_add_u32 s%d, s%d, s%d" % (S_LIM, S_LIM, S_T3, S_T3, S_T3, S_OK, S_OK, S_T3))
        A("s_add_u32 s%d, s%d, 1\ns_cmp_lt_u32 s%d, s%d\ns_cbranch_scc1 L_ro_loop" % (S_HA, S_HA, S_HA, S_RET))
        A("s_mov_b32 s%d, 3" % S_HOOK)
        A("s_cmp_ge_u32 s%d, 4\ns_cbranch_scc1 L_havek" % S_OK)
        A("s_add_u32 s%d, s%d, 1\ns_cmp_ge_u32 s%d, 0x8000\ns_cbranch_scc1 L_havek" % (S_CNT, S_CNT, S_CNT))
        if self.sleep: A("s_sleep %d" % self.sleep)
        A("global_load_dword v%d, v%d, %s sc1\ns_waitcnt vmcnt(0)" % (V_TMP0, V_PA, sp(S_WS)))
        A("v_cmp_ne_u32 vcc, s%d, v%d\ns_nop 3\ns_branch L_reorder" % (S_TAG, V_TMP0))

    def mfma_qk(self, x, ks, kset, first_c=None):
        s = V_S[x]; k = V_K[kset] + 4 * ks; q = A_Q(x, ks)
        if ks == 0: c = first_c if first_c is not None else "v[%d:%d]" % (V_NM[x], V_NM[x] + 15)
        else: c = "v[%d:%d]" % (s, s + 15)
        return "v_mfma_f32_32x32x16_bf16 v[%d:%d], v[%d:%d], a[%d:%d], %s" % (s, s + 15, k, k + 3, q, q + 3, c)
    def mfma_pv(self, x, idx, vset, first=False):
        ks2, t = idx >> 2, idx & 3
        o = A_O(x, t); v = V_V[vset] + 4 * idx; p = V_P[x] + 4 * ks2
        c = "0" if (first and ks2 == 0) else "a[%d:%d]" % (o, o + 15)
        return "v_mfma_f32_32x32x16_bf16 a[%d:%d], v[%d:%d], v[%d:%d], %s" % (o, o + 15, v, v + 3, p, p + 3, c)
    def ld_k(self, ks, kset):
        r = V_K[kset] + 4 * ks
        return "buffer_load_dwordx4 v[%d:%d], v%d, s[%d:%d], s%d offen offset:%d sc1" % (r, r + 3, V_KOFF0 + (ks >> 2), S_SRD, S_SRD + 3, S_OFF, (ks & 3) * 1024)
    def ld_v(self, idx, vset):
        r = V_V[vset] + 4 * idx
        return "buffer_load_dwordx4 v[%d:%d], v%d, s[%d:%d], s%d offen offset:%d sc1" % (r, r + 3, V_VOFF0 + (idx >> 2), S_SRD, S_SRD + 3, S_OFF, (idx & 3) * 1024)
    def op_e(self, x, r): return "v_exp_f32 v%d, v%d" % (V_E[x] + r, V_S[x] + r)
    def op_a(self, x, r):
        if r == 1: return "v_add_f32 v%d, v%d, v%d" % (V_T[x], V_E[x], V_E[x] + 1)
        return "v_add_f32 v%d, v%d, v%d" % (V_T[x], V_T[x], V_E[x] + r)
    def op_c(self, x, k): return "v_cvt_pk_bf16_f32 v%d, v%d, v%d" % (V_P[x] + k, V_E[x] + 2 * k, V_E[x] + 2 * k + 1)
    def op_f(self, x): return "v_add_f32 v%d, v%d, v%d" % (V_L[x], V_L[x], V_T[x])
    def op_chk(self, x):
        stub = self.label("L_slow_%s" % x); ret = self.label("L_ret_%s" % x)
        self.stubs.append((stub, ret, x))
        return ["v_cmp_nge_f32 vcc, s%d, v%d" % (S_THR, V_T[x]), "s_cbranch_vccnz %s" % stub, "%s:" % ret]

    PERIOD = {
        8:  "F L o4",
        9:  "L o5 o6",
        10: "o7 e0 e1",
        11: "L e2",
        12: "a1 e3 a2 c0",
        13: "L e4",
        14: "a3 e5 a4 c1 W1",
        15: "L e6",
        16: "a5 e7 a6 c2",
        17: "L e8",
        18: "a7 e9 a8 c3",
        19: "L e10",
        20: "a9 e11 a10 W2",
        21: "L e12",
        22: "e13 a11 e14 a12",
        23: "e15 a13 a14 a15 K",
    }
    def iteration(self, jp, loads=True):
        out = []
        kq = (jp + 1) & 1
        for p in range(32):
            if p < 8: out.append(self.mfma_qk('a', p, kq))
            elif p < 16: out.append(self.mfma_pv('b', p - 8, jp))
            elif p < 24: out.append(self.mfma_qk('b', p - 16, kq))
            else: out.append(self.mfma_pv('a', p - 24, kq))
            if p < 8: x, u = 'b', p + 16
            elif p < 24: x, u = 'a', p
            else: x, u = 'b', p - 16
            y = 'a' if x == 'b' else 'b'
            for tok in self.PERIOD[u].split():
                c = tok[0]
                if c == 'L':
                    li = sum(self.PERIOD[v].split().count('L') for v in range(8, u))
                    if not loads: continue
                    if x == 'a': out.append(self.ld_v(li, jp))
                    elif p >= 24: out.append(self.ld_k(li, kq))
                    else: out.append(self.ld_k(li, jp))
                elif c == 'e': out.append(self.op_e(x, int(tok[1:])))
                elif c == 'a': out.append(self.op_a(x, int(tok[1:])))
                elif c == 'c': out.append(self.op_c(x, int(tok[1:])))
                elif c == 'o': out.append(self.op_c(y, int(tok[1:])))
                elif c == 'F': out.append(self.op_f(y))
                elif c == 'K': out += self.op_chk(x)
                elif c == 'W':
                    if tok == "W2" and x == 'a': out.append("@WAIT_V")
                    if tok == "W1" and x == 'b': out.append("@WAIT_K")
        return out
    def emit_iter(self, it):
        A = self.A
        lastv = max(k for k, s in enumerate(it) if s.startswith("buffer_load") and (" v%d," % V_VOFF1) in s)
        for k, s in enumerate(it):
            if s == "@WAIT_V": s = "s_waitcnt vmcnt(%d)" % self.wv
            if s == "@WAIT_K": s = "s_waitcnt vmcnt(%d)" % self.wk
            A(s)
            if k == lastv - 3: A("s_add_u32 m0, m0, 1")
            if k == lastv + 2: A("s_movrels_b32 s%d, s%d" % (S_OFF, S_TBL))
    def compute_waits(self):
        self.stubs = []
        it = self.iteration(0)
        seq = it + it + it
        n = len(it)
        isld = lambda s: s.startswith("buffer_load")
        isv = lambda s: isld(s) and ((" v%d," % V_VOFF0) in s or (" v%d," % V_VOFF1) in s)
        kv = 2 * n + it.index("@WAIT_V")
        lastv = max(k for k in range(n, 2 * n) if isv(seq[k]))
        self.wv = sum(1 for k in range(lastv + 1, kv) if isld(seq[k]))
        kk = 2 * n + it.index("@WAIT_K")
        idx = [k for k, s in enumerate(it) if s.startswith("v_mfma")]
        lastk = 2 * n + max(k for k in range(0, idx[8]) if isld(it[k]))
        self.wk = sum(1 for k in range(lastk + 1, kk) if isld(seq[k]))
        self.uid = 0
        self.stubs = []

    def slow_sub(self, x):
        A = self.A
        s, e, nm = V_S[x], V_E[x], V_NM[x]
        t0, t1 = V_TMP0, V_TMP1
        A("L_sub_%s:" % x)
        A("s_nop 7")
        A("v_max3_f32 v%d, v%d, v%d, v%d" % (t0, s, s + 1, s + 2))
        for r in range(3, 15, 2): A("v_max3_f32 v%d, v%d, v%d, v%d" % (t0, s + r, s + r + 1, t0))
        A("v_max3_f32 v%d, v%d, v%d, 0" % (t0, s + 15, t0))
        A("v_mov_b32 v%d, v%d\ns_nop 1\nv_permlane32_swap_b32 v%d, v%d\ns_nop 1\nv_max_f32 v%d, v%d, v%d" % (t1, t0, t0, t1, t0, t0, t1))
        A("v_exp_f32 v%d, -v%d" % (t1, t0))
        for r in range(16):
            A("v_sub_f32 v%d, v%d, v%d" % (s + r, s + r, t0))
            A("v_sub_f32 v%d, v%d, v%d" % (nm + r, nm + r, t0))
        A("v_mul_f32 v%d, v%d, v%d" % (V_L[x], V_L[x], t1))
        for t in range(4):
            for r in range(16):
                a = A_O(x, t) + r
                A("v_accvgpr_read_b32 v%d, a%d\nv_mul_f32 v%d, v%d, v%d\nv_accvgpr_write_b32 a%d, v%d" % (V_TMP2, a, V_TMP2, V_TMP2, t1, a, V_TMP2))
        for r in range(16): A(self.op_e(x, r))
        A("s_nop 0")
        for r in range(1, 16): A(self.op_a(x, r))
        for k in range(8): A(self.op_c(x, k))
        A("s_nop 3")
        A("s_setpc_b64 s[%d:%d]" % (S_RET, S_RET + 1))

    def first_fix(self, x):
        s, nm = V_S[x], V_NM[x]
        t0, t1 = V_T[x], V_E[x]
        o = ["v_max3_f32 v%d, v%d, v%d, v%d" % (t0, s, s + 1, s + 2)]
        for r in range(3, 15, 2): o.append("v_max3_f32 v%d, v%d, v%d, v%d" % (t0, s + r, s + r + 1, t0))
        o.append("v_max_f32 v%d, v%d, v%d" % (t0, s + 15, t0))
        o += ["v_mov_b32 v%d, v%d" % (t1, t0), "s_nop 1", "v_permlane32_swap_b32 v%d, v%d" % (t0, t1), "s_nop 1", "v_max_f32 v%d, v%d, v%d" % (t0, t0, t1)]
        for r in range(16): o.append("v_sub_f32 v%d, v%d, v%d" % (s + r, s + r, t0))
        for r in range(16): o.append("v_sub_f32 v%d, 0, v%d" % (nm + r, t0))
        return o

    def main(self):
        A = self.A; M = self.M
        A("v_mov_b32 v%d, 0\nv_mov_b32 v%d, 0" % (V_L['a'], V_L['b']))
        pend = [(self.ld_v(k, 0), "V0") for k in range(8)] + [None] + [(self.ld_k(k, 1), "K1") for k in range(8)] + [(self.ld_v(k, 1), "V1") for k in range(8)]
        def nxt():
            if pend[0] is None:
                pend.pop(0); A("s_mov_b32 s%d, s%d" % (S_OFF, S_TBL + 1))
            M(*pend.pop(0))
        self.wait("K0", " lgkmcnt(0)")
        self.stamp(4)
        for ks in range(8):
            A(self.mfma_qk('a', ks, 0, first_c="0"))
            nxt()
        fa = self.first_fix('a')
        sa = [self.op_e('a', r) for r in range(16)]
        seq = fa + sa[:2]
        for r in range(2, 16):
            seq.append(sa[r]); seq.append(self.op_a('a', r - 1))
        seq += [self.op_c('a', 0), self.op_a('a', 15)] + [self.op_c('a', k) for k in range(1, 4)]
        pos = 0
        for ks in range(8):
            A(self.mfma_qk('b', ks, 0, first_c="0"))
            if ks < 2: nxt()
            else:
                for s in seq[pos:pos + 6]: A(s)
                pos += 6
        rest = seq[pos:] + self.first_fix('b')
        for k, s in enumerate(rest):
            A(s)
            if k % 3 == 2 and pend and not s.startswith("s_nop") and not s.startswith("v_mov"): nxt()
        while pend: nxt()
        A("s_mov_b32 m0, 2\ns_mov_b32 s%d, s%d" % (S_OFF, S_TBL + 2))
        self.wait("V0")
        it = self.iteration(1)
        idx = [k for k, s in enumerate(it) if s.startswith("v_mfma")]
        tail = it[idx[24]:]
        nm = 0
        for s in tail:
            if s.startswith("v_mfma"):
                s = self.mfma_pv('a', nm, 0, first=True); nm += 1
            if s == "@WAIT_K": self.wait("K1"); continue
            if s.startswith("buffer_load"): M(s, "K2"); continue
            A(s)
        self.stamp(5)
        self.cstamp(8)
        A("s_mov_b32 s%d, 4" % S_LIM)
        A("global_load_dword v%d, v%d, %s sc1      ; re-check of group A (only looked at when the start was partial)" % (V_FA, V_PA, sp(S_WS)))
        A(".p2align 6")
        A("L_loop:")
        self.emit_iter(self.iteration(0))
        A("s_cmp_eq_u32 m0, s%d\ns_cbranch_scc1 L_hook" % S_HOOK)
        A("L_mid:")
        self.emit_iter(self.iteration(1))
        A("s_cmp_lt_u32 m0, s%d\ns_cbranch_scc1 L_loop" % S_LIM)
        A("s_cmp_eq_u32 m0, 16\ns_cbranch_scc1 L_tail")
        A("s_cmp_eq_u32 m0, 6\ns_cbranch_scc1 L_ev2")
        A("global_load_dword v%d, v%d, %s sc1" % (V_FA, V_PB, sp(S_WS)))
        A("s_mov_b32 s%d, 6\ns_branch L_loop" % S_LIM)
        A("L_ev2:")
        A("s_mov_b32 s%d, 16" % S_LIM)
        A("v_cmp_ne_u32 vcc, s%d, v%d\ns_cbranch_vccz L_loop" % (S_TAG, V_FA))
        self.poll(V_PB)
        A("s_branch L_loop")
        A("L_hook:")
        A("s_waitcnt vmcnt(16)")
        A("v_cmp_ne_u32 vcc, s%d, v%d\ns_cbranch_vccz L_mid" % (S_TAG, V_FA))
        self.poll(V_PA)
        A("s_branch L_mid")
        A("L_tail:")
        it = self.iteration(0, loads=False)
        for s in it:
            if s in ("@WAIT_V", "@WAIT_K"): s = "s_waitcnt vmcnt(0)"
            A(s)
        it = self.iteration(1, loads=False)
        idx = [k for k, s in enumerate(it) if s.startswith("v_mfma")]
        nm = 0
        for k, s in enumerate(it[:idx[16]]):
            if s.startswith("v_mfma") and k < idx[8]: continue
            if k >= idx[8] and not s.startswith("v_mfma"):
                isb = (s == self.op_f('b')) or any(s == self.op_c('b', c) for c in range(8))
                if not isb: continue
            if s.startswith("@"): continue
            if s.startswith("v_exp"):
                A(s); A("s_nop 0"); continue
            if s.startswith("v_mfma"):
                if nm in (0, 4): A("s_nop 1")
                nm += 1
            A(s)
        self.stamp(6)
        self.cstamp(9)

    def epilogue(self):
        A = self.A
        ln = V_LANE
        def regs(d):
            dh, gh = d >> 1, d & 1
            return [A_O(x, 2 * dh + e) + 8 * gh + 4 * gg for x in 'ab' for e in range(2) for gg in range(2)]
        for x in 'ab':
            l = V_L[x]; t = V_T[x]
            A("v_mov_b32 v%d, v%d\ns_nop 1\nv_permlane32_swap_b32 v%d, v%d\ns_nop 1\nv_add_f32 v%d, v%d, v%d" % (t, l, l, t, V_NM[x] + 1, l, t))
        A("s_lshl_b32 s%d, s%d, 10\ns_add_u32 s%d, s%d, %d" % (S_T0, S_W, S_T0, S_T0, L_ST))
        A("v_lshlrev_b32 v6, 3, v%d\nv_add_u32 v7, s%d, v6" % (ln, S_T0))
        A("ds_write_b64 v7, v[%d:%d]" % (V_NM['a'], V_NM['a'] + 1))
        A("ds_write_b64 v7, v[%d:%d] offset:512" % (V_NM['b'], V_NM['b'] + 1))
        A("s_nop 7")
        for d in range(4):
            skip = self.label("L_skipw")
            A("s_cmp_eq_u32 s%d, %d\ns_cbranch_scc1 %s" % (S_W, d, skip))
            A("s_sub_u32 s%d, s%d, %d\ns_and_b32 s%d, s%d, 3\ns_lshl_b32 s%d, s%d, 13\ns_add_u32 s%d, s%d, %d" %
              (S_T0, S_W, d + 1, S_T0, S_T0, S_T0, S_T0, S_T0, S_T0, L_O + d * 3 * 8192))
            A("v_add_u32 v7, s%d, v%d" % (S_T0, V_KOFF0))
            for idx, a in enumerate(regs(d)): A("ds_write_b128 v7, a[%d:%d] offset:%d" % (a, a + 3, idx * 1024))
            A("%s:" % skip)
        own = 128
        done = self.label("L_own")
        for d in range(4):
            nxt = self.label("L_ownn")
            if d < 3: A("s_cmp_lg_u32 s%d, %d\ns_cbranch_scc1 %s" % (S_W, d, nxt))
            for idx, a in enumerate(regs(d)):
                for i in range(4): A("v_accvgpr_read_b32 v%d, a%d" % (own + idx * 4 + i, a + i))
            if d < 3: A("s_branch %s\n%s:" % (done, nxt))
        A("%s:" % done)
        A("s_waitcnt lgkmcnt(0)\ns_barrier")
        st = 16
        for k in range(3):
            A("s_add_u32 s%d, s%d, %d\ns_and_b32 s%d, s%d, 3\ns_lshl_b32 s%d, s%d, 10\ns_add_u32 s%d, s%d, %d" % (S_T0, S_W, k + 1, S_T0, S_T0, S_T0, S_T0, S_T0, S_T0, L_ST))
            A("v_add_u32 v7, s%d, v6" % S_T0)
            A("ds_read_b64 v[%d:%d], v7\nds_read_b64 v[%d:%d], v7 offset:512" % (st + 4 * k, st + 4 * k + 1, st + 4 * k + 2, st + 4 * k + 3))
        A("s_mul_i32 s%d, s%d, 24576\ns_add_u32 s%d, s%d, %d\nv_add_u32 v7, s%d, v%d" % (S_T0, S_W, S_T0, S_T0, L_O, S_T0, V_KOFF0))
        pb = 160
        order = [(k, idx) for idx in range(8) for k in range(3)]
        for (k, idx) in order[:9]:
            r = pb + (k * 8 + idx) * 4
            A("ds_read_b128 v[%d:%d], v7 offset:%d" % (r, r + 3, k * 8192 + idx * 1024))
        A("s_waitcnt lgkmcnt(9)")
        F = 32
        for xi, x in enumerate('ab'):
            nms = [V_NM[x]] + [st + 4 * k + 2 * xi for k in range(3)]
            ls = [V_NM[x] + 1] + [st + 4 * k + 2 * xi + 1 for k in range(3)]
            mn = 40
            A("v_min3_f32 v%d, v%d, v%d, v%d\nv_min_f32 v%d, v%d, v%d" % (mn, nms[0], nms[1], nms[2], mn, mn, nms[3]))
            for s in range(4): A("v_sub_f32 v%d, v%d, v%d" % (F + 4 * xi + s, mn, nms[s]))
            for s in range(4): A("v_exp_f32 v%d, v%d" % (F + 4 * xi + s, F + 4 * xi + s))
            A("s_nop 0")
            A("v_mul_f32 v41, v%d, v%d" % (F + 4 * xi, ls[0]))
            for s in range(1, 4): A("v_fmac_f32 v41, v%d, v%d" % (F + 4 * xi + s, ls[s]))
            A("v_rcp_f32 v41, v41\ns_nop 0")
            for s in range(4): A("v_mul_f32 v%d, v%d, v41" % (F + 4 * xi + s, F + 4 * xi + s))
        A("s_lshl_b32 s%d, s%d, 19\ns_lshl_b32 s%d, s%d, 14\ns_add_u32 s%d, s%d, s%d\ns_lshl_b32 s%d, s%d, 6\ns_add_u32 s%d, s%d, s%d" %
          (S_T0, S_H, S_T1, S_I, S_T0, S_T0, S_T1, S_T1, S_W, S_T0, S_T0, S_T1))
        A("v_and_b32 v42, 31, v%d\nv_lshrrev_b32 v43, 5, v%d\nv_lshlrev_b32 v42, 8, v42\nv_lshl_add_u32 v42, v43, 4, v42\nv_add_u32 v42, s%d, v42\nv_add_u32 v43, 8192, v42" % (ln, ln, S_T0))
        issued = 9
        ob = 48
        for idx in range(8):
            xi = idx >> 2
            while issued < min(24, 3 * idx + 12):
                k, i2 = order[issued]
                r = pb + (k * 8 + i2) * 4
                A("ds_read_b128 v[%d:%d], v7 offset:%d" % (r, r + 3, k * 8192 + i2 * 1024)); issued += 1
            A("s_waitcnt lgkmcnt(%d)" % (issued - 3 * idx - 3))
            for pr in range(2):
                r = own + idx * 4 + 2 * pr
                A("v_pk_mul_f32 %s, %s, %s op_sel_hi:[1,0]" % (P2(r), P2(r), P2(F + 4 * xi)))
                for k in range(3):
                    fr = F + 4 * xi + 1 + k
                    q = fr & 1
                    A("v_pk_fma_f32 %s, %s, %s, %s op_sel:[0,%d,0] op_sel_hi:[1,%d,1]" % (P2(r), P2(pb + (k * 8 + idx) * 4 + 2 * pr), P2(fr & ~1), P2(r), q, q))
            if (idx & 3) >= 2:
                gg = idx & 1
                o = ob + (xi * 2 + gg) * 4
                r0 = own + (xi * 4 + gg) * 4; r1 = own + (xi * 4 + 2 + gg) * 4
                for i in range(4): A("v_cvt_pk_bf16_f32 v%d, v%d, v%d" % (o + i, r0 + i, r1 + i))
                A("global_store_dwordx4 v%d, v[%d:%d], %s offset:%d %s" % (42 + xi, o, o + 3, sp(S_OUT), 32 * gg, self.omod))

    def dump_stamps(self):
        if not self.stamps: return
        A = self.A
        A("s_lshl_b32 s76, s2, 2\ns_add_u32 s76, s76, s%d\ns_lshl_b32 s76, s76, 6\ns_add_u32 s76, s76, %d" % (S_W, 16 << 20))
        A("v_mov_b32 v2, s76\ns_mov_b64 exec, 1")
        for k in range(16): A("v_mov_b32 v1, s%d\nglobal_store_dword v2, v1, %s offset:%d" % (80 + k, sp(S_WS), 4 * k))
        A("s_mov_b64 exec, -1")

    def build(self):
        A = self.A
        K = NAME + "_kernel"
        self.cold = []
        self.compute_waits()
        hdr = open("cdna_kernels/%s.s.ref" % NAME).read().split("; @launch")[0]
        A(hdr.rstrip("\n"))
        A("; @launch grid=(256,1,1) block=(256,1,1) lds=%d" % LDS_BYTES)
        A('.amdgcn_target "amdgcn-amd-amdhsa--gfx950"\n.text')
        A(".globl %s\n.p2align 8\n.type %s,@function\n%s:" % (K, K, K))
        self.phase1()
        self.main()
        self.epilogue()
        A("s_cmp_lg_u32 s2, 0\ns_cbranch_scc1 L_noep\ns_cmp_lg_u32 s%d, 0\ns_cbranch_scc1 L_noep" % S_W)
        A("v_mov_b32 v1, %d\nv_mov_b32 v2, s%d\ns_mov_b64 exec, 1\nglobal_store_dword v1, v2, %s sc1\ns_mov_b64 exec, -1" % (WS_EPOCH, S_TAG, sp(S_WS)))
        A("L_noep:")
        self.stamp(7)
        self.dump_stamps()
        if self.probe is not None:
            A("s_add_u32 s100, s%d, 3000\nL_spin:\ns_memrealtime s[76:77]\ns_waitcnt lgkmcnt(0)\ns_sub_u32 s101, s100, s76\ns_cmp_gt_i32 s101, 0\ns_cbranch_scc1 L_spin" % (80 + self.probe))
        A("L_end:\ns_endpgm")
        live = [st for st in self.stubs if any(s.endswith(' ' + st[0]) for s in self.L)]
        for stub, ret, x in live:
            A("%s:\ns_call_b64 s[%d:%d], L_sub_%s\ns_branch %s" % (stub, S_RET, S_RET + 1, x, ret))
        self.reorder()
        for lab, ret, regs in self.cold:
            A("%s:" % lab)
            for k in range(0, len(regs), 2): self.round_pair(regs[k])
            A("s_branch %s" % ret)
        self.slow_sub('a'); self.slow_sub('b')
        A('.section .rodata,"a"')
        A('.p2align 6\n.amdhsa_kernel %s\n  .amdhsa_next_free_vgpr 512\n  .amdhsa_next_free_sgpr 102\n  .amdhsa_accum_offset 256\n'
          '  .amdhsa_group_segment_fixed_size 0\n  .amdhsa_kernarg_size 112\n  .amdhsa_user_sgpr_count 2\n'
          '  .amdhsa_user_sgpr_kernarg_segment_ptr 1\n  .amdhsa_system_sgpr_workgroup_id_x 1\n.end_amdhsa_kernel' % K)
        return "\n".join(self.L) + "\n"

if __name__ == "__main__":
    ap = argparse.ArgumentParser()
    ap.add_argument("out")
    ap.add_argument("--stamps", action="store_true")
    ap.add_argument("--probe", type=int, default=None)
    ap.add_argument("--sleep", type=int, default=4)
    ap.add_argument("--fs", type=int, default=6)
    ap.add_argument("--omod", default="")
    ap.add_argument("--qsplit", type=int, default=9)
    ap.add_argument("--qt", default=""); ap.add_argument("--kt", default="")
    a = ap.parse_args()
    g = Gen(**vars(a))
    open(a.out, "w").write(g.build())
    print("wv", g.wv, "wk", g.wk, "lines", len(g.L))
```

```python
import sys, struct, argparse
NAME = "standalone__kv_cache_quant_pre_rope_vs_post_rope__prompt"
def f32bits(x): return struct.unpack("<I", struct.pack("<f", x))[0]
CSCALE = 1.4426950408889634 * (128.0 ** -0.5)

V_FA = 0
V_KOFF0, V_KOFF1, V_VOFF0, V_VOFF1 = 1, 2, 3, 4
V_LANE, V_PA, V_STAMP = 5, 6, 7
V_T = {'a': 8, 'b': 9}
V_L = {'a': 10, 'b': 11}
V_TMP0, V_TMP1, V_TMP2, V_TMP3 = 12, 13, 14, 15
V_S = {'a': 16, 'b': 32}
V_NM = {'a': 48, 'b': 64}
V_E = {'a': 80, 'b': 96}
V_P = {'a': 112, 'b': 120}
V_K = [128, 160]
V_V = [192, 224]
def A_O(x, t): return ((0 if x == 'a' else 1) * 4 + t) * 16
def A_Q(x, ks): return 128 + ((0 if x == 'a' else 1) * 8 + ks) * 4
A_K0, A_K1, A_V = 192, 208, 224
S_Q, S_QK, S_KS, S_KZ, S_QV, S_VS, S_VZ, S_QC, S_QS, S_KC, S_KSN, S_OUT, S_DBG, S_WS = [4 + 2 * i for i in range(14)]
S_H, S_I, S_W, S_TAG = 32, 33, 34, 35
S_T0, S_T1, S_T2, S_T3 = 36, 37, 38, 39
S_SRD = 40
S_OFF, S_THR = 44, 45
S_C = 46
S_TBL = 48
S_RET = 66
S_SC = 68
S_CNT, S_LIM, S_HOOK = 3, 65, 28
S_KH, S_VK, S_ARG = 29, 0, 1
L_KT = 0
L_TAB = 9216
L_Q = L_TAB + 16384
L_ST = L_Q + 16 * 1040
L_O = L_ST + 4096
LDS_BYTES = L_O + 96 * 1024
WS_FK = 8 << 20
WS_FV = WS_FK + (512 << 10)
WS_EPOCH = 9 << 20
THRESH = 1024.0
P2 = lambda r: "v[%d:%d]" % (r, r + 1)
sp = lambda r: "s[%d:%d]" % (r, r + 1)

class Gen:
    def __init__(self, **kw):
        self.L = []
        self.uid = 0
        self.stamps = kw.get("stamps", False)
        self.probe = kw.get("probe", None)
        self.sleep = kw.get("sleep", 4)
        self.fs = kw.get("fs", 6)
        self.abl = kw.get("abl", "")
        self.omod = kw.get("omod", "")
        self.qsplit = kw.get("qsplit", 9)
        self.pollearly = kw.get("pollearly", False)
        self.r2pos = kw.get("r2pos", 0)
        self.vpre = kw.get("vpre", 4)
        self.r1pos = kw.get("r1pos", 1)
        self.hshare = kw.get("hshare", 0)
        self.qbar = kw.get("qbar", 0)
        self.qt = kw.get("qt", ""); self.kt = kw.get("kt", "")
        self.vm = []
    def A(self, s):
        for line in s.split("\n"): self.L.append(line)
    def label(self, base):
        self.uid += 1
        return "%s_%d" % (base, self.uid)
    def M(self, s, tag):
        self.A(s); self.vm.append(tag)
    def wait(self, tag, extra=""):
        last = max(k for k, t in enumerate(self.vm) if t == tag)
        n = len(self.vm) - 1 - last
        assert n <= 63
        self.A("s_waitcnt vmcnt(%d)%s" % (n, extra))
    def cstamp(self, idx):
        if self.stamps: self.A("s_memtime s[100:101]\ns_waitcnt lgkmcnt(0)\nv_writelane_b32 v%d, s100, %d" % (V_STAMP, idx))
    def stamp(self, idx):
        if self.probe is not None:
            if idx != self.probe: return
        elif not self.stamps: return
        self.A("s_memrealtime s[100:101]\ns_waitcnt lgkmcnt(0)\nv_writelane_b32 v%d, s100, %d" % (V_STAMP, idx))

    def unpack(self, dst, src):
        self.A("v_lshlrev_b32 v%d, 16, v%d\nv_and_b32 v%d, 0xffff0000, v%d" % (dst, src, dst + 1, src))
    def round_pair(self, r):
        self.A("v_cvt_pk_bf16_f32 v%d, v%d, v%d" % (r + 1, r, r + 1))
        self.A("v_lshlrev_b32 v%d, 16, v%d\nv_and_b32 v%d, 0xffff0000, v%d" % (r, r + 1, r + 1, r + 1))
    def int_to_f32(self, regs, tmp):
        A = self.A
        for r in regs: A("v_cvt_f32_i32 v%d, v%d" % (r, r))
        A("v_max3_f32 v%d, |v%d|, |v%d|, 0" % (tmp, regs[0], regs[1]))
        for k in range(2, len(regs), 2):
            A("v_max3_f32 v%d, |v%d|, |v%d|, v%d" % (tmp, regs[k], regs[k + 1], tmp))
        lab = self.label("L_big"); ret = self.label("L_bigret")
        A("v_cmp_lt_f32 vcc, 0x43800000, v%d" % tmp)
        A("s_cbranch_vccnz %s" % lab)
        A("%s:" % ret)
        self.cold.append((lab, ret, list(regs)))
    def unpack_tab(self, dst, src):
        for p in range(4):
            for k in range(4): self.unpack(dst + 8 * p + 2 * k, src + 4 * k + p)
    def rope_p(self, a, b, tab, t, u, o1, o2):
        A = self.A
        A("v_pk_mul_f32 %s, %s, %s" % (P2(t), P2(a), P2(tab)))
        A("v_pk_mul_f32 %s, %s, %s" % (P2(u), P2(b), P2(tab + 2)))
        A("v_pk_fma_f32 %s, %s, %s, %s neg_lo:[1,0,0] neg_hi:[1,0,0]" % (P2(t), P2(b), P2(tab + 4), P2(t)))
        A("v_pk_fma_f32 %s, %s, %s, %s" % (P2(u), P2(a), P2(tab + 6), P2(u)))
        A("v_cvt_pk_bf16_f32 v%d, v%d, v%d" % (o1, t, t + 1))
        A("v_cvt_pk_bf16_f32 v%d, v%d, v%d" % (o2, u, u + 1))
    def k_dequant(self, rb, sc, tmp):
        A = self.A
        z = sc + 1
        self.int_to_f32(list(range(rb, rb + 16)), tmp)
        A("v_lshlrev_b32 v%d, 16, v%d\nv_lshlrev_b32 v%d, 16, v%d" % (sc, sc, z, z))
        A("v_mul_f32 v%d, v%d, v%d" % (z, z, sc))
        for p in range(8):
            r = rb + 2 * p
            A("v_pk_fma_f32 %s, %s, %s, %s op_sel:[0,0,1] op_sel_hi:[1,0,1] neg_lo:[0,0,1] neg_hi:[0,0,1]" % (P2(r), P2(r), P2(sc), P2(sc)))
    def v_compute(self, x, rawsc, sc, nz, tmp, o):
        A = self.A
        for p in range(4):
            self.unpack(sc + 2 * p, rawsc + p)
            self.unpack(nz + 2 * p, rawsc + 4 + p)
        for p in range(4): A("v_pk_mul_f32 %s, %s, %s" % (P2(nz + 2 * p), P2(nz + 2 * p), P2(sc + 2 * p)))
    def v_compute2(self, x, sc, nz, tmp, o):
        A = self.A
        self.int_to_f32(list(range(x, x + 16)), tmp)
        for j in range(8):
            r = x + 2 * j; q = j & 1
            A("v_pk_fma_f32 %s, %s, %s, %s op_sel:[0,%d,%d] op_sel_hi:[1,%d,%d] neg_lo:[0,0,1] neg_hi:[0,0,1]" %
              (P2(r), P2(r), P2(sc + (j & ~1)), P2(nz + (j & ~1)), q, q, q, q))
        for e in range(2):
            for jj in range(4):
                A("v_cvt_pk_bf16_f32 v%d, v%d, v%d" % (o + 4 * e + jj, x + 4 * jj + e, x + 4 * jj + 2 + e))

    def raw_loads(self, f, rk, rv, bq, bs, bv, bvs, tagk, tagv):
        o = []
        for k, off in enumerate((0, 16, 256, 272)):
            o.append(("global_load_dwordx4 %s[%d:%d], v%d, %s offset:%d nt" % (f, rk + 4 * k, rk + 4 * k + 3, bq, sp(S_QK), off), tagk))
        o.append(("global_load_ushort %s%d, v%d, %s" % (f, rk + 16, bs, sp(S_KS)), tagk))
        o.append(("global_load_ushort %s%d, v%d, %s" % (f, rk + 17, bs, sp(S_KZ)), tagk))
        for j in range(8):
            off = (8 * (j >> 2) + (j & 3)) * 512 - 2560
            o.append(("global_load_dwordx2 %s[%d:%d], v%d, %s offset:%d nt" % (f, rv + 2 * j, rv + 2 * j + 1, bv, sp(S_QV), off), tagv))
        for q, sr in enumerate((S_VS, S_VZ)):
            for hf in range(2):
                r = rv + 16 + 4 * q + 2 * hf
                o.append(("global_load_dwordx2 %s[%d:%d], v%d, %s offset:%d" % (f, r, r + 1, bvs, sp(sr), 16 * hf), tagv))
        return o

    def flag_store(self, mask):
        A = self.A
        A("v_mov_b32 v%d, s%d" % (V_TMP3, S_TAG))
        A("s_mov_b64 exec, %d" % mask)
        self.M("global_store_dword v%d, v%d, %s sc1" % (V_FA, V_TMP3, sp(S_WS)), "flag")
        A("s_mov_b64 exec, -1")

    def poll(self, reg):
        A = self.A
        lab = self.label("L_poll"); done = self.label("L_polled")
        A("s_mov_b32 s%d, 0" % S_CNT)
        A("%s:" % lab)
        A("global_load_dword v%d, v%d, %s sc1" % (V_TMP0, reg, sp(S_WS)))
        A("s_add_u32 s%d, s%d, 1" % (S_CNT, S_CNT))
        A("s_waitcnt vmcnt(0)")
        A("v_cmp_ne_u32 vcc, s%d, v%d" % (S_TAG, V_TMP0))
        A("s_cbranch_vccz %s" % done)
        if self.sleep: A("s_sleep %d" % self.sleep)
        A("s_cmp_lt_u32 s%d, 0x8000\ns_cbranch_scc1 %s" % (S_CNT, lab))
        A("%s:" % done)

    def k_raw_loads(self, slot, vaddr, tag, M):
        for k, off in enumerate((0, 16, 256, 272)):
            M("global_load_dwordx4 a[%d:%d], v%d, %s offset:%d nt" % (slot + 4 * k, slot + 4 * k + 3, vaddr, sp(S_QK), off), tag)
    def v_raw_loads(self, vaddr, tag, M):
        for j in range(8):
            off = (8 * (j >> 2) + (j & 3)) * 512 - 2560
            M("global_load_dwordx4 a[%d:%d], v%d, %s offset:%d nt" % (A_V + 4 * j, A_V + 4 * j + 3, vaddr, sp(S_QV), off), tag)
    def k_src_addr(self, dst, t0, t1, shead):
        A = self.A
        A("s_lshl_b32 s%d, s2, 12\ns_add_u32 s%d, s%d, s%d" % (S_T0, S_T0, S_T0, shead))
        A("v_lshrrev_b32 v%d, 3, v%d\nv_and_b32 v%d, 7, v%d\nv_lshlrev_b32 v%d, 9, v%d\nv_lshl_add_u32 v%d, v%d, 5, v%d\nv_add_u32 v%d, s%d, v%d" %
          (t0, V_LANE, t1, V_LANE, dst, t0, dst, t1, dst, dst, S_T0, dst))
    def v_src_addr(self, dst, t0, t1):
        A = self.A
        A("s_lshl_b32 s%d, s%d, 20\ns_lshl_b32 s%d, s%d, 9\ns_add_u32 s%d, s%d, s%d\ns_add_u32 s%d, s%d, 2560" % (S_T0, S_H, S_T1, S_VK, S_T0, S_T0, S_T1, S_T0, S_T0))
        A("v_lshrrev_b32 v%d, 5, v%d\nv_and_b32 v%d, 31, v%d\nv_lshlrev_b32 v%d, 11, v%d\nv_lshl_add_u32 v%d, v%d, 4, v%d\nv_add_u32 v%d, s%d, v%d" %
          (t0, V_LANE, t1, V_LANE, dst, t0, dst, t1, dst, dst, S_T0, dst))
    def next_head(self, dst):
        self.A("s_add_u32 s%d, s%d, 0x100000\ns_and_b32 s%d, s%d, 0x300000\ns_and_b32 s%d, s%d, 0x400000\ns_or_b32 s%d, s%d, s%d" % (S_T2, S_KH, S_T2, S_T2, dst, S_KH, dst, dst, S_T2))

    def subs(self):
        A = self.A
        X, Y, O, t = V_S['a'], V_E['a'], V_P['a'], V_TMP0
        fs = self.fs
        rd = lambda v, a: A("v_accvgpr_read_b32 v%d, a%d" % (v, a))
        for n, slot in enumerate((A_K0, A_K1)):
            A("L_ktask%d:" % n)
            if n == 0: A("s_mov_b32 s%d, s%d" % (S_ARG, S_KH))
            else: self.next_head(S_ARG)
            for r in range(16): rd(X + r, slot + r)
            for q in range(4):
                if q: A("s_lshl_b64 exec, -1, %d" % (16 * q))
                A("v_mov_b32 v%d, s%d\nv_mov_b32 v%d, s%d" % (Y + 12, S_SC + 8 * n + q, Y + 13, S_SC + 8 * n + 4 + q))
            A("s_mov_b64 exec, -1")
            if n == 0: A("s_branch L_kbody")
        A("L_kbody:")
        A("s_and_b32 s%d, s%d, 1\ns_lshl_b32 s%d, s%d, 13\nv_add_u32 v%d, s%d, v%d" % (S_T0, S_W, S_T0, S_T0, t + 1, S_T0, V_KOFF0))
        A("ds_read_b128 v[%d:%d], v%d offset:%d\nds_read_b128 v[%d:%d], v%d offset:%d" % (Y, Y + 3, t + 1, L_TAB, Y + 4, Y + 7, t + 1, L_TAB + 1024))
        A("v_lshrrev_b32 v%d, 3, v%d\nv_and_b32 v%d, 7, v%d" % (Y + 14, V_LANE, Y + 15, V_LANE))
        A("v_lshlrev_b32 v%d, 4, v%d\nv_and_b32 v%d, 16, v%d\nv_lshrrev_b32 v%d, v%d, v%d\nv_lshrrev_b32 v%d, v%d, v%d" % (t, Y + 14, t, t, Y + 12, t, Y + 12, Y + 13, t, Y + 13))
        self.k_dequant(X, Y + 12, t)
        A("s_mul_i32 s%d, s%d, 2304" % (S_T0, S_W))
        A("v_mul_u32_u24 v%d, 144, v%d\nv_lshl_add_u32 v%d, v%d, 4, v%d\nv_add_u32 v%d, s%d, v%d" % (t + 2, Y + 15, t + 2, Y + 14, t + 2, t + 2, S_T0, t + 2))
        A("v_mul_u32_u24 v%d, 144, v%d\nv_lshl_add_u32 v%d, v%d, 4, v%d\nv_add_u32 v%d, s%d, v%d" % (t + 3, Y + 14, t + 3, Y + 15, t + 3, t + 3, S_T0, t + 3))
        for p in range(4):
            A("s_waitcnt lgkmcnt(0)")
            self.rope_p(X + 2 * p, X + 8 + 2 * p, Y, Y + 8, Y + 10, O + p, O + 4 + p)
            if p < 3:
                A("ds_read_b128 v[%d:%d], v%d offset:%d\nds_read_b128 v[%d:%d], v%d offset:%d" % (Y, Y + 3, t + 1, L_TAB + 2048 * (p + 1), Y + 4, Y + 7, t + 1, L_TAB + 2048 * (p + 1) + 1024))
        A("ds_write_b128 v%d, v[%d:%d]\nds_write_b128 v%d, v[%d:%d] offset:1152" % (t + 2, O, O + 3, t + 2, O + 4, O + 7))
        A("s_lshr_b32 s%d, s2, 2\ns_lshl_b32 s%d, s%d, 14\ns_and_b32 s%d, s2, 3\ns_lshl_b32 s%d, s%d, 7\ns_add_u32 s%d, s%d, s%d\ns_add_u32 s%d, s%d, s%d" %
          (S_T0, S_T0, S_T0, S_T1, S_T1, S_T1, S_T0, S_T0, S_T1, S_T0, S_T0, S_ARG))
        A("v_lshlrev_b32 v%d, 10, v%d\nv_lshl_add_u32 v%d, v%d, 4, v%d\nv_add_u32 v%d, s%d, v%d" % (t, Y + 14, t, Y + 15, t, t, S_T0, t))
        A("s_waitcnt lgkmcnt(0)")
        A("ds_read_b128 v[%d:%d], v%d\nds_read_b128 v[%d:%d], v%d offset:1152" % (O, O + 3, t + 3, O + 4, O + 7, t + 3))
        A("s_lshr_b32 s%d, s%d, 12\ns_add_u32 s%d, s%d, s2\ns_lshl_b32 s%d, s%d, %d\ns_add_u32 s%d, s%d, %d\nv_mov_b32 v%d, s%d" % (S_T0, S_ARG, S_T0, S_T0, S_T0, S_T0, fs, S_T0, S_T0, WS_FK, V_FA, S_T0))
        A("s_waitcnt lgkmcnt(0)")
        A("global_store_dwordx4 v%d, v[%d:%d], %s sc1\nglobal_store_dwordx4 v%d, v[%d:%d], %s offset:512 sc1" % (t, O, O + 3, sp(S_WS), t, O + 4, O + 7, sp(S_WS)))
        A("s_setpc_b64 s[%d:%d]" % (S_RET, S_RET + 1))
        A("L_vtask:")
        for hh in range(2):
            if hh: A("s_lshl_b64 exec, -1, 32")
            for z in range(2):
                for k, dw in enumerate((0, 1, 4, 5)): A("v_mov_b32 v%d, s%d" % (X + 4 * z + k, S_SC + 16 + 8 * z + dw + 2 * hh))
        A("s_mov_b64 exec, -1")
        self.v_compute(None, X, Y, Y + 8, None, None)
        A("s_lshr_b32 s%d, s%d, 5\ns_lshl_b32 s%d, s%d, 14\ns_bfe_u32 s%d, s%d, 0x10004\ns_lshl_b32 s%d, s%d, 12\ns_add_u32 s%d, s%d, s%d\ns_lshl_b32 s%d, s%d, 20\ns_add_u32 s%d, s%d, s%d\nv_add_u32 v%d, s%d, v%d" %
          (S_T0, S_VK, S_T0, S_T0, S_T1, S_VK, S_T1, S_T1, S_T0, S_T0, S_T1, S_T1, S_H, S_T0, S_T0, S_T1, t + 1, S_T0, V_VOFF0))
        for hf in range(2):
            for j in range(8):
                for e in range(2): rd(X + 2 * j + e, A_V + 4 * j + 2 * hf + e)
            self.v_compute2(X, Y, Y + 8, t, O)
            A("global_store_dwordx4 v%d, v[%d:%d], %s offset:%d sc1\nglobal_store_dwordx4 v%d, v[%d:%d], %s offset:%d sc1" %
              (t + 1, O, O + 3, sp(S_WS), 2048 * hf, t + 1, O + 4, O + 7, sp(S_WS), 2048 * hf + 1024))
        A("s_lshl_b32 s%d, s%d, 5\ns_add_u32 s%d, s%d, s%d\ns_lshl_b32 s%d, s%d, 2\ns_xor_b32 s%d, s%d, 2\ns_add_u32 s%d, s%d, s%d\ns_lshl_b32 s%d, s%d, %d\ns_add_u32 s%d, s%d, %d\nv_mov_b32 v%d, s%d" %
          (S_T0, S_H, S_T0, S_T0, S_I, S_T0, S_T0, S_T1, S_W, S_T0, S_T0, S_T1, S_T0, S_T0, fs, S_T0, S_T0, WS_FV, V_FA, S_T0))
        A("s_setpc_b64 s[%d:%d]" % (S_RET, S_RET + 1))

    def call_by_role(self, lo, hi):
        A = self.A
        l1 = self.label("L_role"); l2 = self.label("L_roled")
        A("s_cmp_ge_u32 s%d, 2\ns_cbranch_scc1 %s" % (S_W, l1))
        A("s_call_b64 s[%d:%d], %s\ns_branch %s" % (S_RET, S_RET + 1, lo, l2))
        A("%s:\ns_call_b64 s[%d:%d], %s\n%s:" % (l1, S_RET, S_RET + 1, hi, l2))

    def phase1(self):
        A = self.A; M = self.M
        ln = V_LANE
        AQ, AT, LQ, VT = 32, 33, 34, 35
        RT, UT, RQ, TB = 48, 192, 128, 176
        fs = self.fs
        nul = lambda s_, t_: A(s_)
        A("s_cmp_ge_u32 s2, 256\ns_cbranch_scc1 L_end")
        A("s_load_dwordx16 s[4:19], s[0:1], 0\ns_load_dwordx8 s[20:27], s[0:1], 64\ns_load_dwordx2 s[30:31], s[0:1], 104")
        A("v_lshrrev_b32 v1, 6, v0\nv_and_b32 v%d, 63, v0" % ln)
        hb = self.hshare
        if hb == 0:
            A("s_and_b32 s%d, s2, 7\ns_lshr_b32 s%d, s2, 3" % (S_H, S_I))
        else:
            m = (1 << hb) - 1
            A("s_and_b32 s%d, s2, %d\ns_bfe_u32 s%d, s2, 0x%x\ns_or_b32 s%d, s%d, s%d" % (S_H, 7 & ~m, S_T0, (hb << 16) | 3, S_H, S_H, S_T0))
            A("s_lshr_b32 s%d, s2, %d\ns_lshl_b32 s%d, s%d, %d\ns_and_b32 s%d, s2, %d\ns_or_b32 s%d, s%d, s%d" % (S_I, 3 + hb, S_I, S_I, hb, S_T0, m, S_I, S_I, S_T0))
        A("v_readfirstlane_b32 s%d, v1" % S_W)
        self.stamp(0)
        A("s_lshr_b32 s%d, s2, 2\ns_and_b32 s%d, s%d, 2\ns_sub_u32 s%d, s%d, s%d\ns_and_b32 s%d, s%d, 3\ns_and_b32 s%d, s%d, 1\ns_lshl_b32 s%d, s%d, 2\ns_add_u32 s%d, s%d, s%d\ns_lshl_b32 s%d, s%d, 20" %
          (S_T0, S_T1, S_W, S_T1, S_T1, S_T0, S_T1, S_T1, S_T2, S_W, S_T2, S_T2, S_T1, S_T1, S_T2, S_KH, S_T1))
        A("s_xor_b32 s%d, s%d, 2\ns_sub_u32 s%d, s%d, s%d\ns_and_b32 s%d, s%d, 3\ns_lshl_b32 s%d, s%d, 5\ns_lshr_b32 s%d, s%d, 1\ns_lshl_b32 s%d, s%d, 7\ns_add_u32 s%d, s%d, s%d\ns_and_b32 s%d, s%d, 1\ns_lshl_b32 s%d, s%d, 4\ns_add_u32 s%d, s%d, s%d" %
          (S_T0, S_W, S_T0, S_T0, S_H, S_T0, S_T0, S_T0, S_T0, S_T1, S_I, S_T1, S_T1, S_T0, S_T0, S_T1, S_T1, S_I, S_T1, S_T1, S_LIM, S_T0, S_T1))
        self.k_src_addr(10, 8, 9, S_KH)
        A("s_lshl_b32 s%d, s2, 11\nv_lshlrev_b32 v%d, 8, v8\nv_lshl_add_u32 v%d, v9, 4, v%d\nv_add_u32 v%d, s%d, v%d" % (S_T0, AT, AT, AT, VT, S_T0, AT))
        A("; Q: row = 64 i + 16 w + 8u + (l>>3)")
        A("s_lshl_b32 s%d, s%d, 14\ns_lshl_b32 s%d, s%d, 12\ns_add_u32 s%d, s%d, s%d\ns_lshl_b32 s%d, s%d, 19\nv_add_u32 v%d, s%d, v%d\nv_add_u32 v%d, s%d, v%d" % (S_T0, S_I, S_T1, S_W, S_T0, S_T0, S_T1, S_T1, S_H, AT, S_T0, AT, AQ, S_T1, AT))
        A("s_waitcnt lgkmcnt(0)")
        A("s_mov_b32 s%d, s%d" % (S_VK, S_LIM))
        A("s_cmp_ge_u32 s%d, 2\ns_cbranch_scc1 L_r0v" % S_W)
        self.k_raw_loads(A_K0, 10, "r0", nul)
        for k, (sr, off) in enumerate(((S_KC, 0), (S_KC, 128), (S_KSN, 0), (S_KSN, 128))):
            A("global_load_dwordx4 v[%d:%d], v%d, %s offset:%d %s" % (RT + 4 * k, RT + 4 * k + 3, VT, sp(sr), off, self.kt))
        A("s_branch L_r0d\nL_r0v:")
        self.v_src_addr(11, 12, 13)
        self.v_raw_loads(11, "r0", M)
        A("L_r0d:")
        ql = []
        for u in range(2):
            b = RQ + 24 * u
            for (r, v, sr, off, m) in ((0, AQ, S_Q, 0, "nt"), (4, AQ, S_Q, 128, "nt"), (8, AT, S_QC, 0, self.qt), (12, AT, S_QC, 128, self.qt), (16, AT, S_QS, 0, self.qt), (20, AT, S_QS, 128, self.qt)):
                ql.append(("global_load_dwordx4 v[%d:%d], v%d, %s offset:%d %s" % (b + r, b + r + 3, v, sp(sr), 2048 * u + off, m), "q%d" % u))
        self.next_head(S_ARG)
        A("s_lshl_b32 s%d, s2, 4\ns_lshr_b32 s%d, s%d, 8\ns_add_u32 s%d, s%d, s%d\ns_lshr_b32 s%d, s%d, 8\ns_add_u32 s%d, s%d, s%d" % (S_T0, S_T1, S_KH, S_T1, S_T1, S_T0, S_T2, S_ARG, S_T2, S_T2, S_T0))
        A("s_lshl_b32 s%d, s%d, 12\ns_lshl_b32 s%d, s%d, 1\ns_add_u32 s%d, s%d, s%d\ns_mov_b32 s%d, %d" % (S_T3, S_H, S_T0, S_VK, S_T3, S_T3, S_T0, S_T0, WS_EPOCH))
        A("s_load_dword s%d, %s, s%d" % (S_TAG, sp(S_WS), S_T0))
        A("s_load_dwordx4 s[%d:%d], %s, s%d\ns_load_dwordx4 s[%d:%d], %s, s%d" % (S_SC, S_SC + 3, sp(S_KS), S_T1, S_SC + 4, S_SC + 7, sp(S_KZ), S_T1))
        A("s_load_dwordx4 s[%d:%d], %s, s%d\ns_load_dwordx4 s[%d:%d], %s, s%d" % (S_SC + 8, S_SC + 11, sp(S_KS), S_T2, S_SC + 12, S_SC + 15, sp(S_KZ), S_T2))
        A("s_load_dwordx8 s[%d:%d], %s, s%d\ns_load_dwordx8 s[%d:%d], %s, s%d" % (S_SC + 16, S_SC + 23, sp(S_VS), S_T3, S_SC + 24, S_SC + 31, sp(S_VZ), S_T3))
        for s, t in ql[:self.qsplit]: M(s, t)
        A("v_lshlrev_b32 v%d, 4, v%d\nv_add_u32 v%d, 4096, v%d\nv_add_u32 v%d, 8192, v%d\nv_add_u32 v%d, 12288, v%d" % (V_KOFF0, ln, V_KOFF1, V_KOFF0, V_VOFF0, V_KOFF0, V_VOFF1, V_KOFF0))
        for t in range(4):
            for r in range(16): A("v_accvgpr_write_b32 a%d, 0" % (A_O('b', t) + r))
        A("s_waitcnt lgkmcnt(0)")
        A("s_mov_b32 s%d, 0x%08x\ns_mov_b32 s%d, 0x%08x\ns_mov_b32 s%d, 0x%08x" % (S_C, f32bits(CSCALE), S_C + 1, f32bits(CSCALE), S_THR, f32bits(THRESH)))
        A("s_lshr_b32 s%d, s%d, 1\ns_mul_i32 s%d, s%d, 8320\ns_and_b32 s%d, s%d, 1\ns_lshl_b32 s%d, s%d, 8\ns_add_u32 s%d, s%d, s%d\ns_add_u32 s%d, s%d, %d" %
          (S_T0, S_W, S_T0, S_T0, S_T1, S_W, S_T1, S_T1, S_T0, S_T0, S_T1, S_T0, S_T0, L_Q))
        A("v_mul_u32_u24 v%d, 1040, v9\nv_lshl_add_u32 v%d, v8, 4, v%d\nv_add_u32 v%d, s%d, v%d" % (LQ, LQ, LQ, LQ, S_T0, LQ))
        A("v_lshrrev_b32 v12, 5, v%d\nv_bfe_u32 v13, v%d, 3, 2\nv_lshl_add_u32 v13, v13, 2, s%d" % (ln, ln, S_W))
        A("v_subrev_u32 v14, s%d, v12\nv_and_b32 v14, 3, v14\nv_lshl_add_u32 v14, v13, 2, v14\nv_lshlrev_b32 v14, 2, v14\nv_add_u32 v14, v9, v14" % S_H)
        A("s_lshl_b32 s%d, s%d, 8\nv_add_u32 v14, s%d, v14\nv_lshlrev_b32 v14, %d, v14\nv_add_u32 v14, %d, v14" % (S_T0, S_H, S_T0, fs, WS_FK))
        A("v_and_b32 v15, 1, v9\nv_lshl_add_u32 v15, v13, 1, v15\nv_lshl_add_u32 v15, v15, 2, v12\ns_lshl_b32 s%d, s%d, 7\nv_add_u32 v15, s%d, v15\nv_lshlrev_b32 v15, %d, v15\nv_add_u32 v15, %d, v15" % (S_T0, S_H, S_T0, fs, WS_FV))
        A("v_cmp_gt_u32 vcc, 4, v9\ns_nop 1\nv_cndmask_b32 v%d, v15, v14, vcc" % V_PA)
        A("s_mov_b32 s%d, s%d\ns_mov_b32 s%d, s%d\ns_mov_b32 s%d, 0x800000\ns_mov_b32 s%d, 0x20000" % (S_SRD, S_WS, S_SRD + 1, S_WS + 1, S_SRD + 2, S_SRD + 3))
        A("s_lshl_b32 s%d, s%d, 20\ns_lshl_b32 s%d, s%d, 16\ns_add_u32 s%d, s%d, s%d" % (S_T0, S_H, S_T1, S_W, S_T0, S_T0, S_T1))
        A("s_lshr_b32 s%d, s%d, %d" % (S_T2, S_I, self.hshare))
        for n in range(4):
            A("s_add_u32 s%d, s%d, %d\ns_and_b32 s%d, s%d, 3\ns_lshl_b32 s%d, s%d, 18\ns_add_u32 s%d, s%d, s%d" % (S_T1, S_T2, n, S_T1, S_T1, S_T1, S_T1, S_TBL + 12 + n, S_T1, S_T0))
        for sg in range(4):
            A("s_sub_u32 s%d, %d, s%d\ns_and_b32 s%d, s%d, 3\ns_lshl_b32 s%d, s%d, 14" % (S_T1, sg, S_H, S_T1, S_T1, S_T1, S_T1))
            for n in range(4): A("s_add_u32 s%d, s%d, s%d" % (S_TBL + 4 * sg + n, S_TBL + 12 + n, S_T1))
        A("s_mov_b32 s%d, s%d" % (S_TBL + 16, S_TBL))
        A("s_add_u32 s%d, s%d, 0x9e3779b9" % (S_TAG, S_TAG))
        A("s_sub_u32 s%d, s%d, s%d\ns_cmp_lt_u32 s%d, 2\ns_cselect_b32 s%d, s%d, 0\nv_add_u32 v10, s%d, v10" % (S_T0, S_ARG, S_KH, S_W, S_T0, S_T0, S_T0))
        def r1loads():
            A("s_cmp_ge_u32 s%d, 2\ns_cbranch_scc1 L_r1b" % S_W)
            self.k_raw_loads(A_K1, 10, "r1", nul)
            A("s_branch L_r1d\nL_r1b:")
            self.k_raw_loads(A_K0, 10, "r1", M)
            A("L_r1d:")
        def r2loads():
            A("s_cmp_ge_u32 s%d, 2\ns_cbranch_scc1 L_r2k" % S_W)
            self.v_src_addr(V_TMP0, V_TMP1, V_TMP2)
            self.v_raw_loads(V_TMP0, "r2", nul)
            A("s_branch L_r2d\nL_r2k:")
            self.next_head(S_ARG)
            self.k_src_addr(V_TMP0, V_TMP1, V_TMP2, S_ARG)
            self.k_raw_loads(A_K1, V_TMP0, "r2", M)
            A("L_r2d:")
        if self.r1pos == 0: r1loads()
        if self.r2pos == 3: r2loads()
        A("; ---- round 0")
        self.wait("r0")
        self.stamp(1)
        A("s_cmp_ge_u32 s%d, 2\ns_cbranch_scc1 L_notab" % S_W)
        self.unpack_tab(UT, RT)
        A("s_lshl_b32 s%d, s%d, 13\nv_add_u32 v12, s%d, v%d" % (S_T0, S_W, S_T0, V_KOFF0))
        for k in range(8): A("ds_write_b128 v12, v[%d:%d] offset:%d" % (UT + 4 * k, UT + 4 * k + 3, L_TAB + 1024 * k))
        A("s_waitcnt lgkmcnt(0)")
        A("L_notab:")
        self.call_by_role("L_ktask0", "L_vtask")
        self.vm.append("st")
        self.stamp(13)
        A("s_barrier")
        for s, t in ql[self.qsplit:]: M(s, t)
        if self.r1pos == 1: r1loads()
        if self.r2pos == 2: r2loads()
        self.wait("st")
        self.flag_store(1)
        self.stamp(2)
        if self.r2pos == 0: r2loads()
        def qunit(u):
            b = RQ + 24 * u
            self.unpack_tab(UT, b + 8)
            x1, x2 = 48, 56
            for p in range(4):
                self.unpack(x1 + 2 * p, b + p); self.unpack(x2 + 2 * p, b + 4 + p)
            for p in range(8): A("v_pk_mul_f32 %s, %s, %s" % (P2(x1 + 2 * p), P2(x1 + 2 * p), sp(S_C)))
            for p in range(4): self.rope_p(x1 + 2 * p, x2 + 2 * p, UT + 8 * p, TB, TB + 2, b + p, b + 4 + p)
            A("ds_write_b128 v%d, v[%d:%d] offset:%d\nds_write_b128 v%d, v[%d:%d] offset:%d" % (LQ, b, b + 3, 128 * u, LQ, b + 4, b + 7, 128 * u + 512))
        self.wait("q0")
        self.stamp(10)
        qunit(0)
        if self.r2pos == 1: r2loads()
        self.wait("q1")
        qunit(1)
        self.stamp(14)
        def qsync():
            A("s_waitcnt lgkmcnt(0)\ns_barrier")
            self.stamp(11)
            for f in range(16):
                a = 128 + 4 * f
                A("ds_read_b128 a[%d:%d], v%d offset:%d" % (a, a + 3, V_KOFF0, L_Q + f * 1040))
        if self.qbar: qsync()
        A("; ---- round 1")
        self.wait("r1")
        self.call_by_role("L_ktask1", "L_ktask0")
        self.vm += ["st", "st"]
        M("global_load_dword v%d, v%d, %s sc1" % (AQ, V_PA, sp(S_WS)), "poll")
        if not self.qbar: qsync()
        A("s_mov_b32 s%d, s%d" % (S_OFF, S_TBL))
        self.wait("poll")
        self.stamp(15)
        self.flag_store(1)
        A("v_cmp_ne_u32 vcc, s%d, v%d\ns_mov_b32 s%d, vcc_lo\ns_cmp_lg_u32 vcc_lo, 0\ns_cbranch_scc1 L_nok0" % (S_TAG, AQ, S_HOOK))
        for k in range(8): A(self.ld_k(k, 0))
        A("L_nok0:")
        A("; ---- round 2")
        self.call_by_role("L_vtask", "L_ktask1")
        self.stamp(12)
        A("s_cmp_eq_u32 s%d, 0\ns_cbranch_scc1 L_havek" % S_HOOK)
        A("s_mov_b32 s%d, 0" % S_CNT)
        A("L_p0:")
        A("global_load_dword v%d, v%d, %s sc1\ns_waitcnt vmcnt(0)" % (AQ, V_PA, sp(S_WS)))
        A("v_cmp_ne_u32 vcc, s%d, v%d\ns_cmp_eq_u32 vcc_lo, 0\ns_cbranch_scc1 L_p0d" % (S_TAG, AQ))
        if self.sleep: A("s_sleep %d" % self.sleep)
        A("s_add_u32 s%d, s%d, 1\ns_cmp_lt_u32 s%d, 0x8000\ns_cbranch_scc1 L_p0" % (S_CNT, S_CNT, S_CNT))
        A("L_p0d:")
        for k in range(8): A(self.ld_k(k, 0))
        A("s_waitcnt vmcnt(0)")
        A("L_havek:")
        self.stamp(3)
        self.vm = ["K0", "st2", "st2"]

    def mfma_qk(self, x, ks, kset, first_c=None):
        s = V_S[x]; k = V_K[kset] + 4 * ks; q = A_Q(x, ks)
        if ks == 0: c = first_c if first_c is not None else "v[%d:%d]" % (V_NM[x], V_NM[x] + 15)
        else: c = "v[%d:%d]" % (s, s + 15)
        return "v_mfma_f32_32x32x16_bf16 v[%d:%d], v[%d:%d], a[%d:%d], %s" % (s, s + 15, k, k + 3, q, q + 3, c)
    def mfma_pv(self, x, idx, vset, first=False):
        ks2, t = idx >> 2, idx & 3
        o = A_O(x, t); v = V_V[vset] + 4 * idx; p = V_P[x] + 4 * ks2
        c = "0" if (first and ks2 == 0) else "a[%d:%d]" % (o, o + 15)
        return "v_mfma_f32_32x32x16_bf16 a[%d:%d], v[%d:%d], v[%d:%d], %s" % (o, o + 15, v, v + 3, p, p + 3, c)
    def ld_k(self, ks, kset):
        r = V_K[kset] + 4 * ks
        return "buffer_load_dwordx4 v[%d:%d], v%d, s[%d:%d], s%d offen offset:%d sc1" % (r, r + 3, V_KOFF0 + (ks >> 2), S_SRD, S_SRD + 3, S_OFF, (ks & 3) * 1024)
    def ld_v(self, idx, vset):
        r = V_V[vset] + 4 * idx
        return "buffer_load_dwordx4 v[%d:%d], v%d, s[%d:%d], s%d offen offset:%d sc1" % (r, r + 3, V_VOFF0 + (idx >> 2), S_SRD, S_SRD + 3, S_OFF, (idx & 3) * 1024)
    def op_e(self, x, r): return "v_exp_f32 v%d, v%d" % (V_E[x] + r, V_S[x] + r)
    def op_a(self, x, r):
        if r == 1: return "v_add_f32 v%d, v%d, v%d" % (V_T[x], V_E[x], V_E[x] + 1)
        return "v_add_f32 v%d, v%d, v%d" % (V_T[x], V_T[x], V_E[x] + r)
    def op_c(self, x, k): return "v_cvt_pk_bf16_f32 v%d, v%d, v%d" % (V_P[x] + k, V_E[x] + 2 * k, V_E[x] + 2 * k + 1)
    def op_f(self, x): return "v_add_f32 v%d, v%d, v%d" % (V_L[x], V_L[x], V_T[x])
    def op_chk(self, x):
        stub = self.label("L_slow_%s" % x); ret = self.label("L_ret_%s" % x)
        self.stubs.append((stub, ret, x))
        return ["v_cmp_nge_f32 vcc, s%d, v%d" % (S_THR, V_T[x]), "s_cbranch_vccnz %s" % stub, "%s:" % ret]

    PERIOD = {
        8:  "F L o4",
        9:  "L o5 o6",
        10: "o7 e0 e1",
        11: "L e2",
        12: "a1 e3 a2 c0",
        13: "L e4",
        14: "a3 e5 a4 c1 W1",
        15: "L e6",
        16: "a5 e7 a6 c2",
        17: "L e8",
        18: "a7 e9 a8 c3",
        19: "L e10",
        20: "a9 e11 a10 W2",
        21: "L e12",
        22: "e13 a11 e14 a12",
        23: "e15 a13 a14 a15 K",
    }
    def iteration(self, jp, loads=True):
        out = []
        kq = (jp + 1) & 1
        for p in range(32):
            if p < 8: out.append(self.mfma_qk('a', p, kq))
            elif p < 16: out.append(self.mfma_pv('b', p - 8, jp))
            elif p < 24: out.append(self.mfma_qk('b', p - 16, kq))
            else: out.append(self.mfma_pv('a', p - 24, kq))
            if p < 8: x, u = 'b', p + 16
            elif p < 24: x, u = 'a', p
            else: x, u = 'b', p - 16
            y = 'a' if x == 'b' else 'b'
            for tok in self.PERIOD[u].split():
                c = tok[0]
                if c == 'L':
                    li = sum(self.PERIOD[v].split().count('L') for v in range(8, u))
                    if not loads: continue
                    if x == 'a': out.append(self.ld_v(li, jp))
                    elif p >= 24: out.append(self.ld_k(li, kq))
                    else: out.append(self.ld_k(li, jp))
                elif c == 'e': out.append(self.op_e(x, int(tok[1:])))
                elif c == 'a': out.append(self.op_a(x, int(tok[1:])))
                elif c == 'c': out.append(self.op_c(x, int(tok[1:])))
                elif c == 'o': out.append(self.op_c(y, int(tok[1:])))
                elif c == 'F': out.append(self.op_f(y))
                elif c == 'K': out += self.op_chk(x)
                elif c == 'W':
                    if tok == "W2" and x == 'a': out.append("@WAIT_V")
                    if tok == "W1" and x == 'b': out.append("@WAIT_K")
        return out
    def emit_iter(self, it):
        A = self.A
        lastv = max(k for k, s in enumerate(it) if s.startswith("buffer_load") and (" v%d," % V_VOFF1) in s)
        for k, s in enumerate(it):
            if s == "@WAIT_V": s = "s_waitcnt vmcnt(%d)" % self.wv
            if s == "@WAIT_K": s = "s_waitcnt vmcnt(%d)" % self.wk
            A(s)
            if k == lastv - 3: A("s_add_u32 m0, m0, 1")
            if k == lastv + 2: A("s_movrels_b32 s%d, s%d" % (S_OFF, S_TBL))
    def compute_waits(self):
        self.stubs = []
        it = self.iteration(0)
        seq = it + it + it
        n = len(it)
        isld = lambda s: s.startswith("buffer_load")
        isv = lambda s: isld(s) and ((" v%d," % V_VOFF0) in s or (" v%d," % V_VOFF1) in s)
        kv = 2 * n + it.index("@WAIT_V")
        lastv = max(k for k in range(n, 2 * n) if isv(seq[k]))
        self.wv = sum(1 for k in range(lastv + 1, kv) if isld(seq[k]))
        kk = 2 * n + it.index("@WAIT_K")
        idx = [k for k, s in enumerate(it) if s.startswith("v_mfma")]
        lastk = 2 * n + max(k for k in range(0, idx[8]) if isld(it[k]))
        self.wk = sum(1 for k in range(lastk + 1, kk) if isld(seq[k]))
        self.uid = 0
        self.stubs = []

    def slow_sub(self, x):
        A = self.A
        s, e, nm = V_S[x], V_E[x], V_NM[x]
        t0, t1 = V_TMP0, V_TMP1
        A("L_sub_%s:" % x)
        A("s_nop 7")
        A("v_max3_f32 v%d, v%d, v%d, v%d" % (t0, s, s + 1, s + 2))
        for r in range(3, 15, 2): A("v_max3_f32 v%d, v%d, v%d, v%d" % (t0, s + r, s + r + 1, t0))
        A("v_max3_f32 v%d, v%d, v%d, 0" % (t0, s + 15, t0))
        A("v_mov_b32 v%d, v%d\ns_nop 1\nv_permlane32_swap_b32 v%d, v%d\ns_nop 1\nv_max_f32 v%d, v%d, v%d" % (t1, t0, t0, t1, t0, t0, t1))
        A("v_exp_f32 v%d, -v%d" % (t1, t0))
        for r in range(16):
            A("v_sub_f32 v%d, v%d, v%d" % (s + r, s + r, t0))
            A("v_sub_f32 v%d, v%d, v%d" % (nm + r, nm + r, t0))
        A("v_mul_f32 v%d, v%d, v%d" % (V_L[x], V_L[x], t1))
        for t in range(4):
            for r in range(16):
                a = A_O(x, t) + r
                A("v_accvgpr_read_b32 v%d, a%d\nv_mul_f32 v%d, v%d, v%d\nv_accvgpr_write_b32 a%d, v%d" % (V_TMP2, a, V_TMP2, V_TMP2, t1, a, V_TMP2))
        for r in range(16): A(self.op_e(x, r))
        A("s_nop 0")
        for r in range(1, 16): A(self.op_a(x, r))
        for k in range(8): A(self.op_c(x, k))
        A("s_nop 3")
        A("s_setpc_b64 s[%d:%d]" % (S_RET, S_RET + 1))

    def first_fix(self, x):
        s, nm = V_S[x], V_NM[x]
        t0, t1 = V_T[x], V_E[x]
        o = ["v_max3_f32 v%d, v%d, v%d, v%d" % (t0, s, s + 1, s + 2)]
        for r in range(3, 15, 2): o.append("v_max3_f32 v%d, v%d, v%d, v%d" % (t0, s + r, s + r + 1, t0))
        o.append("v_max_f32 v%d, v%d, v%d" % (t0, s + 15, t0))
        o += ["v_mov_b32 v%d, v%d" % (t1, t0), "s_nop 1", "v_permlane32_swap_b32 v%d, v%d" % (t0, t1), "s_nop 1", "v_max_f32 v%d, v%d, v%d" % (t0, t0, t1)]
        for r in range(16): o.append("v_sub_f32 v%d, v%d, v%d" % (s + r, s + r, t0))
        for r in range(16): o.append("v_sub_f32 v%d, 0, v%d" % (nm + r, t0))
        return o

    def main(self):
        A = self.A; M = self.M
        A("v_mov_b32 v%d, 0\nv_mov_b32 v%d, 0" % (V_L['a'], V_L['b']))
        pend = [(self.ld_v(k, 0), "V0") for k in range(8)] + [None] + [(self.ld_k(k, 1), "K1") for k in range(8)] + [(self.ld_v(k, 1), "V1") for k in range(8)]
        def nxt():
            if pend[0] is None:
                pend.pop(0); A("s_mov_b32 s%d, s%d" % (S_OFF, S_TBL + 1))
            M(*pend.pop(0))
        for k in range(self.vpre): nxt()
        self.wait("K0", " lgkmcnt(0)")
        self.stamp(4)
        for ks in range(8):
            A(self.mfma_qk('a', ks, 0, first_c="0"))
            nxt()
        fa = self.first_fix('a')
        sa = [self.op_e('a', r) for r in range(16)]
        seq = fa + sa[:2]
        for r in range(2, 16):
            seq.append(sa[r]); seq.append(self.op_a('a', r - 1))
        seq += [self.op_c('a', 0), self.op_a('a', 15)] + [self.op_c('a', k) for k in range(1, 4)]
        pos = 0
        for ks in range(8):
            A(self.mfma_qk('b', ks, 0, first_c="0"))
            if ks < 2: nxt()
            else:
                for s in seq[pos:pos + 6]: A(s)
                pos += 6
        rest = seq[pos:] + self.first_fix('b')
        for k, s in enumerate(rest):
            A(s)
            if k % 3 == 2 and pend and not s.startswith("s_nop") and not s.startswith("v_mov"): nxt()
        while pend: nxt()
        A("s_mov_b32 m0, 2\ns_mov_b32 s%d, s%d" % (S_OFF, S_TBL + 2))
        self.wait("V0")
        self.flag_store(1)
        it = self.iteration(1)
        idx = [k for k, s in enumerate(it) if s.startswith("v_mfma")]
        tail = it[idx[24]:]
        nm = 0
        for s in tail:
            if s.startswith("v_mfma"):
                s = self.mfma_pv('a', nm, 0, first=True); nm += 1
            if s == "@WAIT_K": self.wait("K1"); continue
            if s.startswith("buffer_load"): M(s, "K2"); continue
            A(s)
        self.stamp(5)
        self.cstamp(8)
        A("global_load_dword v%d, v%d, %s sc1       ; stage-1 flags" % (V_FA, V_PA, sp(S_WS)))
        A("s_mov_b32 s%d, 4" % S_LIM)
        A(".p2align 6")
        A("L_loop:")
        self.emit_iter(self.iteration(0))
        A("s_cmp_eq_u32 m0, 3\ns_cbranch_scc1 L_hook")
        A("L_mid:")
        self.emit_iter(self.iteration(1))
        A("s_cmp_lt_u32 m0, s%d\ns_cbranch_scc1 L_loop" % S_LIM)
        A("s_cmp_eq_u32 m0, 16\ns_cbranch_scc1 L_tail")
        A("s_cmp_eq_u32 m0, 6\ns_cbranch_scc1 L_ev2")
        A("v_and_b32 v%d, 4, v%d\nv_cmp_eq_u32 vcc, 0, v%d\nv_xor_b32 v%d, %d, v%d\nv_add_u32 v%d, %d, v%d\nv_cndmask_b32 v%d, v%d, v%d, vcc" %
          (V_TMP0, V_LANE, V_TMP0, V_TMP1, 8 << self.fs, V_PA, V_TMP2, 2 << self.fs, V_PA, V_PA, V_TMP2, V_TMP1))
        A("global_load_dword v%d, v%d, %s sc1" % (V_FA, V_PA, sp(S_WS)))
        A("s_mov_b32 s%d, 6\ns_branch L_loop" % S_LIM)
        A("L_ev2:")
        A("s_mov_b32 s%d, 16" % S_LIM)
        A("v_cmp_ne_u32 vcc, s%d, v%d\ns_cbranch_vccz L_loop" % (S_TAG, V_FA))
        self.poll(V_PA)
        A("s_branch L_loop")
        A("L_hook:")
        A("s_waitcnt vmcnt(16)")
        A("v_cmp_ne_u32 vcc, s%d, v%d\ns_cbranch_vccz L_mid" % (S_TAG, V_FA))
        self.poll(V_PA)
        A("s_branch L_mid")
        A("L_tail:")
        it = self.iteration(0, loads=False)
        for s in it:
            if s in ("@WAIT_V", "@WAIT_K"): s = "s_waitcnt vmcnt(0)"
            A(s)
        it = self.iteration(1, loads=False)
        idx = [k for k, s in enumerate(it) if s.startswith("v_mfma")]
        nm = 0
        for k, s in enumerate(it[:idx[16]]):
            if s.startswith("v_mfma") and k < idx[8]: continue
            if k >= idx[8] and not s.startswith("v_mfma"):
                isb = (s == self.op_f('b')) or any(s == self.op_c('b', c) for c in range(8))
                if not isb: continue
            if s.startswith("@"): continue
            if s.startswith("v_exp"):
                A(s); A("s_nop 0"); continue
            if s.startswith("v_mfma"):
                if nm in (0, 4): A("s_nop 1")
                nm += 1
            A(s)
        self.stamp(6)
        self.cstamp(9)

    def epilogue(self):
        A = self.A
        ln = V_LANE
        def regs(d):
            return [A_O(x, t) + 4 * d for x in 'ab' for t in range(4)]
        for x in 'ab':
            l = V_L[x]; t = V_T[x]
            A("v_mov_b32 v%d, v%d\ns_nop 1\nv_permlane32_swap_b32 v%d, v%d\ns_nop 1\nv_add_f32 v%d, v%d, v%d" % (t, l, l, t, V_NM[x] + 1, l, t))
        A("s_lshl_b32 s%d, s%d, 10\ns_add_u32 s%d, s%d, %d" % (S_T0, S_W, S_T0, S_T0, L_ST))
        A("v_lshlrev_b32 v44, 3, v%d\nv_add_u32 v45, s%d, v44" % (ln, S_T0))
        A("ds_write_b64 v45, v[%d:%d]" % (V_NM['a'], V_NM['a'] + 1))
        A("ds_write_b64 v45, v[%d:%d] offset:512" % (V_NM['b'], V_NM['b'] + 1))
        A("s_nop 7")
        for d in range(4):
            skip = self.label("L_skipw")
            A("s_cmp_eq_u32 s%d, %d\ns_cbranch_scc1 %s" % (S_W, d, skip))
            A("s_sub_u32 s%d, s%d, %d\ns_and_b32 s%d, s%d, 3\ns_lshl_b32 s%d, s%d, 13\ns_add_u32 s%d, s%d, %d" %
              (S_T0, S_W, d + 1, S_T0, S_T0, S_T0, S_T0, S_T0, S_T0, L_O + d * 3 * 8192))
            A("v_add_u32 v45, s%d, v%d" % (S_T0, V_KOFF0))
            for idx, a in enumerate(regs(d)): A("ds_write_b128 v45, a[%d:%d] offset:%d" % (a, a + 3, idx * 1024))
            A("%s:" % skip)
        own = 128
        done = self.label("L_own")
        for d in range(4):
            nxt = self.label("L_ownn")
            if d < 3: A("s_cmp_lg_u32 s%d, %d\ns_cbranch_scc1 %s" % (S_W, d, nxt))
            for idx, a in enumerate(regs(d)):
                for i in range(4): A("v_accvgpr_read_b32 v%d, a%d" % (own + idx * 4 + i, a + i))
            if d < 3: A("s_branch %s\n%s:" % (done, nxt))
        A("%s:" % done)
        A("s_waitcnt lgkmcnt(0)\ns_barrier")
        st = 16
        for k in range(3):
            A("s_add_u32 s%d, s%d, %d\ns_and_b32 s%d, s%d, 3\ns_lshl_b32 s%d, s%d, 10\ns_add_u32 s%d, s%d, %d" % (S_T0, S_W, k + 1, S_T0, S_T0, S_T0, S_T0, S_T0, S_T0, L_ST))
            A("v_add_u32 v45, s%d, v44" % S_T0)
            A("ds_read_b64 v[%d:%d], v45\nds_read_b64 v[%d:%d], v45 offset:512" % (st + 4 * k, st + 4 * k + 1, st + 4 * k + 2, st + 4 * k + 3))
        A("s_mul_i32 s%d, s%d, 24576\ns_add_u32 s%d, s%d, %d\nv_add_u32 v45, s%d, v%d" % (S_T0, S_W, S_T0, S_T0, L_O, S_T0, V_KOFF0))
        pb = 160
        order = [(k, idx) for idx in range(8) for k in range(3)]
        for (k, idx) in order[:9]:
            r = pb + (k * 8 + idx) * 4
            A("ds_read_b128 v[%d:%d], v45 offset:%d" % (r, r + 3, k * 8192 + idx * 1024))
        A("s_waitcnt lgkmcnt(9)")
        F = 32
        for xi, x in enumerate('ab'):
            nms = [V_NM[x]] + [st + 4 * k + 2 * xi for k in range(3)]
            ls = [V_NM[x] + 1] + [st + 4 * k + 2 * xi + 1 for k in range(3)]
            mn = 40
            A("v_min3_f32 v%d, v%d, v%d, v%d\nv_min_f32 v%d, v%d, v%d" % (mn, nms[0], nms[1], nms[2], mn, mn, nms[3]))
            for s in range(4): A("v_sub_f32 v%d, v%d, v%d" % (F + 4 * xi + s, mn, nms[s]))
            for s in range(4): A("v_exp_f32 v%d, v%d" % (F + 4 * xi + s, F + 4 * xi + s))
            A("s_nop 0")
            A("v_mul_f32 v41, v%d, v%d" % (F + 4 * xi, ls[0]))
            for s in range(1, 4): A("v_fmac_f32 v41, v%d, v%d" % (F + 4 * xi + s, ls[s]))
            A("v_rcp_f32 v41, v41\ns_nop 0")
            for s in range(4): A("v_mul_f32 v%d, v%d, v41" % (F + 4 * xi + s, F + 4 * xi + s))
        A("s_lshl_b32 s%d, s%d, 19\ns_lshl_b32 s%d, s%d, 14\ns_add_u32 s%d, s%d, s%d\ns_lshl_b32 s%d, s%d, 6\ns_add_u32 s%d, s%d, s%d" %
          (S_T0, S_H, S_T1, S_I, S_T0, S_T0, S_T1, S_T1, S_W, S_T0, S_T0, S_T1))
        A("v_and_b32 v42, 31, v%d\nv_lshrrev_b32 v43, 5, v%d\nv_lshlrev_b32 v42, 8, v42\nv_lshl_add_u32 v42, v43, 5, v42\nv_add_u32 v42, s%d, v42\nv_add_u32 v43, 8192, v42" % (ln, ln, S_T0))
        issued = 9
        ob = 48
        for idx in range(8):
            xi = idx >> 2
            while issued < min(24, 3 * idx + 12):
                k, i2 = order[issued]
                r = pb + (k * 8 + i2) * 4
                A("ds_read_b128 v[%d:%d], v45 offset:%d" % (r, r + 3, k * 8192 + i2 * 1024)); issued += 1
            A("s_waitcnt lgkmcnt(%d)" % (issued - 3 * idx - 3))
            for pr in range(2):
                r = own + idx * 4 + 2 * pr
                A("v_pk_mul_f32 %s, %s, %s op_sel_hi:[1,0]" % (P2(r), P2(r), P2(F + 4 * xi)))
                for k in range(3):
                    fr = F + 4 * xi + 1 + k
                    q = fr & 1
                    A("v_pk_fma_f32 %s, %s, %s, %s op_sel:[0,%d,0] op_sel_hi:[1,%d,1]" % (P2(r), P2(pb + (k * 8 + idx) * 4 + 2 * pr), P2(fr & ~1), P2(r), q, q))
            if (idx & 3) == 3:
                for hf in range(2):
                    o = ob + (xi * 2 + hf) * 4
                    for ii in range(2):
                        i = 2 * hf + ii
                        for tp in range(2):
                            A("v_cvt_pk_bf16_f32 v%d, v%d, v%d" % (o + 2 * ii + tp, own + (xi * 4 + 2 * tp) * 4 + i, own + (xi * 4 + 2 * tp + 1) * 4 + i))
                    A("global_store_dwordx4 v%d, v[%d:%d], %s offset:%d %s" % (42 + xi, o, o + 3, sp(S_OUT), 16 * hf, self.omod))

    def dump_stamps(self):
        if not self.stamps: return
        A = self.A
        A("s_lshl_b32 s100, s2, 2\ns_add_u32 s100, s100, s%d\ns_lshl_b32 s100, s100, 6\ns_add_u32 s100, s100, %d" % (S_W, 16 << 20))
        A("v_lshlrev_b32 v2, 2, v%d\nv_add_u32 v2, s100, v2\ns_mov_b64 exec, 0xffff" % V_LANE)
        A("global_store_dword v2, v%d, %s\ns_mov_b64 exec, -1" % (V_STAMP, sp(S_WS)))

    def build(self):
        A = self.A
        K = NAME + "_kernel"
        self.cold = []
        self.compute_waits()
        hdr = open("cdna_kernels/%s.s.ref" % NAME).read().split("; @launch")[0]
        A(hdr.rstrip("\n"))
        A("; @launch grid=(256,1,1) block=(256,1,1) lds=%d" % LDS_BYTES)
        A('.amdgcn_target "amdgcn-amd-amdhsa--gfx950"\n.text')
        A(".globl %s\n.p2align 8\n.type %s,@function\n%s:" % (K, K, K))
        self.phase1()
        self.main()
        self.epilogue()
        A("s_cmp_lg_u32 s2, 0\ns_cbranch_scc1 L_noep\ns_cmp_lg_u32 s%d, 0\ns_cbranch_scc1 L_noep" % S_W)
        A("v_mov_b32 v1, %d\nv_mov_b32 v2, s%d\ns_mov_b64 exec, 1\nglobal_store_dword v1, v2, %s sc1\ns_mov_b64 exec, -1" % (WS_EPOCH, S_TAG, sp(S_WS)))
        A("L_noep:")
        self.stamp(7)
        self.dump_stamps()
        if self.probe is not None:
            A("v_readlane_b32 s70, v7, %d\ns_nop 3\ns_add_u32 s70, s70, 3000\nL_spin:\ns_memrealtime s[100:101]\ns_waitcnt lgkmcnt(0)\ns_sub_u32 s71, s70, s100\ns_cmp_gt_i32 s71, 0\ns_cbranch_scc1 L_spin" % self.probe)
        A("L_end:\ns_endpgm")
        live = [st for st in self.stubs if any(s.endswith(' ' + st[0]) for s in self.L)]
        for stub, ret, x in live:
            A("%s:\ns_call_b64 s[%d:%d], L_sub_%s\ns_branch %s" % (stub, S_RET, S_RET + 1, x, ret))
        self.subs()
        for lab, ret, regs in self.cold:
            A("%s:" % lab)
            for k in range(0, len(regs), 2): self.round_pair(regs[k])
            A("s_branch %s" % ret)
        self.slow_sub('a'); self.slow_sub('b')
        A('.section .rodata,"a"')
        A('.p2align 6\n.amdhsa_kernel %s\n  .amdhsa_next_free_vgpr 512\n  .amdhsa_next_free_sgpr 102\n  .amdhsa_accum_offset 256\n'
          '  .amdhsa_group_segment_fixed_size 0\n  .amdhsa_kernarg_size 112\n  .amdhsa_user_sgpr_count 2\n'
          '  .amdhsa_user_sgpr_kernarg_segment_ptr 1\n  .amdhsa_system_sgpr_workgroup_id_x 1\n.end_amdhsa_kernel' % K)
        return "\n".join(self.L) + "\n"

if __name__ == "__main__":
    ap = argparse.ArgumentParser()
    ap.add_argument("out")
    ap.add_argument("--stamps", action="store_true")
    ap.add_argument("--probe", type=int, default=None)
    ap.add_argument("--sleep", type=int, default=4)
    ap.add_argument("--fs", type=int, default=6)
    ap.add_argument("--omod", default="")
    ap.add_argument("--qsplit", type=int, default=9)
    ap.add_argument("--pollearly", action="store_true")
    ap.add_argument("--r2pos", type=int, default=0)
    ap.add_argument("--vpre", type=int, default=4)
    ap.add_argument("--r1pos", type=int, default=1)
    ap.add_argument("--hshare", type=int, default=0)
    ap.add_argument("--qbar", type=int, default=0)
    ap.add_argument("--qt", default=""); ap.add_argument("--kt", default="")
    a = ap.parse_args()
    g = Gen(**vars(a))
    open(a.out, "w").write(g.build())
    print("wv", g.wv, "wk", g.wk, "lines", len(g.L))
```

```python
import sys, struct, argparse
NAME = "standalone__kv_cache_quant_pre_rope_vs_post_rope__prompt"
def f32bits(x): return struct.unpack("<I", struct.pack("<f", x))[0]
CSCALE = 1.4426950408889634 * (128.0 ** -0.5)

V_FA = 0
V_KOFF0, V_KOFF1, V_VOFF0, V_VOFF1 = 1, 2, 3, 4
V_LANE, V_PA, V_STAMP = 5, 6, 7
V_T = {'a': 8, 'b': 10}
V_L = {'a': 64, 'b': 66}
V_CH = 68
V_TMP0, V_TMP1, V_TMP2, V_TMP3 = 12, 13, 14, 15
V_S = {'a': 16, 'b': 32}
V_NM = {'a': 48, 'b': 56}
V_E = {'a': 80, 'b': 96}
V_P = {'a': 112, 'b': 120}
V_K = [128, 160]
V_V = [192, 224]
XI = {'a': 0, 'b': 1}
def A_O(x, ql, dt): return ((2 * XI[x] + ql) * 8 + dt) * 4
def A_Q(x, ql, ks): return 128 + ((2 * XI[x] + ql) * 4 + ks) * 4
V_VSC = 36
A_K0, A_K1, A_V = 192, 208, 224
S_Q, S_QK, S_KS, S_KZ, S_QV, S_VS, S_VZ, S_QC, S_QS, S_KC, S_KSN, S_OUT, S_DBG, S_WS = [4 + 2 * i for i in range(14)]
S_H, S_I, S_W, S_TAG = 32, 33, 34, 35
S_T0, S_T1, S_T2, S_T3 = 36, 37, 38, 39
S_SRD = 40
S_OFF, S_THR = 44, 45
S_C = 46
S_TBL = 48
S_RET = 66
S_SC = 68
S_CNT, S_LIM, S_HOOK = 3, 65, 28
S_KH, S_VK, S_ARG = 29, 0, 1
L_KT = 0
L_TAB = 9216
L_Q = L_TAB + 16384
L_ST = L_Q + 16 * 1040
L_O = L_ST + 8192
LDS_BYTES = L_O + 96 * 1024
WS_FK = 8 << 20
WS_FV = WS_FK + (512 << 10)
WS_EPOCH = 9 << 20
THRESH = 1024.0
P2 = lambda r: "v[%d:%d]" % (r, r + 1)
sp = lambda r: "s[%d:%d]" % (r, r + 1)

class Gen:
    def __init__(self, **kw):
        self.L = []
        self.uid = 0
        self.stamps = kw.get("stamps", False)
        self.probe = kw.get("probe", None)
        self.sleep = kw.get("sleep", 4)
        self.fs = kw.get("fs", 6)
        self.abl = kw.get("abl", "")
        self.omod = kw.get("omod", "")
        self.qsplit = kw.get("qsplit", 9)
        self.pollearly = kw.get("pollearly", False)
        self.r2pos = kw.get("r2pos", 0)
        self.vpre = kw.get("vpre", 4)
        self.r1pos = kw.get("r1pos", 1)
        self.PERIOD = self.PERIODS[kw.get("period", 0)]
        self.hshare = kw.get("hshare", 0)
        self.qbar = kw.get("qbar", 0)
        self.qt = kw.get("qt", ""); self.kt = kw.get("kt", "")
        self.vm = []
    def A(self, s):
        for line in s.split("\n"): self.L.append(line)
    def label(self, base):
        self.uid += 1
        return "%s_%d" % (base, self.uid)
    def M(self, s, tag):
        self.A(s); self.vm.append(tag)
    def wait(self, tag, extra=""):
        last = max(k for k, t in enumerate(self.vm) if t == tag)
        n = len(self.vm) - 1 - last
        assert n <= 63
        self.A("s_waitcnt vmcnt(%d)%s" % (n, extra))
    def cstamp(self, idx):
        if self.stamps: self.A("s_memtime s[100:101]\ns_waitcnt lgkmcnt(0)\nv_writelane_b32 v%d, s100, %d" % (V_STAMP, idx))
    def stamp(self, idx):
        if self.probe is not None:
            if idx != self.probe: return
        elif not self.stamps: return
        self.A("s_memrealtime s[100:101]\ns_waitcnt lgkmcnt(0)\nv_writelane_b32 v%d, s100, %d" % (V_STAMP, idx))

    def unpack(self, dst, src):
        self.A("v_lshlrev_b32 v%d, 16, v%d\nv_and_b32 v%d, 0xffff0000, v%d" % (dst, src, dst + 1, src))
    def round_pair(self, r):
        self.A("v_cvt_pk_bf16_f32 v%d, v%d, v%d" % (r + 1, r, r + 1))
        self.A("v_lshlrev_b32 v%d, 16, v%d\nv_and_b32 v%d, 0xffff0000, v%d" % (r, r + 1, r + 1, r + 1))
    def int_to_f32(self, regs, tmp):
        A = self.A
        for r in regs: A("v_cvt_f32_i32 v%d, v%d" % (r, r))
        A("v_max3_f32 v%d, |v%d|, |v%d|, 0" % (tmp, regs[0], regs[1]))
        for k in range(2, len(regs), 2):
            A("v_max3_f32 v%d, |v%d|, |v%d|, v%d" % (tmp, regs[k], regs[k + 1], tmp))
        lab = self.label("L_big"); ret = self.label("L_bigret")
        A("v_cmp_lt_f32 vcc, 0x43800000, v%d" % tmp)
        A("s_cbranch_vccnz %s" % lab)
        A("%s:" % ret)
        self.cold.append((lab, ret, list(regs)))
    def unpack_tab(self, dst, src):
        for p in range(4):
            for k in range(4): self.unpack(dst + 8 * p + 2 * k, src + 4 * k + p)
    def rope_p(self, a, b, tab, t, u, o1, o2):
        A = self.A
        A("v_pk_mul_f32 %s, %s, %s" % (P2(t), P2(a), P2(tab)))
        A("v_pk_mul_f32 %s, %s, %s" % (P2(u), P2(b), P2(tab + 2)))
        A("v_pk_fma_f32 %s, %s, %s, %s neg_lo:[1,0,0] neg_hi:[1,0,0]" % (P2(t), P2(b), P2(tab + 4), P2(t)))
        A("v_pk_fma_f32 %s, %s, %s, %s" % (P2(u), P2(a), P2(tab + 6), P2(u)))
        A("v_cvt_pk_bf16_f32 v%d, v%d, v%d" % (o1, t, t + 1))
        A("v_cvt_pk_bf16_f32 v%d, v%d, v%d" % (o2, u, u + 1))
    def k_dequant(self, rb, sc, tmp):
        A = self.A
        z = sc + 1
        self.int_to_f32(list(range(rb, rb + 16)), tmp)
        A("v_lshlrev_b32 v%d, 16, v%d\nv_lshlrev_b32 v%d, 16, v%d" % (sc, sc, z, z))
        A("v_mul_f32 v%d, v%d, v%d" % (z, z, sc))
        for p in range(8):
            r = rb + 2 * p
            A("v_pk_fma_f32 %s, %s, %s, %s op_sel:[0,0,1] op_sel_hi:[1,0,1] neg_lo:[0,0,1] neg_hi:[0,0,1]" % (P2(r), P2(r), P2(sc), P2(sc)))
    def v_compute(self, x, rawsc, sc, nz, tmp, o):
        A = self.A
        for p in range(4):
            self.unpack(sc + 2 * p, rawsc + p)
            self.unpack(nz + 2 * p, rawsc + 4 + p)
        for p in range(4): A("v_pk_mul_f32 %s, %s, %s" % (P2(nz + 2 * p), P2(nz + 2 * p), P2(sc + 2 * p)))
    def v_compute2(self, x, sc, nz, tmp, o):
        A = self.A
        self.int_to_f32(list(range(x, x + 16)), tmp)
        for j in range(8):
            r = x + 2 * j; q = j & 1
            A("v_pk_fma_f32 %s, %s, %s, %s op_sel:[0,%d,%d] op_sel_hi:[1,%d,%d] neg_lo:[0,0,1] neg_hi:[0,0,1]" %
              (P2(r), P2(r), P2(sc + (j & ~1)), P2(nz + (j & ~1)), q, q, q, q))
        for e in range(2):
            for jj in range(4):
                A("v_cvt_pk_bf16_f32 v%d, v%d, v%d" % (o + 4 * e + jj, x + 4 * jj + e, x + 4 * jj + 2 + e))

    def raw_loads(self, f, rk, rv, bq, bs, bv, bvs, tagk, tagv):
        o = []
        for k, off in enumerate((0, 16, 256, 272)):
            o.append(("global_load_dwordx4 %s[%d:%d], v%d, %s offset:%d nt" % (f, rk + 4 * k, rk + 4 * k + 3, bq, sp(S_QK), off), tagk))
        o.append(("global_load_ushort %s%d, v%d, %s" % (f, rk + 16, bs, sp(S_KS)), tagk))
        o.append(("global_load_ushort %s%d, v%d, %s" % (f, rk + 17, bs, sp(S_KZ)), tagk))
        for j in range(8):
            off = (8 * (j >> 2) + (j & 3)) * 512 - 2560
            o.append(("global_load_dwordx2 %s[%d:%d], v%d, %s offset:%d nt" % (f, rv + 2 * j, rv + 2 * j + 1, bv, sp(S_QV), off), tagv))
        for q, sr in enumerate((S_VS, S_VZ)):
            for hf in range(2):
                r = rv + 16 + 4 * q + 2 * hf
                o.append(("global_load_dwordx2 %s[%d:%d], v%d, %s offset:%d" % (f, r, r + 1, bvs, sp(sr), 16 * hf), tagv))
        return o

    def flag_store(self, mask):
        A = self.A
        A("v_mov_b32 v%d, s%d" % (V_TMP3, S_TAG))
        A("s_mov_b64 exec, %d" % mask)
        self.M("global_store_dword v%d, v%d, %s sc1" % (V_FA, V_TMP3, sp(S_WS)), "flag")
        A("s_mov_b64 exec, -1")

    def poll(self, reg):
        A = self.A
        lab = self.label("L_poll"); done = self.label("L_polled")
        A("s_mov_b32 s%d, 0" % S_CNT)
        A("%s:" % lab)
        A("global_load_dword v%d, v%d, %s sc1" % (V_TMP0, reg, sp(S_WS)))
        A("s_add_u32 s%d, s%d, 1" % (S_CNT, S_CNT))
        A("s_waitcnt vmcnt(0)")
        A("v_cmp_ne_u32 vcc, s%d, v%d" % (S_TAG, V_TMP0))
        A("s_cbranch_vccz %s" % done)
        if self.sleep: A("s_sleep %d" % self.sleep)
        A("s_cmp_lt_u32 s%d, 0x8000\ns_cbranch_scc1 %s" % (S_CNT, lab))
        A("%s:" % done)

    def k_raw_loads(self, slot, vaddr, tag, M):
        for k, off in enumerate((0, 16, 256, 272)):
            M("global_load_dwordx4 a[%d:%d], v%d, %s offset:%d nt" % (slot + 4 * k, slot + 4 * k + 3, vaddr, sp(S_QK), off), tag)
    def v_raw_loads(self, vaddr, tag, M):
        for j in range(8):
            M("global_load_dwordx4 a[%d:%d], v%d, %s offset:%d nt" % (A_V + 4 * j, A_V + 4 * j + 3, vaddr + (j >> 2), sp(S_QV), (j & 3) * 512), tag)
    def k_src_addr(self, dst, t0, t1, shead):
        A = self.A
        A("s_lshl_b32 s%d, s2, 12\ns_add_u32 s%d, s%d, s%d" % (S_T0, S_T0, S_T0, shead))
        A("v_lshrrev_b32 v%d, 3, v%d\nv_and_b32 v%d, 7, v%d\nv_lshlrev_b32 v%d, 9, v%d\nv_lshl_add_u32 v%d, v%d, 5, v%d\nv_add_u32 v%d, s%d, v%d" %
          (t0, V_LANE, t1, V_LANE, dst, t0, dst, t1, dst, dst, S_T0, dst))
    def v_src_addr(self, dst, t0, t1):
        A = self.A
        assert t0 == dst + 1
        A("s_lshl_b32 s%d, s%d, 20\ns_lshr_b32 s%d, s%d, 5\ns_lshl_b32 s%d, s%d, 14\ns_add_u32 s%d, s%d, s%d\ns_and_b32 s%d, s%d, 16\ns_lshl_b32 s%d, s%d, 4\ns_add_u32 s%d, s%d, s%d" %
          (S_T0, S_H, S_T1, S_VK, S_T1, S_T1, S_T0, S_T0, S_T1, S_T1, S_VK, S_T1, S_T1, S_T0, S_T0, S_T1))
        A("v_lshrrev_b32 v%d, 4, v%d\nv_and_b32 v%d, 15, v%d\nv_lshlrev_b32 v%d, 11, v%d\nv_lshl_add_u32 v%d, v%d, 4, v%d\nv_add_u32 v%d, s%d, v%d\nv_add_u32 v%d, 8192, v%d" %
          (t0, V_LANE, t1, V_LANE, dst, t0, dst, t1, dst, dst, S_T0, dst, t0, dst))
    def next_head(self, dst):
        self.A("s_add_u32 s%d, s%d, 0x100000\ns_and_b32 s%d, s%d, 0x300000\ns_and_b32 s%d, s%d, 0x400000\ns_or_b32 s%d, s%d, s%d" % (S_T2, S_KH, S_T2, S_T2, dst, S_KH, dst, dst, S_T2))

    def subs(self):
        A = self.A
        X, Y, O, t = V_S['a'], V_E['a'], V_P['a'], V_TMP0
        fs = self.fs
        rd = lambda v, a: A("v_accvgpr_read_b32 v%d, a%d" % (v, a))
        for n, slot in enumerate((A_K0, A_K1)):
            A("L_ktask%d:" % n)
            if n == 0: A("s_mov_b32 s%d, s%d" % (S_ARG, S_KH))
            else: self.next_head(S_ARG)
            for r in range(16): rd(X + r, slot + r)
            for q in range(4):
                if q: A("s_lshl_b64 exec, -1, %d" % (16 * q))
                A("v_mov_b32 v%d, s%d\nv_mov_b32 v%d, s%d" % (Y + 12, S_SC + 8 * n + q, Y + 13, S_SC + 8 * n + 4 + q))
            A("s_mov_b64 exec, -1")
            if n == 0: A("s_branch L_kbody")
        A("L_kbody:")
        A("s_and_b32 s%d, s%d, 1\ns_lshl_b32 s%d, s%d, 13\nv_add_u32 v%d, s%d, v%d" % (S_T0, S_W, S_T0, S_T0, t + 1, S_T0, V_KOFF0))
        A("ds_read_b128 v[%d:%d], v%d offset:%d\nds_read_b128 v[%d:%d], v%d offset:%d" % (Y, Y + 3, t + 1, L_TAB, Y + 4, Y + 7, t + 1, L_TAB + 1024))
        A("v_lshrrev_b32 v%d, 3, v%d\nv_and_b32 v%d, 7, v%d" % (Y + 14, V_LANE, Y + 15, V_LANE))
        A("v_lshlrev_b32 v%d, 4, v%d\nv_and_b32 v%d, 16, v%d\nv_lshrrev_b32 v%d, v%d, v%d\nv_lshrrev_b32 v%d, v%d, v%d" % (t, Y + 14, t, t, Y + 12, t, Y + 12, Y + 13, t, Y + 13))
        self.k_dequant(X, Y + 12, t)
        A("s_mul_i32 s%d, s%d, 2304" % (S_T0, S_W))
        A("v_mul_u32_u24 v%d, 144, v%d\nv_lshl_add_u32 v%d, v%d, 4, v%d\nv_add_u32 v%d, s%d, v%d" % (t + 2, Y + 15, t + 2, Y + 14, t + 2, t + 2, S_T0, t + 2))
        A("v_mul_u32_u24 v%d, 144, v%d\nv_lshl_add_u32 v%d, v%d, 4, v%d\nv_add_u32 v%d, s%d, v%d" % (t + 3, Y + 14, t + 3, Y + 15, t + 3, t + 3, S_T0, t + 3))
        for p in range(4):
            A("s_waitcnt lgkmcnt(0)")
            self.rope_p(X + 2 * p, X + 8 + 2 * p, Y, Y + 8, Y + 10, O + p, O + 4 + p)
            if p < 3:
                A("ds_read_b128 v[%d:%d], v%d offset:%d\nds_read_b128 v[%d:%d], v%d offset:%d" % (Y, Y + 3, t + 1, L_TAB + 2048 * (p + 1), Y + 4, Y + 7, t + 1, L_TAB + 2048 * (p + 1) + 1024))
        A("ds_write_b128 v%d, v[%d:%d]\nds_write_b128 v%d, v[%d:%d] offset:1152" % (t + 2, O, O + 3, t + 2, O + 4, O + 7))
        A("s_lshr_b32 s%d, s2, 2\ns_lshl_b32 s%d, s%d, 14\ns_and_b32 s%d, s2, 1\ns_lshl_b32 s%d, s%d, 7\ns_add_u32 s%d, s%d, s%d\ns_and_b32 s%d, s2, 2\ns_lshl_b32 s%d, s%d, 11\ns_add_u32 s%d, s%d, s%d\ns_add_u32 s%d, s%d, s%d" %
          (S_T0, S_T0, S_T0, S_T1, S_T1, S_T1, S_T0, S_T0, S_T1, S_T1, S_T1, S_T1, S_T0, S_T0, S_T1, S_T0, S_T0, S_ARG))
        A("v_lshlrev_b32 v%d, 9, v%d\nv_lshl_add_u32 v%d, v%d, 4, v%d\nv_add_u32 v%d, s%d, v%d" % (t, Y + 14, t, Y + 15, t, t, S_T0, t))
        A("s_waitcnt lgkmcnt(0)")
        A("ds_read_b128 v[%d:%d], v%d\nds_read_b128 v[%d:%d], v%d offset:1152" % (O, O + 3, t + 3, O + 4, O + 7, t + 3))
        A("s_lshr_b32 s%d, s%d, 12\ns_add_u32 s%d, s%d, s2\ns_lshl_b32 s%d, s%d, %d\ns_add_u32 s%d, s%d, %d\nv_mov_b32 v%d, s%d" % (S_T0, S_ARG, S_T0, S_T0, S_T0, S_T0, fs, S_T0, S_T0, WS_FK, V_FA, S_T0))
        A("s_waitcnt lgkmcnt(0)")
        A("global_store_dwordx4 v%d, v[%d:%d], %s sc1\nglobal_store_dwordx4 v%d, v[%d:%d], %s offset:256 sc1" % (t, O, O + 3, sp(S_WS), t, O + 4, O + 7, sp(S_WS)))
        A("s_setpc_b64 s[%d:%d]" % (S_RET, S_RET + 1))
        A("L_vtask:")
        self.v_compute(None, V_VSC, Y, Y + 8, None, None)
        A("s_lshr_b32 s%d, s%d, 5\ns_lshl_b32 s%d, s%d, 14\ns_bfe_u32 s%d, s%d, 0x10004\ns_lshl_b32 s%d, s%d, 12\ns_add_u32 s%d, s%d, s%d\ns_lshl_b32 s%d, s%d, 20\ns_add_u32 s%d, s%d, s%d\nv_add_u32 v%d, s%d, v%d" %
          (S_T0, S_VK, S_T0, S_T0, S_T1, S_VK, S_T1, S_T1, S_T0, S_T0, S_T1, S_T1, S_H, S_T0, S_T0, S_T1, t + 1, S_T0, V_VOFF0))
        for hf in range(2):
            for j in range(8):
                for e in range(2): rd(X + 2 * j + e, A_V + 4 * j + 2 * hf + e)
            self.v_compute2(X, Y, Y + 8, t, O)
            A("global_store_dwordx4 v%d, v[%d:%d], %s offset:%d sc1\nglobal_store_dwordx4 v%d, v[%d:%d], %s offset:%d sc1" %
              (t + 1, O, O + 3, sp(S_WS), 2048 * hf, t + 1, O + 4, O + 7, sp(S_WS), 2048 * hf + 1024))
        A("s_lshl_b32 s%d, s%d, 5\ns_add_u32 s%d, s%d, s%d\ns_lshl_b32 s%d, s%d, 2\ns_xor_b32 s%d, s%d, 2\ns_add_u32 s%d, s%d, s%d\ns_lshl_b32 s%d, s%d, %d\ns_add_u32 s%d, s%d, %d\nv_mov_b32 v%d, s%d" %
          (S_T0, S_H, S_T0, S_T0, S_I, S_T0, S_T0, S_T1, S_W, S_T0, S_T0, S_T1, S_T0, S_T0, fs, S_T0, S_T0, WS_FV, V_FA, S_T0))
        A("s_setpc_b64 s[%d:%d]" % (S_RET, S_RET + 1))

    def call_by_role(self, lo, hi):
        A = self.A
        l1 = self.label("L_role"); l2 = self.label("L_roled")
        A("s_cmp_ge_u32 s%d, 2\ns_cbranch_scc1 %s" % (S_W, l1))
        A("s_call_b64 s[%d:%d], %s\ns_branch %s" % (S_RET, S_RET + 1, lo, l2))
        A("%s:\ns_call_b64 s[%d:%d], %s\n%s:" % (l1, S_RET, S_RET + 1, hi, l2))

    def phase1(self):
        A = self.A; M = self.M
        ln = V_LANE
        AQ, AT, LQ, VT = 32, 33, 34, 35
        RT, UT, RQ, TB = 48, 192, 128, 176
        fs = self.fs
        nul = lambda s_, t_: A(s_)
        A("s_cmp_ge_u32 s2, 256\ns_cbranch_scc1 L_end")
        A("s_load_dwordx16 s[4:19], s[0:1], 0\ns_load_dwordx8 s[20:27], s[0:1], 64\ns_load_dwordx2 s[30:31], s[0:1], 104")
        A("v_lshrrev_b32 v1, 6, v0\nv_and_b32 v%d, 63, v0" % ln)
        hb = self.hshare
        if hb == 0:
            A("s_and_b32 s%d, s2, 7\ns_lshr_b32 s%d, s2, 3" % (S_H, S_I))
        else:
            m = (1 << hb) - 1
            A("s_and_b32 s%d, s2, %d\ns_bfe_u32 s%d, s2, 0x%x\ns_or_b32 s%d, s%d, s%d" % (S_H, 7 & ~m, S_T0, (hb << 16) | 3, S_H, S_H, S_T0))
            A("s_lshr_b32 s%d, s2, %d\ns_lshl_b32 s%d, s%d, %d\ns_and_b32 s%d, s2, %d\ns_or_b32 s%d, s%d, s%d" % (S_I, 3 + hb, S_I, S_I, hb, S_T0, m, S_I, S_I, S_T0))
        A("v_readfirstlane_b32 s%d, v1" % S_W)
        self.stamp(0)
        A("s_lshr_b32 s%d, s2, 2\ns_and_b32 s%d, s%d, 2\ns_sub_u32 s%d, s%d, s%d\ns_and_b32 s%d, s%d, 3\ns_and_b32 s%d, s%d, 1\ns_lshl_b32 s%d, s%d, 2\ns_add_u32 s%d, s%d, s%d\ns_lshl_b32 s%d, s%d, 20" %
          (S_T0, S_T1, S_W, S_T1, S_T1, S_T0, S_T1, S_T1, S_T2, S_W, S_T2, S_T2, S_T1, S_T1, S_T2, S_KH, S_T1))
        A("s_xor_b32 s%d, s%d, 2\ns_sub_u32 s%d, s%d, s%d\ns_and_b32 s%d, s%d, 3\ns_lshl_b32 s%d, s%d, 5\ns_lshr_b32 s%d, s%d, 1\ns_lshl_b32 s%d, s%d, 7\ns_add_u32 s%d, s%d, s%d\ns_and_b32 s%d, s%d, 1\ns_lshl_b32 s%d, s%d, 4\ns_add_u32 s%d, s%d, s%d" %
          (S_T0, S_W, S_T0, S_T0, S_H, S_T0, S_T0, S_T0, S_T0, S_T1, S_I, S_T1, S_T1, S_T0, S_T0, S_T1, S_T1, S_I, S_T1, S_T1, S_LIM, S_T0, S_T1))
        self.k_src_addr(10, 8, 9, S_KH)
        A("s_lshl_b32 s%d, s2, 11\nv_lshlrev_b32 v%d, 8, v8\nv_lshl_add_u32 v%d, v9, 4, v%d\nv_add_u32 v%d, s%d, v%d" % (S_T0, AT, AT, AT, VT, S_T0, AT))
        A("; Q: row = 64 i + 16 w + 8u + (l>>3)")
        A("s_lshl_b32 s%d, s%d, 14\ns_lshl_b32 s%d, s%d, 12\ns_add_u32 s%d, s%d, s%d\ns_lshl_b32 s%d, s%d, 19\nv_add_u32 v%d, s%d, v%d\nv_add_u32 v%d, s%d, v%d" % (S_T0, S_I, S_T1, S_W, S_T0, S_T0, S_T1, S_T1, S_H, AT, S_T0, AT, AQ, S_T1, AT))
        A("s_waitcnt lgkmcnt(0)")
        A("s_mov_b32 s%d, s%d" % (S_VK, S_LIM))
        A("s_cmp_ge_u32 s%d, 2\ns_cbranch_scc1 L_r0v" % S_W)
        self.k_raw_loads(A_K0, 10, "r0", nul)
        for k, (sr, off) in enumerate(((S_KC, 0), (S_KC, 128), (S_KSN, 0), (S_KSN, 128))):
            A("global_load_dwordx4 v[%d:%d], v%d, %s offset:%d %s" % (RT + 4 * k, RT + 4 * k + 3, VT, sp(sr), off, self.kt))
        A("s_branch L_r0d\nL_r0v:")
        self.v_src_addr(11, 12, 13)
        self.v_raw_loads(11, "r0", M)
        A("L_r0d:")
        ql = []
        for u in range(2):
            b = RQ + 24 * u
            for (r, v, sr, off, m) in ((0, AQ, S_Q, 0, "nt"), (4, AQ, S_Q, 128, "nt"), (8, AT, S_QC, 0, self.qt), (12, AT, S_QC, 128, self.qt), (16, AT, S_QS, 0, self.qt), (20, AT, S_QS, 128, self.qt)):
                ql.append(("global_load_dwordx4 v[%d:%d], v%d, %s offset:%d %s" % (b + r, b + r + 3, v, sp(sr), 2048 * u + off, m), "q%d" % u))
        self.next_head(S_ARG)
        A("s_lshl_b32 s%d, s2, 4\ns_lshr_b32 s%d, s%d, 8\ns_add_u32 s%d, s%d, s%d\ns_lshr_b32 s%d, s%d, 8\ns_add_u32 s%d, s%d, s%d" % (S_T0, S_T1, S_KH, S_T1, S_T1, S_T0, S_T2, S_ARG, S_T2, S_T2, S_T0))
        A("s_lshl_b32 s%d, s%d, 12\ns_lshr_b32 s%d, s%d, 5\ns_lshl_b32 s%d, s%d, 6\ns_add_u32 s%d, s%d, s%d\ns_mov_b32 s%d, %d" % (S_T3, S_H, S_T0, S_VK, S_T0, S_T0, S_T3, S_T3, S_T0, S_T0, WS_EPOCH))
        A("s_load_dword s%d, %s, s%d" % (S_TAG, sp(S_WS), S_T0))
        A("s_load_dwordx4 s[%d:%d], %s, s%d\ns_load_dwordx4 s[%d:%d], %s, s%d" % (S_SC, S_SC + 3, sp(S_KS), S_T1, S_SC + 4, S_SC + 7, sp(S_KZ), S_T1))
        A("s_load_dwordx4 s[%d:%d], %s, s%d\ns_load_dwordx4 s[%d:%d], %s, s%d" % (S_SC + 8, S_SC + 11, sp(S_KS), S_T2, S_SC + 12, S_SC + 15, sp(S_KZ), S_T2))
        A("s_load_dwordx16 s[48:63], %s, s%d\ns_load_dwordx16 s[84:99], %s, s%d" % (sp(S_VS), S_T3, sp(S_VZ), S_T3))
        for s, t in ql[:self.qsplit]: M(s, t)
        A("v_lshlrev_b32 v%d, 4, v%d\nv_add_u32 v%d, 4096, v%d\nv_add_u32 v%d, 8192, v%d\nv_add_u32 v%d, 12288, v%d" % (V_KOFF0, ln, V_KOFF1, V_KOFF0, V_VOFF0, V_KOFF0, V_VOFF1, V_KOFF0))
        for r in range(64): A("v_accvgpr_write_b32 a%d, 0" % (64 + r))
        A("s_waitcnt lgkmcnt(0)")
        for g in range(4):
            if g: A("s_lshl_b64 exec, -1, %d" % (16 * g))
            for z, sb in enumerate((48, 84)):
                for k, dw in enumerate((0, 1, 8, 9)): A("v_mov_b32 v%d, s%d" % (V_VSC + 4 * z + k, sb + dw + 2 * g))
        A("s_mov_b64 exec, -1")
        A("s_mov_b32 s%d, 0x%08x\ns_mov_b32 s%d, 0x%08x\ns_mov_b32 s%d, 0x%08x" % (S_C, f32bits(CSCALE), S_C + 1, f32bits(CSCALE), S_THR, f32bits(THRESH)))
        A("s_mul_i32 s%d, s%d, 4160\ns_add_u32 s%d, s%d, %d" % (S_T0, S_W, S_T0, S_T0, L_Q))
        A("v_lshrrev_b32 v12, 1, v9\nv_mul_u32_u24 v%d, 1040, v12\nv_and_b32 v12, 1, v9\nv_lshl_add_u32 v%d, v12, 9, v%d\nv_lshl_add_u32 v%d, v8, 4, v%d\nv_add_u32 v%d, s%d, v%d" % (LQ, LQ, LQ, LQ, LQ, LQ, S_T0, LQ))
        A("v_lshrrev_b32 v12, 5, v%d\nv_bfe_u32 v13, v%d, 3, 2\nv_lshl_add_u32 v13, v13, 2, s%d" % (ln, ln, S_W))
        A("v_subrev_u32 v14, s%d, v12\nv_and_b32 v14, 3, v14\nv_lshl_add_u32 v14, v13, 2, v14\nv_lshlrev_b32 v14, 2, v14\nv_add_u32 v14, v9, v14" % S_H)
        A("s_lshl_b32 s%d, s%d, 8\nv_add_u32 v14, s%d, v14\nv_lshlrev_b32 v14, %d, v14\nv_add_u32 v14, %d, v14" % (S_T0, S_H, S_T0, fs, WS_FK))
        A("v_and_b32 v15, 1, v9\nv_lshl_add_u32 v15, v13, 1, v15\nv_lshl_add_u32 v15, v15, 2, v12\ns_lshl_b32 s%d, s%d, 7\nv_add_u32 v15, s%d, v15\nv_lshlrev_b32 v15, %d, v15\nv_add_u32 v15, %d, v15" % (S_T0, S_H, S_T0, fs, WS_FV))
        A("v_cmp_gt_u32 vcc, 4, v9\ns_nop 1\nv_cndmask_b32 v%d, v15, v14, vcc" % V_PA)
        A("s_mov_b32 s%d, s%d\ns_mov_b32 s%d, s%d\ns_mov_b32 s%d, 0x800000\ns_mov_b32 s%d, 0x20000" % (S_SRD, S_WS, S_SRD + 1, S_WS + 1, S_SRD + 2, S_SRD + 3))
        A("s_lshl_b32 s%d, s%d, 20\ns_lshl_b32 s%d, s%d, 16\ns_add_u32 s%d, s%d, s%d" % (S_T0, S_H, S_T1, S_W, S_T0, S_T0, S_T1))
        A("s_lshr_b32 s%d, s%d, %d" % (S_T2, S_I, self.hshare))
        for n in range(4):
            A("s_add_u32 s%d, s%d, %d\ns_and_b32 s%d, s%d, 3\ns_lshl_b32 s%d, s%d, 18\ns_add_u32 s%d, s%d, s%d" % (S_T1, S_T2, n, S_T1, S_T1, S_T1, S_T1, S_TBL + 12 + n, S_T1, S_T0))
        for sg in range(4):
            A("s_sub_u32 s%d, %d, s%d\ns_and_b32 s%d, s%d, 3\ns_lshl_b32 s%d, s%d, 14" % (S_T1, sg, S_H, S_T1, S_T1, S_T1, S_T1))
            for n in range(4): A("s_add_u32 s%d, s%d, s%d" % (S_TBL + 4 * sg + n, S_TBL + 12 + n, S_T1))
        A("s_mov_b32 s%d, s%d" % (S_TBL + 16, S_TBL))
        A("s_add_u32 s%d, s%d, 0x9e3779b9" % (S_TAG, S_TAG))
        A("s_sub_u32 s%d, s%d, s%d\ns_cmp_lt_u32 s%d, 2\ns_cselect_b32 s%d, s%d, 0\nv_add_u32 v10, s%d, v10" % (S_T0, S_ARG, S_KH, S_W, S_T0, S_T0, S_T0))
        def r1loads():
            A("s_cmp_ge_u32 s%d, 2\ns_cbranch_scc1 L_r1b" % S_W)
            self.k_raw_loads(A_K1, 10, "r1", nul)
            A("s_branch L_r1d\nL_r1b:")
            self.k_raw_loads(A_K0, 10, "r1", M)
            A("L_r1d:")
        def r2loads():
            A("s_cmp_ge_u32 s%d, 2\ns_cbranch_scc1 L_r2k" % S_W)
            self.v_src_addr(V_TMP0, V_TMP1, V_TMP2)
            self.v_raw_loads(V_TMP0, "r2", nul)
            A("s_branch L_r2d\nL_r2k:")
            self.next_head(S_ARG)
            self.k_src_addr(V_TMP0, V_TMP1, V_TMP2, S_ARG)
            self.k_raw_loads(A_K1, V_TMP0, "r2", M)
            A("L_r2d:")
        if self.r1pos == 0: r1loads()
        if self.r2pos == 3: r2loads()
        A("; ---- round 0")
        self.wait("r0")
        self.stamp(1)
        A("s_cmp_ge_u32 s%d, 2\ns_cbranch_scc1 L_notab" % S_W)
        self.unpack_tab(UT, RT)
        A("s_lshl_b32 s%d, s%d, 13\nv_add_u32 v12, s%d, v%d" % (S_T0, S_W, S_T0, V_KOFF0))
        for k in range(8): A("ds_write_b128 v12, v[%d:%d] offset:%d" % (UT + 4 * k, UT + 4 * k + 3, L_TAB + 1024 * k))
        A("s_waitcnt lgkmcnt(0)")
        A("L_notab:")
        self.call_by_role("L_ktask0", "L_vtask")
        self.vm.append("st")
        self.stamp(13)
        A("s_barrier")
        for s, t in ql[self.qsplit:]: M(s, t)
        if self.r1pos == 1: r1loads()
        if self.r2pos == 2: r2loads()
        self.wait("st")
        self.flag_store(1)
        self.stamp(2)
        if self.r2pos == 0: r2loads()
        def qunit(u):
            b = RQ + 24 * u
            self.unpack_tab(UT, b + 8)
            x1, x2 = 48, 56
            for p in range(4):
                self.unpack(x1 + 2 * p, b + p); self.unpack(x2 + 2 * p, b + 4 + p)
            for p in range(8): A("v_pk_mul_f32 %s, %s, %s" % (P2(x1 + 2 * p), P2(x1 + 2 * p), sp(S_C)))
            for p in range(4): self.rope_p(x1 + 2 * p, x2 + 2 * p, UT + 8 * p, TB, TB + 2, b + p, b + 4 + p)
            A("ds_write_b128 v%d, v[%d:%d] offset:%d\nds_write_b128 v%d, v[%d:%d] offset:%d" % (LQ, b, b + 3, 128 * u, LQ, b + 4, b + 7, 128 * u + 256))
        self.wait("q0")
        self.stamp(10)
        qunit(0)
        if self.r2pos == 1: r2loads()
        self.wait("q1")
        qunit(1)
        self.stamp(14)
        def qsync():
            A("s_waitcnt lgkmcnt(0)\ns_barrier")
            self.stamp(11)
            for f in range(16):
                a = 128 + 4 * f
                A("ds_read_b128 a[%d:%d], v%d offset:%d" % (a, a + 3, V_KOFF0, L_Q + f * 1040))
        if self.qbar: qsync()
        A("; ---- round 1")
        self.wait("r1")
        self.call_by_role("L_ktask1", "L_ktask0")
        self.vm += ["st", "st"]
        M("global_load_dword v%d, v%d, %s sc1" % (AQ, V_PA, sp(S_WS)), "poll")
        if not self.qbar: qsync()
        A("s_mov_b32 s%d, s%d" % (S_OFF, S_TBL))
        self.wait("poll")
        self.stamp(15)
        self.flag_store(1)
        A("v_cmp_ne_u32 vcc, s%d, v%d\ns_mov_b32 s%d, vcc_lo\ns_cmp_lg_u32 vcc_lo, 0\ns_cbranch_scc1 L_nok0" % (S_TAG, AQ, S_HOOK))
        for k in range(8): A(self.ld_k(k, 0))
        A("L_nok0:")
        A("; ---- round 2")
        self.call_by_role("L_vtask", "L_ktask1")
        self.stamp(12)
        A("s_cmp_eq_u32 s%d, 0\ns_cbranch_scc1 L_havek" % S_HOOK)
        A("s_mov_b32 s%d, 0" % S_CNT)
        A("L_p0:")
        A("global_load_dword v%d, v%d, %s sc1\ns_waitcnt vmcnt(0)" % (AQ, V_PA, sp(S_WS)))
        A("v_cmp_ne_u32 vcc, s%d, v%d\ns_cmp_eq_u32 vcc_lo, 0\ns_cbranch_scc1 L_p0d" % (S_TAG, AQ))
        if self.sleep: A("s_sleep %d" % self.sleep)
        A("s_add_u32 s%d, s%d, 1\ns_cmp_lt_u32 s%d, 0x8000\ns_cbranch_scc1 L_p0" % (S_CNT, S_CNT, S_CNT))
        A("L_p0d:")
        for k in range(8): A(self.ld_k(k, 0))
        A("s_waitcnt vmcnt(0)")
        A("L_havek:")
        self.stamp(3)
        self.vm = ["K0", "st2", "st2"]

    def mfma_qk(self, x, idx, kset, first_c=None):
        ql, kt, ks = idx >> 3, (idx >> 2) & 1, idx & 3
        s = V_S[x] + 8 * ql + 4 * kt; k = V_K[kset] + 4 * (4 * kt + ks); q = A_Q(x, ql, ks)
        if ks == 0: c = first_c if first_c is not None else "v[%d:%d]" % (V_NM[x] + 4 * ql, V_NM[x] + 4 * ql + 3)
        else: c = "v[%d:%d]" % (s, s + 3)
        return "v_mfma_f32_16x16x32_bf16 v[%d:%d], v[%d:%d], a[%d:%d], %s" % (s, s + 3, k, k + 3, q, q + 3, c)
    def mfma_pv(self, x, idx, vset, first=False):
        dt, ql = idx >> 1, idx & 1
        o = A_O(x, ql, dt); v = V_V[vset] + 4 * dt; p = V_P[x] + 4 * ql
        c = "0" if first else "a[%d:%d]" % (o, o + 3)
        return "v_mfma_f32_16x16x32_bf16 a[%d:%d], v[%d:%d], v[%d:%d], %s" % (o, o + 3, v, v + 3, p, p + 3, c)
    def ld_k(self, ks, kset):
        r = V_K[kset] + 4 * ks
        return "buffer_load_dwordx4 v[%d:%d], v%d, s[%d:%d], s%d offen offset:%d sc1" % (r, r + 3, V_KOFF0 + (ks >> 2), S_SRD, S_SRD + 3, S_OFF, (ks & 3) * 1024)
    def ld_v(self, idx, vset):
        r = V_V[vset] + 4 * idx
        return "buffer_load_dwordx4 v[%d:%d], v%d, s[%d:%d], s%d offen offset:%d sc1" % (r, r + 3, V_VOFF0 + (idx >> 2), S_SRD, S_SRD + 3, S_OFF, (idx & 3) * 1024)
    def op_e(self, x, r): return "v_exp_f32 v%d, v%d" % (V_E[x] + r, V_S[x] + r)
    def op_a(self, x, r):
        t = V_T[x] + (r >> 3)
        if (r & 7) == 1: return "v_add_f32 v%d, v%d, v%d" % (t, V_E[x] + r - 1, V_E[x] + r)
        return "v_add_f32 v%d, v%d, v%d" % (t, t, V_E[x] + r)
    def op_c(self, x, k): return "v_cvt_pk_bf16_f32 v%d, v%d, v%d" % (V_P[x] + k, V_E[x] + 2 * k, V_E[x] + 2 * k + 1)
    def op_f(self, x, ql): return "v_add_f32 v%d, v%d, v%d" % (V_L[x] + ql, V_L[x] + ql, V_T[x] + ql)
    def op_chk(self, x):
        stub = self.label("L_slow_%s" % x); ret = self.label("L_ret_%s" % x)
        self.stubs.append((stub, ret, x))
        return ["v_add_f32 v%d, v%d, v%d" % (V_CH, V_T[x], V_T[x] + 1), "v_cmp_nge_f32 vcc, s%d, v%d" % (S_THR, V_CH), "s_cbranch_vccnz %s" % stub, "%s:" % ret]

    PERIODS = {
      0: ["e0 F0", "e1 F1", "L", "L a1",
          "e2", "e3 c0", "L", "a2 a3 c1",
          "e4", "e5", "L", "a4 a5 c2",
          "e6 W1", "e7", "L", "a6 a7 c3",
          "e8", "e9", "L", "a9 c4",
          "e10", "e11", "L", "a10 a11 c5",
          "e12", "e13 W2", "L", "a12 a13 c6",
          "e14", "e15", "a14 a15", "c7 K"],
      1: ["e0", "e1", "L", "L",
          "e2", "e3", "F0 F1 a1", "L",
          "e4", "e5", "a2 a3 c0", "L",
          "W1 e6", "e7", "a4 a5 c1", "L",
          "e8", "e9", "a6 a7 c2", "L",
          "e10", "e11", "a9 c3 c4", "L",
          "S1 e12", "W2 e13", "L", "a10 a11 c5",
          "S2 e14", "e15", "a12 a13 a14 c6", "a15 c7 K"],
      2: ["e0", "e1", "L", "L",
          "e2", "e3", "F0 F1", "L",
          "e4", "a1 a2 c0", "e5", "L",
          "W1 e6", "a3 a4 c1", "e7", "L",
          "e8", "a5 a6 c2", "e9", "L",
          "e10", "a7 a9 c3", "e11", "L",
          "S1 e12", "a10 a11 c4", "L", "W2 e13",
          "S2 e14", "e15 c5", "a12 a13 a14 c6", "a15 c7 K"],
    }
    def iteration(self, jp, loads=True):
        out = []
        kq = (jp + 1) & 1
        for p in range(64):
            if p < 16: out.append(self.mfma_qk('a', p, kq))
            elif p < 32: out.append(self.mfma_pv('b', p - 16, jp))
            elif p < 48: out.append(self.mfma_qk('b', p - 32, kq))
            else: out.append(self.mfma_pv('a', p - 48, kq))
            if p < 16: x, u = 'b', p + 16
            elif p < 48: x, u = 'a', p - 16
            else: x, u = 'b', p - 48
            y = 'a' if x == 'b' else 'b'
            for tok in self.PERIOD[u].split():
                c = tok[0]
                if c == 'L':
                    li = sum(self.PERIOD[v].split().count('L') for v in range(u))
                    if not loads: continue
                    if x == 'a': out.append(self.ld_v(li, jp))
                    elif p >= 48: out.append(self.ld_k(li, kq))
                    else: out.append(self.ld_k(li, jp))
                elif c == 'e': out.append(self.op_e(x, int(tok[1:])))
                elif c == 'a': out.append(self.op_a(x, int(tok[1:])))
                elif c == 'c': out.append(self.op_c(x, int(tok[1:])))
                elif c == 'F': out.append(self.op_f(y, int(tok[1:])))
                elif c == 'K': out += self.op_chk(x)
                elif c == 'W':
                    if tok == "W2" and x == 'a': out.append("@WAIT_V")
                    if tok == "W1" and x == 'b': out.append("@WAIT_K")
                elif c == 'S':
                    if x == 'a' and loads: out.append("@" + tok)
        return out
    def emit_iter(self, it):
        A = self.A
        lastv = max(k for k, s in enumerate(it) if s.startswith("buffer_load") and (" v%d," % V_VOFF1) in s)
        for k, s in enumerate(it):
            if s == "@WAIT_V": s = "s_waitcnt vmcnt(%d)" % self.wv
            if s == "@WAIT_K": s = "s_waitcnt vmcnt(%d)" % self.wk
            if s == "@S1": s = "s_add_u32 m0, m0, 1"
            if s == "@S2":
                assert k > lastv
                s = "s_movrels_b32 s%d, s%d" % (S_OFF, S_TBL)
            A(s)
            if "@S1" not in it:
                if k == lastv - 5: A("s_add_u32 m0, m0, 1")
                if k == lastv + 6: A("s_movrels_b32 s%d, s%d" % (S_OFF, S_TBL))
    def compute_waits(self):
        self.stubs = []
        it = self.iteration(0)
        seq = it + it + it
        n = len(it)
        isld = lambda s: s.startswith("buffer_load")
        isv = lambda s: isld(s) and ((" v%d," % V_VOFF0) in s or (" v%d," % V_VOFF1) in s)
        kv = 2 * n + it.index("@WAIT_V")
        lastv = max(k for k in range(n, 2 * n) if isv(seq[k]))
        self.wv = sum(1 for k in range(lastv + 1, kv) if isld(seq[k]))
        kk = 2 * n + it.index("@WAIT_K")
        idx = [k for k, s in enumerate(it) if s.startswith("v_mfma")]
        lastk = 2 * n + max(k for k in range(0, idx[16]) if isld(it[k]))
        self.wk = sum(1 for k in range(lastk + 1, kk) if isld(seq[k]))
        self.uid = 0
        self.stubs = []

    def xlane(self, op, t0, t1):
        o = []
        for sw in ("v_permlane16_swap_b32", "v_permlane32_swap_b32"):
            o += ["v_mov_b32 v%d, v%d" % (t1, t0), "s_nop 1", "%s v%d, v%d" % (sw, t0, t1), "s_nop 1", "%s v%d, v%d, v%d" % (op, t0, t0, t1)]
        return o
    def max8(self, t0, s, last):
        o = ["v_max3_f32 v%d, v%d, v%d, v%d" % (t0, s, s + 1, s + 2)]
        o += ["v_max3_f32 v%d, v%d, v%d, v%d" % (t0, s + r, s + r + 1, t0) for r in (3, 5)]
        o.append("v_max3_f32 v%d, v%d, v%d, %s" % (t0, s + 7, t0, last))
        return o

    def slow_sub(self, x):
        A = self.A
        t0, t1 = V_TMP0, V_TMP1
        A("L_sub_%s:" % x)
        A("s_nop 7")
        for ql in range(2):
            s, nm = V_S[x] + 8 * ql, V_NM[x] + 4 * ql
            for l in self.max8(t0, s, "0") + self.xlane("v_max_f32", t0, t1): A(l)
            A("v_exp_f32 v%d, -v%d" % (t1, t0))
            for r in range(8): A("v_sub_f32 v%d, v%d, v%d" % (s + r, s + r, t0))
            for r in range(4): A("v_sub_f32 v%d, v%d, v%d" % (nm + r, nm + r, t0))
            A("v_mul_f32 v%d, v%d, v%d" % (V_L[x] + ql, V_L[x] + ql, t1))
            for r in range(32):
                a = A_O(x, ql, 0) + r
                A("v_accvgpr_read_b32 v%d, a%d\nv_mul_f32 v%d, v%d, v%d\nv_accvgpr_write_b32 a%d, v%d" % (V_TMP2, a, V_TMP2, V_TMP2, t1, a, V_TMP2))
        for r in range(16): A(self.op_e(x, r))
        A("s_nop 0")
        for r in range(16):
            if r & 7: A(self.op_a(x, r))
        for k in range(8): A(self.op_c(x, k))
        A("s_nop 3")
        A("s_setpc_b64 s[%d:%d]" % (S_RET, S_RET + 1))

    def first_fix(self, x):
        seqs = []
        for ql in range(2):
            s, nm = V_S[x] + 8 * ql, V_NM[x] + 4 * ql
            t0, t1 = V_T[x] + ql, V_E[x] + ql
            o = self.max8(t0, s, "v%d" % t0) + [l for l in self.xlane("v_max_f32", t0, t1)]
            o += ["v_sub_f32 v%d, v%d, v%d" % (s + r, s + r, t0) for r in range(8)]
            o += ["v_sub_f32 v%d, 0, v%d" % (nm + r, t0) for r in range(4)]
            seqs.append(o)
        out = []
        for a, b in zip(*seqs):
            if a == "s_nop 1": out.append("s_nop 0")
            else: out += [a, b]
        return out

    def main(self):
        A = self.A; M = self.M
        for r in range(4): A("v_mov_b32 v%d, 0" % (V_L['a'] + r))
        pend = [(self.ld_v(k, 0), "V0") for k in range(8)] + [None] + [(self.ld_k(k, 1), "K1") for k in range(8)] + [(self.ld_v(k, 1), "V1") for k in range(8)]
        def nxt():
            if not pend: return
            if pend[0] is None:
                pend.pop(0); A("s_mov_b32 s%d, s%d" % (S_OFF, S_TBL + 1))
            M(*pend.pop(0))
        for k in range(self.vpre): nxt()
        self.wait("K0", " lgkmcnt(0)")
        self.stamp(4)
        for idx in range(16):
            A(self.mfma_qk('a', idx, 0, first_c="0"))
            if idx & 1: nxt()
        seq = self.first_fix('a')
        for r in range(16):
            seq.append(self.op_e('a', r))
            if r >= 1 and ((r - 1) & 7): seq.append(self.op_a('a', r - 1))
        seq += [self.op_c('a', 0), self.op_a('a', 15)] + [self.op_c('a', k) for k in range(1, 8)]
        pos = 0
        for idx in range(16):
            A(self.mfma_qk('b', idx, 0, first_c="0"))
            if idx < 4:
                if idx & 1: nxt()
            else:
                for s in seq[pos:pos + 2]: A(s)
                pos += 2
        rest = seq[pos:] + self.first_fix('b')
        for k, s in enumerate(rest):
            A(s)
            if k % 4 == 3: nxt()
        while pend: nxt()
        A("s_mov_b32 m0, 2\ns_mov_b32 s%d, s%d" % (S_OFF, S_TBL + 2))
        self.wait("V0")
        self.flag_store(1)
        it = self.iteration(1)
        idx = [k for k, s in enumerate(it) if s.startswith("v_mfma")]
        tail = it[idx[48]:]
        nm = 0
        for s in tail:
            if s.startswith("v_mfma"):
                s = self.mfma_pv('a', nm, 0, first=True); nm += 1
            if s == "@WAIT_K": self.wait("K1"); continue
            if s.startswith("buffer_load"): M(s, "K2"); continue
            A(s)
        self.stamp(5)
        self.cstamp(8)
        A("global_load_dword v%d, v%d, %s sc1       ; stage-1 flags" % (V_FA, V_PA, sp(S_WS)))
        A("s_mov_b32 s%d, 4" % S_LIM)
        A(".p2align 6")
        A("L_loop:")
        self.emit_iter(self.iteration(0))
        A("s_cmp_eq_u32 m0, 3\ns_cbranch_scc1 L_hook")
        A("L_mid:")
        self.emit_iter(self.iteration(1))
        A("s_cmp_lt_u32 m0, s%d\ns_cbranch_scc1 L_loop" % S_LIM)
        A("s_cmp_eq_u32 m0, 16\ns_cbranch_scc1 L_tail")
        A("s_cmp_eq_u32 m0, 6\ns_cbranch_scc1 L_ev2")
        A("v_and_b32 v%d, 4, v%d\nv_cmp_eq_u32 vcc, 0, v%d\nv_xor_b32 v%d, %d, v%d\nv_add_u32 v%d, %d, v%d\nv_cndmask_b32 v%d, v%d, v%d, vcc" %
          (V_TMP0, V_LANE, V_TMP0, V_TMP1, 8 << self.fs, V_PA, V_TMP2, 2 << self.fs, V_PA, V_PA, V_TMP2, V_TMP1))
        A("global_load_dword v%d, v%d, %s sc1" % (V_FA, V_PA, sp(S_WS)))
        A("s_mov_b32 s%d, 6\ns_branch L_loop" % S_LIM)
        A("L_ev2:")
        A("s_mov_b32 s%d, 16" % S_LIM)
        A("v_cmp_ne_u32 vcc, s%d, v%d\ns_cbranch_vccz L_loop" % (S_TAG, V_FA))
        self.poll(V_PA)
        A("s_branch L_loop")
        A("L_hook:")
        A("s_waitcnt vmcnt(16)")
        A("v_cmp_ne_u32 vcc, s%d, v%d\ns_cbranch_vccz L_mid" % (S_TAG, V_FA))
        self.poll(V_PA)
        A("s_branch L_mid")
        A("L_tail:")
        it = self.iteration(0, loads=False)
        for s in it:
            if s in ("@WAIT_V", "@WAIT_K"): s = "s_waitcnt vmcnt(0)"
            A(s)
        it = self.iteration(1, loads=False)
        idx = [k for k, s in enumerate(it) if s.startswith("v_mfma")]
        prev = ""
        for k, s in enumerate(it[:idx[32]]):
            if s.startswith("v_mfma") and k < idx[16]: continue
            if k >= idx[16] and not s.startswith("v_mfma"):
                if s not in (self.op_f('b', 0), self.op_f('b', 1)): continue
            if s.startswith("@"): continue
            if prev.startswith("v_exp") and not s.startswith("v_exp"): A("s_nop 0")
            A(s); prev = s
        self.stamp(6)
        self.cstamp(9)

    def epilogue(self):
        A = self.A
        ln = V_LANE
        NM = V_NM['a']; LL = V_L['a']
        seqs = [self.xlane("v_add_f32", LL + q, 16 + q) for q in range(4)]
        for grp in zip(*seqs):
            if grp[0].startswith("s_nop"): continue
            for l in grp: A(l)
        for q in range(4): A("v_mov_b32 v%d, v%d" % (NM + 4 * q + 1, LL + q))
        A("s_lshl_b32 s%d, s%d, 11\ns_add_u32 s%d, s%d, %d" % (S_T0, S_W, S_T0, S_T0, L_ST))
        A("v_lshlrev_b32 v44, 3, v%d\nv_add_u32 v45, s%d, v44" % (ln, S_T0))
        for q in range(4): A("ds_write_b64 v45, v[%d:%d] offset:%d" % (NM + 4 * q, NM + 4 * q + 1, 512 * q))
        for d in range(4):
            skip = self.label("L_skipw")
            A("s_cmp_eq_u32 s%d, %d\ns_cbranch_scc1 %s" % (S_W, d, skip))
            A("s_sub_u32 s%d, s%d, %d\ns_and_b32 s%d, s%d, 3\ns_lshl_b32 s%d, s%d, 13\ns_add_u32 s%d, s%d, %d" %
              (S_T0, S_W, d + 1, S_T0, S_T0, S_T0, S_T0, S_T0, S_T0, L_O + d * 3 * 8192))
            A("v_add_u32 v45, s%d, v%d" % (S_T0, V_KOFF0))
            for idx in range(8): A("ds_write_b128 v45, a[%d:%d] offset:%d" % (32 * d + 4 * idx, 32 * d + 4 * idx + 3, idx * 1024))
            A("%s:" % skip)
        own = 128
        done = self.label("L_own")
        for d in range(4):
            nxt = self.label("L_ownn")
            if d < 3: A("s_cmp_lg_u32 s%d, %d\ns_cbranch_scc1 %s" % (S_W, d, nxt))
            for r in range(32): A("v_accvgpr_read_b32 v%d, a%d" % (own + r, 32 * d + r))
            if d < 3: A("s_branch %s\n%s:" % (done, nxt))
        A("%s:" % done)
        A("s_waitcnt lgkmcnt(0)\ns_barrier")
        st = 16
        A("s_lshl_b32 s%d, s%d, 9\ns_add_u32 s%d, s%d, %d" % (S_T1, S_W, S_T1, S_T1, L_ST))
        for k in range(4):
            A("s_add_u32 s%d, s%d, %d\ns_and_b32 s%d, s%d, 3\ns_lshl_b32 s%d, s%d, 11\ns_add_u32 s%d, s%d, s%d" % (S_T0, S_W, k, S_T0, S_T0, S_T0, S_T0, S_T0, S_T0, S_T1))
            A("v_add_u32 v45, s%d, v44" % S_T0)
            A("ds_read_b64 v[%d:%d], v45" % (st + 2 * k, st + 2 * k + 1))
        A("s_mul_i32 s%d, s%d, 24576\ns_add_u32 s%d, s%d, %d\nv_add_u32 v45, s%d, v%d" % (S_T0, S_W, S_T0, S_T0, L_O, S_T0, V_KOFF0))
        pb = 160
        order = [(k, idx) for idx in range(8) for k in range(3)]
        for (k, idx) in order[:9]:
            r = pb + (k * 8 + idx) * 4
            A("ds_read_b128 v[%d:%d], v45 offset:%d" % (r, r + 3, k * 8192 + idx * 1024))
        A("s_waitcnt lgkmcnt(9)")
        F = 32
        A("v_min3_f32 v40, v%d, v%d, v%d\nv_min_f32 v40, v40, v%d" % (st, st + 2, st + 4, st + 6))
        for k in range(4): A("v_sub_f32 v%d, v40, v%d" % (F + k, st + 2 * k))
        for k in range(4): A("v_exp_f32 v%d, v%d" % (F + k, F + k))
        A("s_nop 0")
        A("v_mul_f32 v41, v%d, v%d" % (F, st + 1))
        for k in range(1, 4): A("v_fmac_f32 v41, v%d, v%d" % (F + k, st + 2 * k + 1))
        A("v_rcp_f32 v41, v41\ns_nop 0")
        for k in range(4): A("v_mul_f32 v%d, v%d, v41" % (F + k, F + k))
        A("s_lshl_b32 s%d, s%d, 19\ns_lshl_b32 s%d, s%d, 14\ns_add_u32 s%d, s%d, s%d\ns_lshl_b32 s%d, s%d, 12\ns_add_u32 s%d, s%d, s%d" %
          (S_T0, S_H, S_T1, S_I, S_T0, S_T0, S_T1, S_T1, S_W, S_T0, S_T0, S_T1))
        A("v_and_b32 v42, 15, v%d\nv_lshrrev_b32 v43, 4, v%d\nv_lshlrev_b32 v42, 8, v42\nv_lshl_add_u32 v42, v43, 5, v42\nv_add_u32 v42, s%d, v42" % (ln, ln, S_T0))
        issued = 9
        ob = 48
        for idx in range(8):
            while issued < min(24, 3 * idx + 12):
                k, i2 = order[issued]
                r = pb + (k * 8 + i2) * 4
                A("ds_read_b128 v[%d:%d], v45 offset:%d" % (r, r + 3, k * 8192 + i2 * 1024)); issued += 1
            A("s_waitcnt lgkmcnt(%d)" % (issued - 3 * idx - 3))
            for pr in range(2):
                r = own + idx * 4 + 2 * pr
                A("v_pk_mul_f32 %s, %s, %s op_sel_hi:[1,0]" % (P2(r), P2(r), P2(F)))
                for k in range(3):
                    fr = F + 1 + k
                    q = fr & 1
                    A("v_pk_fma_f32 %s, %s, %s, %s op_sel:[0,%d,0] op_sel_hi:[1,%d,1]" % (P2(r), P2(pb + (k * 8 + idx) * 4 + 2 * pr), P2(fr & ~1), P2(r), q, q))
            if (idx & 3) == 3:
                dh = idx >> 2
                for hf in range(2):
                    o = ob + (dh * 2 + hf) * 4
                    for ii in range(2):
                        i = 2 * hf + ii
                        for tp in range(2):
                            A("v_cvt_pk_bf16_f32 v%d, v%d, v%d" % (o + 2 * ii + tp, own + (dh * 4 + 2 * tp) * 4 + i, own + (dh * 4 + 2 * tp + 1) * 4 + i))
                    A("global_store_dwordx4 v42, v[%d:%d], %s offset:%d %s" % (o, o + 3, sp(S_OUT), 128 * dh + 16 * hf, self.omod))

    def dump_stamps(self):
        if not self.stamps: return
        A = self.A
        A("s_lshl_b32 s100, s2, 2\ns_add_u32 s100, s100, s%d\ns_lshl_b32 s100, s100, 6\ns_add_u32 s100, s100, %d" % (S_W, 16 << 20))
        A("v_lshlrev_b32 v2, 2, v%d\nv_add_u32 v2, s100, v2\ns_mov_b64 exec, 0xffff" % V_LANE)
        A("global_store_dword v2, v%d, %s\ns_mov_b64 exec, -1" % (V_STAMP, sp(S_WS)))

    def build(self):
        A = self.A
        K = NAME + "_kernel"
        self.cold = []
        self.compute_waits()
        hdr = open("cdna_kernels/%s.s.ref" % NAME).read().split("; @launch")[0]
        A(hdr.rstrip("\n"))
        A("; @launch grid=(256,1,1) block=(256,1,1) lds=%d" % LDS_BYTES)
        A('.amdgcn_target "amdgcn-amd-amdhsa--gfx950"\n.text')
        A(".globl %s\n.p2align 8\n.type %s,@function\n%s:" % (K, K, K))
        self.phase1()
        self.main()
        self.epilogue()
        A("s_cmp_lg_u32 s2, 0\ns_cbranch_scc1 L_noep\ns_cmp_lg_u32 s%d, 0\ns_cbranch_scc1 L_noep" % S_W)
        A("v_mov_b32 v1, %d\nv_mov_b32 v2, s%d\ns_mov_b64 exec, 1\nglobal_store_dword v1, v2, %s sc1\ns_mov_b64 exec, -1" % (WS_EPOCH, S_TAG, sp(S_WS)))
        A("L_noep:")
        self.stamp(7)
        self.dump_stamps()
        if self.probe is not None:
            A("v_readlane_b32 s70, v7, %d\ns_nop 3\ns_add_u32 s70, s70, 3000\nL_spin:\ns_memrealtime s[100:101]\ns_waitcnt lgkmcnt(0)\ns_sub_u32 s71, s70, s100\ns_cmp_gt_i32 s71, 0\ns_cbranch_scc1 L_spin" % self.probe)
        A("L_end:\ns_endpgm")
        live = [st for st in self.stubs if any(s.endswith(' ' + st[0]) for s in self.L)]
        for stub, ret, x in live:
            A("%s:\ns_call_b64 s[%d:%d], L_sub_%s\ns_branch %s" % (stub, S_RET, S_RET + 1, x, ret))
        self.subs()
        for lab, ret, regs in self.cold:
            A("%s:" % lab)
            for k in range(0, len(regs), 2): self.round_pair(regs[k])
            A("s_branch %s" % ret)
        self.slow_sub('a'); self.slow_sub('b')
        A('.section .rodata,"a"')
        A('.p2align 6\n.amdhsa_kernel %s\n  .amdhsa_next_free_vgpr 512\n  .amdhsa_next_free_sgpr 102\n  .amdhsa_accum_offset 256\n'
          '  .amdhsa_group_segment_fixed_size 0\n  .amdhsa_kernarg_size 112\n  .amdhsa_user_sgpr_count 2\n'
          '  .amdhsa_user_sgpr_kernarg_segment_ptr 1\n  .amdhsa_system_sgpr_workgroup_id_x 1\n.end_amdhsa_kernel' % K)
        return "\n".join(self.L) + "\n"

if __name__ == "__main__":
    ap = argparse.ArgumentParser()
    ap.add_argument("out")
    ap.add_argument("--stamps", action="store_true")
    ap.add_argument("--probe", type=int, default=None)
    ap.add_argument("--sleep", type=int, default=4)
    ap.add_argument("--fs", type=int, default=6)
    ap.add_argument("--omod", default="")
    ap.add_argument("--qsplit", type=int, default=9)
    ap.add_argument("--pollearly", action="store_true")
    ap.add_argument("--r2pos", type=int, default=0)
    ap.add_argument("--vpre", type=int, default=4)
    ap.add_argument("--r1pos", type=int, default=1)
    ap.add_argument("--period", type=int, default=0)
    ap.add_argument("--hshare", type=int, default=0)
    ap.add_argument("--qbar", type=int, default=0)
    ap.add_argument("--qt", default=""); ap.add_argument("--kt", default="")
    a = ap.parse_args()
    g = Gen(**vars(a))
    open(a.out, "w").write(g.build())
    print("wv", g.wv, "wk", g.wk, "lines", len(g.L))
```

```python
import sys, struct, argparse
NAME = "standalone__kv_cache_quant_pre_rope_vs_post_rope__prompt"
def f32bits(x): return struct.unpack("<I", struct.pack("<f", x))[0]
CSCALE = 1.4426950408889634 * (128.0 ** -0.5)

V_FA = 0
V_KOFF0, V_KOFF1, V_VOFF0, V_VOFF1 = 1, 2, 3, 4
V_LANE, V_PA, V_STAMP = 5, 6, 7
V_T = {'a': 8, 'b': 10}
V_L = {'a': 64, 'b': 66}
V_CH = 68
V_TMP0, V_TMP1, V_TMP2, V_TMP3 = 12, 13, 14, 15
V_S = {'a': 16, 'b': 32}
V_NM = {'a': 48, 'b': 56}
V_E = {'a': 80, 'b': 96}
V_P = {'a': 112, 'b': 120}
V_K = [128, 160]
V_V = [192, 224]
XI = {'a': 0, 'b': 1}
def A_O(x, ql, dt): return ((2 * XI[x] + ql) * 8 + dt) * 4
def A_Q(x, ql, ks): return 128 + ((2 * XI[x] + ql) * 4 + ks) * 4
V_VSC = 36
A_K0, A_K1, A_V = 192, 208, 224
S_Q, S_QK, S_KS, S_KZ, S_QV, S_VS, S_VZ, S_QC, S_QS, S_KC, S_KSN, S_OUT, S_DBG, S_WS = [4 + 2 * i for i in range(14)]
S_H, S_I, S_W, S_TAG = 32, 33, 34, 35
S_T0, S_T1, S_T2, S_T3 = 36, 37, 38, 39
S_SRD = 40
S_OFF, S_THR = 44, 45
S_C = 46
S_TBL = 48
S_RET = 66
S_SC = 68
S_CNT, S_LIM, S_HOOK = 3, 65, 28
S_KH, S_VK, S_ARG = 29, 0, 1
L_KT = 0
L_TAB = 9216
L_Q = L_TAB + 16384
L_ST = L_Q + 16 * 1040
L_O = L_ST + 8192
LDS_BYTES = L_O + 96 * 1024
WS_FK = 8 << 20
WS_FV = WS_FK + (512 << 10)
WS_EPOCH = 9 << 20
THRESH = 1024.0
P2 = lambda r: "v[%d:%d]" % (r, r + 1)
sp = lambda r: "s[%d:%d]" % (r, r + 1)

class Gen:
    def __init__(self, **kw):
        self.L = []
        self.uid = 0
        self.stamps = kw.get("stamps", False)
        self.probe = kw.get("probe", None)
        self.sleep = kw.get("sleep", 4)
        self.fs = kw.get("fs", 6)
        self.abl = kw.get("abl", "")
        self.omod = kw.get("omod", "")
        self.qsplit = kw.get("qsplit", 9)
        self.pollearly = kw.get("pollearly", False)
        self.r2pos = kw.get("r2pos", 0)
        self.vpre = kw.get("vpre", 4)
        self.r1pos = kw.get("r1pos", 1)
        self.PERIOD = self.PERIODS[kw.get("period", 0)]
        self.hshare = kw.get("hshare", 0)
        self.qbar = kw.get("qbar", 0)
        self.qt = kw.get("qt", ""); self.kt = kw.get("kt", "")
        self.vm = []; self.vl = []
        self.exactw = kw.get('exactw', 1)
    def A(self, s):
        for line in s.split("\n"): self.L.append(line)
    def label(self, base):
        self.uid += 1
        return "%s_%d" % (base, self.uid)
    def M(self, s, tag):
        self.A(s); self.vm.append(tag); self.vl.append(tag)
    def Mlo(self, s, tag):
        self.A(s); self.vl.append(tag)
    def Mhi(self, s, tag):
        self.A(s); self.vm.append(tag)
    def note(self, tag, nlo, nhi):
        self.vl += [tag] * nlo; self.vm += [tag] * nhi
    def wait(self, tag, extra=""):
        cnt = lambda v: len(v) - 1 - max(k for k, t in enumerate(v) if t == tag)
        nh, nl = cnt(self.vm), cnt(self.vl)
        assert max(nh, nl) <= 63
        if nh == nl or not self.exactw:
            self.A("s_waitcnt vmcnt(%d)%s" % (min(nh, nl), extra))
        else:
            lab = self.label("L_w")
            self.A("s_waitcnt vmcnt(%d)%s" % (max(nh, nl), extra))
            self.A("s_cmp_%s_u32 s%d, 2\ns_cbranch_scc1 %s\ns_waitcnt vmcnt(%d)\n%s:" % ("lt" if nl > nh else "ge", S_W, lab, min(nh, nl), lab))
    def cstamp(self, idx):
        if self.stamps: self.A("s_memtime s[100:101]\ns_waitcnt lgkmcnt(0)\nv_writelane_b32 v%d, s100, %d" % (V_STAMP, idx))
    def stamp(self, idx):
        if self.probe is not None:
            if idx != self.probe: return
        elif not self.stamps: return
        self.A("s_memrealtime s[100:101]\ns_waitcnt lgkmcnt(0)\nv_writelane_b32 v%d, s100, %d" % (V_STAMP, idx))

    def unpack(self, dst, src):
        self.A("v_lshlrev_b32 v%d, 16, v%d\nv_and_b32 v%d, 0xffff0000, v%d" % (dst, src, dst + 1, src))
    def round_pair(self, r):
        self.A("v_cvt_pk_bf16_f32 v%d, v%d, v%d" % (r + 1, r, r + 1))
        self.A("v_lshlrev_b32 v%d, 16, v%d\nv_and_b32 v%d, 0xffff0000, v%d" % (r, r + 1, r + 1, r + 1))
    def int_to_f32(self, regs, tmp):
        for r in regs: self.A("v_cvt_f32_i32 v%d, v%d" % (r, r))
        self.int_guard(regs, tmp)
    def int_guard(self, regs, tmp):
        A = self.A
        A("v_max3_f32 v%d, |v%d|, |v%d|, 0" % (tmp, regs[0], regs[1]))
        for k in range(2, len(regs), 2):
            A("v_max3_f32 v%d, |v%d|, |v%d|, v%d" % (tmp, regs[k], regs[k + 1], tmp))
        lab = self.label("L_big"); ret = self.label("L_bigret")
        A("v_cmp_lt_f32 vcc, 0x43800000, v%d" % tmp)
        A("s_cbranch_vccnz %s" % lab)
        A("%s:" % ret)
        self.cold.append((lab, ret, list(regs)))
    def unpack_tab(self, dst, src):
        for p in range(4):
            for k in range(4): self.unpack(dst + 8 * p + 2 * k, src + 4 * k + p)
    def rope_p(self, a, b, tab, t, u, o1, o2):
        A = self.A
        A("v_pk_mul_f32 %s, %s, %s" % (P2(t), P2(a), P2(tab)))
        A("v_pk_mul_f32 %s, %s, %s" % (P2(u), P2(b), P2(tab + 2)))
        A("v_pk_fma_f32 %s, %s, %s, %s neg_lo:[1,0,0] neg_hi:[1,0,0]" % (P2(t), P2(b), P2(tab + 4), P2(t)))
        A("v_pk_fma_f32 %s, %s, %s, %s" % (P2(u), P2(a), P2(tab + 6), P2(u)))
        A("v_cvt_pk_bf16_f32 v%d, v%d, v%d" % (o1, t, t + 1))
        A("v_cvt_pk_bf16_f32 v%d, v%d, v%d" % (o2, u, u + 1))
    def k_dequant(self, rb, sc, tmp):
        A = self.A
        z = sc + 1
        self.int_to_f32(list(range(rb, rb + 16)), tmp)
        A("v_lshlrev_b32 v%d, 16, v%d\nv_lshlrev_b32 v%d, 16, v%d" % (sc, sc, z, z))
        A("v_mul_f32 v%d, v%d, v%d" % (z, z, sc))
        for p in range(8):
            r = rb + 2 * p
            A("v_pk_fma_f32 %s, %s, %s, %s op_sel:[0,0,1] op_sel_hi:[1,0,1] neg_lo:[0,0,1] neg_hi:[0,0,1]" % (P2(r), P2(r), P2(sc), P2(sc)))
    def v_compute(self, x, rawsc, sc, nz, tmp, o):
        A = self.A
        for p in range(4):
            self.unpack(sc + 2 * p, rawsc + p)
            self.unpack(nz + 2 * p, rawsc + 4 + p)
        for p in range(4): A("v_pk_mul_f32 %s, %s, %s" % (P2(nz + 2 * p), P2(nz + 2 * p), P2(sc + 2 * p)))
    def v_compute2(self, x, sc, nz, tmp, o):
        A = self.A
        self.int_to_f32(list(range(x, x + 16)), tmp)
        for j in range(8):
            r = x + 2 * j; q = j & 1
            A("v_pk_fma_f32 %s, %s, %s, %s op_sel:[0,%d,%d] op_sel_hi:[1,%d,%d] neg_lo:[0,0,1] neg_hi:[0,0,1]" %
              (P2(r), P2(r), P2(sc + (j & ~1)), P2(nz + (j & ~1)), q, q, q, q))
        for e in range(2):
            for jj in range(4):
                A("v_cvt_pk_bf16_f32 v%d, v%d, v%d" % (o + 4 * e + jj, x + 4 * jj + e, x + 4 * jj + 2 + e))

    def raw_loads(self, f, rk, rv, bq, bs, bv, bvs, tagk, tagv):
        o = []
        for k, off in enumerate((0, 16, 256, 272)):
            o.append(("global_load_dwordx4 %s[%d:%d], v%d, %s offset:%d nt" % (f, rk + 4 * k, rk + 4 * k + 3, bq, sp(S_QK), off), tagk))
        o.append(("global_load_ushort %s%d, v%d, %s" % (f, rk + 16, bs, sp(S_KS)), tagk))
        o.append(("global_load_ushort %s%d, v%d, %s" % (f, rk + 17, bs, sp(S_KZ)), tagk))
        for j in range(8):
            off = (8 * (j >> 2) + (j & 3)) * 512 - 2560
            o.append(("global_load_dwordx2 %s[%d:%d], v%d, %s offset:%d nt" % (f, rv + 2 * j, rv + 2 * j + 1, bv, sp(S_QV), off), tagv))
        for q, sr in enumerate((S_VS, S_VZ)):
            for hf in range(2):
                r = rv + 16 + 4 * q + 2 * hf
                o.append(("global_load_dwordx2 %s[%d:%d], v%d, %s offset:%d" % (f, r, r + 1, bvs, sp(sr), 16 * hf), tagv))
        return o

    def flag_store(self, mask):
        A = self.A
        A("v_mov_b32 v%d, s%d" % (V_TMP3, S_TAG))
        A("s_mov_b64 exec, %d" % mask)
        self.M("global_store_dword v%d, v%d, %s sc1" % (V_FA, V_TMP3, sp(S_WS)), "flag")
        A("s_mov_b64 exec, -1")

    def poll(self, reg):
        A = self.A
        lab = self.label("L_poll"); done = self.label("L_polled")
        A("s_mov_b32 s%d, 0" % S_CNT)
        A("%s:" % lab)
        A("global_load_dword v%d, v%d, %s sc1" % (V_TMP0, reg, sp(S_WS)))
        A("s_add_u32 s%d, s%d, 1" % (S_CNT, S_CNT))
        A("s_waitcnt vmcnt(0)")
        A("v_cmp_ne_u32 vcc, s%d, v%d" % (S_TAG, V_TMP0))
        A("s_cbranch_vccz %s" % done)
        if self.sleep: A("s_sleep %d" % self.sleep)
        A("s_cmp_lt_u32 s%d, 0x8000\ns_cbranch_scc1 %s" % (S_CNT, lab))
        A("%s:" % done)

    XA, XB, XV = 16, 80, 96
    AQ, AT, LQ, VT, LW, LR, BO, BK = 32, 33, 34, 35, 36, 37, 38, 39
    KSC = 40
    BVO, PV0 = 44, 45
    RT, VS, RQ, TB, KT, UQ = 48, 64, 128, 176, 192, 224
    def k_raw_loads(self, slot, vaddr, tag, M):
        for k, off in enumerate((0, 16, 256, 272)):
            M("global_load_dwordx4 v[%d:%d], v%d, %s offset:%d nt" % (slot + 4 * k, slot + 4 * k + 3, vaddr, sp(S_QK), off), tag)
    def v_raw_loads(self, vaddr, tag, M):
        for j in range(8):
            M("global_load_dwordx4 v[%d:%d], v%d, %s offset:%d nt" % (self.XV + 4 * j, self.XV + 4 * j + 3, vaddr + (j >> 2), sp(S_QV), (j & 3) * 512), tag)

    def subs(self):
        A = self.A
        X, TB, KT = self.XA, self.TB, self.KT
        fs = self.fs
        O = TB + 4
        A("L_ktask1b:      ; raw data in slot B")
        for r in range(16): A("v_cvt_f32_i32 v%d, v%d" % (X + r, self.XB + r))
        A("s_mov_b32 s%d, s%d\nv_mov_b32 v%d, v%d\nv_mov_b32 v%d, v%d\ns_branch L_kbody" % (S_T3, S_ARG, self.KSC, self.KSC + 2, self.KSC + 1, self.KSC + 3))
        A("L_ktask1:")
        A("s_mov_b32 s%d, s%d\nv_mov_b32 v%d, v%d\nv_mov_b32 v%d, v%d\ns_branch L_kcvt" % (S_T3, S_ARG, self.KSC, self.KSC + 2, self.KSC + 1, self.KSC + 3))
        A("L_ktask0:")
        A("s_mov_b32 s%d, s%d" % (S_T3, S_KH))
        A("L_kcvt:")
        for r in range(16): A("v_cvt_f32_i32 v%d, v%d" % (X + r, X + r))
        A("L_kbody:")
        self.int_guard(list(range(X, X + 16)), TB)
        for p in range(8):
            r = X + 2 * p
            A("v_pk_fma_f32 %s, %s, %s, %s op_sel:[0,0,1] op_sel_hi:[1,0,1] neg_lo:[0,0,1] neg_hi:[0,0,1]" % (P2(r), P2(r), P2(self.KSC), P2(self.KSC)))
        for p in range(4): self.rope_p(X + 2 * p, X + 8 + 2 * p, KT + 8 * p, TB, TB + 2, O + p, O + 4 + p)
        A("ds_write_b128 v%d, v[%d:%d]\nds_write_b128 v%d, v[%d:%d] offset:1152" % (self.LW, O, O + 3, self.LW, O + 4, O + 7))
        A("v_add_u32 v%d, s%d, v%d" % (TB, S_T3, self.BO))
        A("s_lshr_b32 s%d, s%d, 12\ns_add_u32 s%d, s%d, s2\ns_lshl_b32 s%d, s%d, %d\ns_add_u32 s%d, s%d, %d" % (S_T0, S_T3, S_T0, S_T0, S_T0, S_T0, fs, S_T0, S_T0, WS_FK))
        A("s_waitcnt lgkmcnt(0)")
        A("ds_read_b128 v[%d:%d], v%d\nds_read_b128 v[%d:%d], v%d offset:1152" % (O, O + 3, self.LR, O + 4, O + 7, self.LR))
        A("v_mov_b32 v%d, s%d" % (V_FA, S_T0))
        A("s_waitcnt lgkmcnt(1)")
        A("global_store_dwordx4 v%d, v[%d:%d], %s sc1" % (TB, O, O + 3, sp(S_WS)))
        A("s_waitcnt lgkmcnt(0)")
        A("global_store_dwordx4 v%d, v[%d:%d], %s offset:256 sc1" % (TB, O + 4, O + 7, sp(S_WS)))
        A("s_setpc_b64 s[%d:%d]" % (S_RET, S_RET + 1))
        A("L_vtask:")
        x = self.XV
        self.int_to_f32(list(range(x, x + 32)), TB)
        sc, nz = self.VS, self.VS + 8
        for j in range(8):
            q = j & 1
            for hf in range(2):
                r = x + 4 * j + 2 * hf
                A("v_pk_fma_f32 %s, %s, %s, %s op_sel:[0,%d,%d] op_sel_hi:[1,%d,%d] neg_lo:[0,0,1] neg_hi:[0,0,1]" %
                  (P2(r), P2(r), P2(sc + (j & ~1)), P2(nz + (j & ~1)), q, q, q, q))
        for t in range(4):
            o = TB + 4 * t
            for jj in range(4): A("v_cvt_pk_bf16_f32 v%d, v%d, v%d" % (o + jj, x + 8 * jj + t, x + 8 * jj + 4 + t))
            A("global_store_dwordx4 v%d, v[%d:%d], %s offset:%d sc1" % (self.BVO, o, o + 3, sp(S_WS), 1024 * t))
        A("s_lshl_b32 s%d, s%d, 5\ns_add_u32 s%d, s%d, s%d\ns_lshl_b32 s%d, s%d, 2\ns_xor_b32 s%d, s%d, 2\ns_add_u32 s%d, s%d, s%d\ns_lshl_b32 s%d, s%d, %d\ns_add_u32 s%d, s%d, %d\nv_mov_b32 v%d, s%d" %
          (S_T0, S_H, S_T0, S_T0, S_I, S_T0, S_T0, S_T1, S_W, S_T0, S_T0, S_T1, S_T0, S_T0, fs, S_T0, S_T0, WS_FV, V_FA, S_T0))
        A("s_setpc_b64 s[%d:%d]" % (S_RET, S_RET + 1))

    def call_by_role(self, lo, hi):
        A = self.A
        l1 = self.label("L_role"); l2 = self.label("L_roled")
        A("s_cmp_ge_u32 s%d, 2\ns_cbranch_scc1 %s" % (S_W, l1))
        A("s_call_b64 s[%d:%d], %s\ns_branch %s" % (S_RET, S_RET + 1, lo, l2))
        A("%s:\ns_call_b64 s[%d:%d], %s\n%s:" % (l1, S_RET, S_RET + 1, hi, l2))

    def phase1(self):
        A = self.A; M = self.M
        ln = V_LANE
        AQ, AT, LQ, VT, LW, LR, BO, BK, KSC, BVO, PV0 = self.AQ, self.AT, self.LQ, self.VT, self.LW, self.LR, self.BO, self.BK, self.KSC, self.BVO, self.PV0
        RT, VS, RQ, TB, KT, UQ = self.RT, self.VS, self.RQ, self.TB, self.KT, self.UQ
        fs = self.fs
        nul = lambda s_, t_: A(s_)
        A("s_cmp_ge_u32 s2, 256\ns_cbranch_scc1 L_end")
        A("s_load_dwordx16 s[4:19], s[0:1], 0\ns_load_dwordx8 s[20:27], s[0:1], 64\ns_load_dwordx2 s[30:31], s[0:1], 104")
        A("v_lshrrev_b32 v1, 6, v0\nv_and_b32 v%d, 63, v0" % ln)
        hb = self.hshare
        if hb == 0:
            A("s_and_b32 s%d, s2, 7\ns_lshr_b32 s%d, s2, 3" % (S_H, S_I))
        else:
            m = (1 << hb) - 1
            A("s_and_b32 s%d, s2, %d\ns_bfe_u32 s%d, s2, 0x%x\ns_or_b32 s%d, s%d, s%d" % (S_H, 7 & ~m, S_T0, (hb << 16) | 3, S_H, S_H, S_T0))
            A("s_lshr_b32 s%d, s2, %d\ns_lshl_b32 s%d, s%d, %d\ns_and_b32 s%d, s2, %d\ns_or_b32 s%d, s%d, s%d" % (S_I, 3 + hb, S_I, S_I, hb, S_T0, m, S_I, S_I, S_T0))
        A("v_readfirstlane_b32 s%d, v1" % S_W)
        self.stamp(0)
        A("s_lshr_b32 s%d, s2, 2\ns_and_b32 s%d, s%d, 2\ns_sub_u32 s%d, s%d, s%d\ns_and_b32 s%d, s%d, 3\ns_and_b32 s%d, s%d, 1\ns_lshl_b32 s%d, s%d, 2\ns_add_u32 s%d, s%d, s%d\ns_lshl_b32 s%d, s%d, 20" %
          (S_T0, S_T1, S_W, S_T1, S_T1, S_T0, S_T1, S_T1, S_T2, S_W, S_T2, S_T2, S_T1, S_T1, S_T2, S_KH, S_T1))
        A("s_xor_b32 s%d, s%d, 2\ns_sub_u32 s%d, s%d, s%d\ns_and_b32 s%d, s%d, 3\ns_lshr_b32 s%d, s%d, 1\ns_lshl_b32 s%d, s%d, 2\ns_add_u32 s%d, s%d, s%d" %
          (S_T0, S_W, S_T0, S_T0, S_H, S_T0, S_T0, S_T1, S_I, S_T1, S_T1, S_LIM, S_T0, S_T1))
        A("v_lshrrev_b32 v8, 3, v%d\nv_and_b32 v9, 7, v%d\nv_lshlrev_b32 v%d, 8, v8\nv_lshl_add_u32 v%d, v9, 4, v%d" % (ln, ln, AT, AT, AT))
        A("s_lshl_b32 s%d, s2, 11\nv_add_u32 v%d, s%d, v%d\nv_lshlrev_b32 v%d, 1, v%d\nv_add_u32 v10, s%d, v%d" % (S_T0, VT, S_T0, AT, BK, VT, S_KH, BK))
        A("s_lshl_b32 s%d, s%d, 20\ns_lshl_b32 s%d, s%d, 14\ns_add_u32 s%d, s%d, s%d\ns_and_b32 s%d, s%d, 1\ns_lshl_b32 s%d, s%d, 8\ns_add_u32 s%d, s%d, s%d" %
          (S_T0, S_H, S_T1, S_LIM, S_HOOK, S_T0, S_T1, S_T1, S_I, S_T1, S_T1, S_T0, S_HOOK, S_T1))
        A("v_lshrrev_b32 v12, 4, v%d\nv_and_b32 v13, 15, v%d\nv_lshlrev_b32 v%d, 11, v12\nv_lshl_add_u32 v%d, v13, 4, v%d\nv_add_u32 v%d, s%d, v%d\nv_add_u32 v%d, 8192, v%d" %
          (ln, ln, PV0, PV0, PV0, PV0, S_T0, PV0, PV0 + 1, PV0))
        A("; Q: row = 64 i + 16 w + 8u + (l>>3)")
        A("s_lshl_b32 s%d, s%d, 14\ns_lshl_b32 s%d, s%d, 12\ns_add_u32 s%d, s%d, s%d\ns_lshl_b32 s%d, s%d, 19\nv_add_u32 v%d, s%d, v%d\nv_add_u32 v%d, s%d, v%d" % (S_T0, S_I, S_T1, S_W, S_T0, S_T0, S_T1, S_T1, S_H, AT, S_T0, AT, AQ, S_T1, AT))
        A("s_cmp_ge_u32 s%d, 2" % S_W)
        A("s_waitcnt lgkmcnt(0)")
        A("s_cbranch_scc1 L_r0v")
        self.k_raw_loads(self.XA, 10, "r0", nul)
        for k, (sr, off) in enumerate(((S_KC, 0), (S_KC, 128), (S_KSN, 0), (S_KSN, 128))):
            A("global_load_dwordx4 v[%d:%d], v%d, %s offset:%d %s" % (RT + 4 * k, RT + 4 * k + 3, VT, sp(sr), off, self.kt))
        A("s_branch L_r0d\nL_r0v:")
        self.v_raw_loads(PV0, "r0", M)
        A("L_r0d:")
        ql = []
        for u in range(2):
            b = RQ + 24 * u
            for (r, v, sr, off, m_) in ((0, AQ, S_Q, 0, "nt"), (4, AQ, S_Q, 128, "nt"), (8, AT, S_QC, 0, self.qt), (12, AT, S_QC, 128, self.qt), (16, AT, S_QS, 0, self.qt), (20, AT, S_QS, 128, self.qt)):
                ql.append(("global_load_dwordx4 v[%d:%d], v%d, %s offset:%d %s" % (b + r, b + r + 3, v, sp(sr), 2048 * u + off, m_), "q%d" % u))
        A("s_add_u32 s%d, s%d, 0x100000\ns_and_b32 s%d, s%d, 0x300000\ns_and_b32 s%d, s%d, 0x400000\ns_or_b32 s%d, s%d, s%d" % (S_T2, S_KH, S_T2, S_T2, S_ARG, S_KH, S_ARG, S_ARG, S_T2))
        A("s_lshl_b32 s%d, s2, 4\ns_lshr_b32 s%d, s%d, 8\ns_add_u32 s%d, s%d, s%d\ns_lshr_b32 s%d, s%d, 8\ns_add_u32 s%d, s%d, s%d" % (S_T0, S_T1, S_KH, S_T1, S_T1, S_T0, S_T2, S_ARG, S_T2, S_T2, S_T0))
        A("s_lshl_b32 s%d, s%d, 12\ns_lshl_b32 s%d, s%d, 6\ns_add_u32 s%d, s%d, s%d\ns_mov_b32 s%d, %d" % (S_T3, S_H, S_T0, S_LIM, S_T3, S_T3, S_T0, S_T0, WS_EPOCH))
        A("s_load_dword s%d, %s, s%d" % (S_TAG, sp(S_WS), S_T0))
        A("s_load_dwordx4 s[%d:%d], %s, s%d\ns_load_dwordx4 s[%d:%d], %s, s%d" % (S_SC, S_SC + 3, sp(S_KS), S_T1, S_SC + 4, S_SC + 7, sp(S_KZ), S_T1))
        A("s_load_dwordx4 s[%d:%d], %s, s%d\ns_load_dwordx4 s[%d:%d], %s, s%d" % (S_SC + 8, S_SC + 11, sp(S_KS), S_T2, S_SC + 12, S_SC + 15, sp(S_KZ), S_T2))
        A("s_load_dwordx16 s[48:63], %s, s%d\ns_load_dwordx16 s[84:99], %s, s%d" % (sp(S_VS), S_T3, sp(S_VZ), S_T3))
        for s, t in ql[:self.qsplit]: M(s, t)
        A("v_lshlrev_b32 v%d, 4, v%d\nv_add_u32 v%d, 4096, v%d\nv_add_u32 v%d, 8192, v%d\nv_add_u32 v%d, 12288, v%d" % (V_KOFF0, ln, V_KOFF1, V_KOFF0, V_VOFF0, V_KOFF0, V_VOFF1, V_KOFF0))
        A("s_mul_i32 s0, s%d, 2304" % S_W)
        A("v_mul_u32_u24 v%d, 144, v9\nv_lshl_add_u32 v%d, v8, 4, v%d\nv_add_u32 v%d, s0, v%d" % (LW, LW, LW, LW, LW))
        A("v_mul_u32_u24 v%d, 144, v8\nv_lshl_add_u32 v%d, v9, 4, v%d\nv_add_u32 v%d, s0, v%d" % (LR, LR, LR, LR, LR))
        A("; BO = (p>>2)*16384 + ((p>>1)&1)*4096 + (p&1)*128 + (l>>3)*512 + (l&7)*16")
        A("s_lshr_b32 s0, s2, 2\ns_lshl_b32 s0, s0, 14\ns_and_b32 s3, s2, 1\ns_lshl_b32 s3, s3, 7\ns_add_u32 s0, s0, s3\ns_and_b32 s3, s2, 2\ns_lshl_b32 s3, s3, 11\ns_add_u32 s0, s0, s3")
        A("v_lshlrev_b32 v%d, 9, v8\nv_lshl_add_u32 v%d, v9, 4, v%d\nv_add_u32 v%d, s0, v%d" % (BO, BO, BO, BO, BO))
        A("s_and_b32 s0, s%d, 1\ns_lshl_b32 s0, s0, 12\ns_add_u32 s0, s0, s%d\nv_add_u32 v%d, s0, v%d" % (S_I, S_HOOK, BVO, V_VOFF0))
        A("s_mul_i32 s0, s%d, 4160\ns_add_u32 s0, s0, %d" % (S_W, L_Q))
        A("v_lshrrev_b32 v12, 1, v9\nv_mul_u32_u24 v%d, 1040, v12\nv_and_b32 v12, 1, v9\nv_lshl_add_u32 v%d, v12, 9, v%d\nv_lshl_add_u32 v%d, v8, 4, v%d\nv_add_u32 v%d, s0, v%d" % (LQ, LQ, LQ, LQ, LQ, LQ, LQ))
        A("v_lshrrev_b32 v12, 5, v%d\nv_bfe_u32 v13, v%d, 3, 2\nv_lshl_add_u32 v13, v13, 2, s%d" % (ln, ln, S_W))
        A("v_subrev_u32 v14, s%d, v12\nv_and_b32 v14, 3, v14\nv_lshl_add_u32 v14, v13, 2, v14\nv_lshlrev_b32 v14, 2, v14\nv_add_u32 v14, v9, v14" % S_H)
        A("s_lshl_b32 s0, s%d, 8\nv_add_u32 v14, s0, v14\nv_lshlrev_b32 v14, %d, v14\nv_add_u32 v14, %d, v14" % (S_H, fs, WS_FK))
        A("v_and_b32 v15, 1, v9\nv_lshl_add_u32 v15, v13, 1, v15\nv_lshl_add_u32 v15, v15, 2, v12\ns_lshl_b32 s0, s%d, 7\nv_add_u32 v15, s0, v15\nv_lshlrev_b32 v15, %d, v15\nv_add_u32 v15, %d, v15" % (S_H, fs, WS_FV))
        A("v_cmp_gt_u32 vcc, 4, v9\ns_nop 1\nv_cndmask_b32 v%d, v15, v14, vcc" % V_PA)
        A("v_add_u32 v11, s%d, v%d\ns_cmp_lt_u32 s%d, 2\ns_cselect_b32 s0, s%d, s%d\nv_add_u32 v10, s0, v%d" % (S_ARG, BK, S_W, S_ARG, S_KH, BK))
        A("s_mov_b32 s%d, 0x%08x\ns_mov_b32 s%d, 0x%08x\ns_mov_b32 s%d, 0x%08x" % (S_C, f32bits(CSCALE), S_C + 1, f32bits(CSCALE), S_THR, f32bits(THRESH)))
        A("s_mov_b32 s%d, s%d\ns_mov_b32 s%d, s%d\ns_mov_b32 s%d, 0x800000\ns_mov_b32 s%d, 0x20000" % (S_SRD, S_WS, S_SRD + 1, S_WS + 1, S_SRD + 2, S_SRD + 3))
        A("v_and_b32 v12, 1, v8\nv_lshlrev_b32 v12, 4, v12")
        A("s_waitcnt lgkmcnt(0)")
        for g in range(4):
            if g: A("s_lshl_b64 exec, -1, %d" % (16 * g))
            for k in range(4): A("v_mov_b32 v%d, s%d" % (KSC + k, S_SC + 4 * k + g))
            for z, sb in enumerate((48, 84)):
                for k, dw in enumerate((0, 1, 8, 9)): A("v_mov_b32 v%d, s%d" % (TB + 4 * z + k, sb + dw + 2 * g))
        A("s_mov_b64 exec, -1")
        for k in range(4): A("v_lshrrev_b32 v%d, v12, v%d\nv_lshlrev_b32 v%d, 16, v%d" % (KSC + k, KSC + k, KSC + k, KSC + k))
        A("v_mul_f32 v%d, v%d, v%d\nv_mul_f32 v%d, v%d, v%d" % (KSC + 1, KSC + 1, KSC, KSC + 3, KSC + 3, KSC + 2))
        self.v_compute(None, TB, VS, VS + 8, None, None)
        A("s_lshl_b32 s%d, s%d, 20\ns_lshl_b32 s%d, s%d, 16\ns_add_u32 s%d, s%d, s%d" % (S_T0, S_H, S_T1, S_W, S_T0, S_T0, S_T1))
        A("s_lshr_b32 s%d, s%d, %d" % (S_T2, S_I, self.hshare))
        for n in range(4):
            A("s_add_u32 s%d, s%d, %d\ns_and_b32 s%d, s%d, 3\ns_lshl_b32 s%d, s%d, 18\ns_add_u32 s%d, s%d, s%d" % (S_T1, S_T2, n, S_T1, S_T1, S_T1, S_T1, S_TBL + 12 + n, S_T1, S_T0))
        for sg in range(4):
            A("s_sub_u32 s%d, %d, s%d\ns_and_b32 s%d, s%d, 3\ns_lshl_b32 s%d, s%d, 14" % (S_T1, sg, S_H, S_T1, S_T1, S_T1, S_T1))
            for n in range(4): A("s_add_u32 s%d, s%d, s%d" % (S_TBL + 4 * sg + n, S_TBL + 12 + n, S_T1))
        A("s_mov_b32 s%d, s%d\ns_mov_b32 s%d, s%d" % (S_TBL + 16, S_TBL, S_OFF, S_TBL))
        A("s_add_u32 s%d, s%d, 0x9e3779b9" % (S_TAG, S_TAG))
        A("s_and_b32 s0, s%d, 1\ns_lshl_b32 s0, s0, 13\nv_add_u32 v%d, s0, v%d" % (S_W, VT, V_KOFF0))
        def r2loads():
            A("s_cmp_ge_u32 s%d, 2\ns_cbranch_scc1 L_r2k" % S_W)
            self.v_raw_loads(PV0, "r2", self.Mlo)
            A("s_branch L_r2d\nL_r2k:")
            self.k_raw_loads(self.XB, 11, "r2", self.Mhi)
            A("L_r2d:")
        A("; ---- round 0")
        self.wait("r0")
        self.stamp(1)
        A("s_cmp_ge_u32 s%d, 2\ns_cbranch_scc1 L_t0v" % S_W)
        self.unpack_tab(KT, RT)
        A("s_call_b64 s[%d:%d], L_ktask0" % (S_RET, S_RET + 1))
        for k in range(8): A("ds_write_b128 v%d, v[%d:%d] offset:%d" % (VT, KT + 4 * k, KT + 4 * k + 3, L_TAB + 1024 * k))
        A("s_waitcnt lgkmcnt(0)\ns_branch L_t0d")
        A("L_t0v:\ns_call_b64 s[%d:%d], L_vtask\nL_t0d:" % (S_RET, S_RET + 1))
        self.note("st", 2, 4)
        self.stamp(13)
        A("s_barrier")
        for s, t in ql[self.qsplit:]: M(s, t)
        self.k_raw_loads(self.XA, 10, "r1", M)
        for k in range(8): A("ds_read_b128 v[%d:%d], v%d offset:%d" % (KT + 4 * k, KT + 4 * k + 3, VT, L_TAB + 1024 * k))
        for r in range(64): A("v_accvgpr_write_b32 a%d, 0" % (64 + r))
        self.wait("st")
        self.flag_store(1)
        self.stamp(2)
        if self.r2pos == 0: r2loads()
        def qunit(u):
            b = RQ + 24 * u
            self.unpack_tab(UQ, b + 8)
            x1, x2 = 48, 56
            for p in range(4):
                self.unpack(x1 + 2 * p, b + p); self.unpack(x2 + 2 * p, b + 4 + p)
            for p in range(8): A("v_pk_mul_f32 %s, %s, %s" % (P2(x1 + 2 * p), P2(x1 + 2 * p), sp(S_C)))
            for p in range(4): self.rope_p(x1 + 2 * p, x2 + 2 * p, UQ + 8 * p, 12, 14, b + p, b + 4 + p)
            A("ds_write_b128 v%d, v[%d:%d] offset:%d\nds_write_b128 v%d, v[%d:%d] offset:%d" % (LQ, b, b + 3, 128 * u, LQ, b + 4, b + 7, 128 * u + 256))
        self.wait("q0")
        self.stamp(10)
        qunit(0)
        if self.r2pos == 1: r2loads()
        self.wait("q1")
        qunit(1)
        self.stamp(14)
        A("; ---- round 1")
        self.wait("r1", " lgkmcnt(0)")
        self.call_by_role("L_ktask1", "L_ktask0")
        self.note("st", 2, 2)
        M("global_load_dword v%d, v%d, %s sc1" % (AQ, V_PA, sp(S_WS)), "poll")
        A("s_barrier")
        self.stamp(11)
        for f in range(16):
            a = 128 + 4 * f
            A("ds_read_b128 a[%d:%d], v%d offset:%d" % (a, a + 3, V_KOFF0, L_Q + f * 1040))
        self.wait("poll")
        self.stamp(15)
        self.flag_store(1)
        A("v_cmp_ne_u32 vcc, s%d, v%d\ns_mov_b32 s%d, vcc_lo\ns_cmp_lg_u32 vcc_lo, 0\ns_cbranch_scc1 L_nok0" % (S_TAG, AQ, S_HOOK))
        for k in range(8): A(self.ld_k(k, 0))
        A("L_nok0:")
        A("; ---- round 2")
        self.call_by_role("L_vtask", "L_ktask1b")
        self.stamp(12)
        A("s_cmp_eq_u32 s%d, 0\ns_cbranch_scc1 L_havek" % S_HOOK)
        A("s_mov_b32 s%d, 0" % S_CNT)
        A("L_p0:")
        A("global_load_dword v%d, v%d, %s sc1\ns_waitcnt vmcnt(0)" % (AQ, V_PA, sp(S_WS)))
        A("v_cmp_ne_u32 vcc, s%d, v%d\ns_cmp_eq_u32 vcc_lo, 0\ns_cbranch_scc1 L_p0d" % (S_TAG, AQ))
        if self.sleep: A("s_sleep %d" % self.sleep)
        A("s_add_u32 s%d, s%d, 1\ns_cmp_lt_u32 s%d, 0x8000\ns_cbranch_scc1 L_p0" % (S_CNT, S_CNT, S_CNT))
        A("L_p0d:")
        for k in range(8): A(self.ld_k(k, 0))
        A("s_waitcnt vmcnt(0)")
        A("L_havek:")
        self.stamp(3)
        self.vm = ["K0", "st2", "st2"]; self.vl = ["K0", "st2", "st2", "st2", "st2"]

    def mfma_qk(self, x, idx, kset, first_c=None):
        ql, kt, ks = idx >> 3, (idx >> 2) & 1, idx & 3
        s = V_S[x] + 8 * ql + 4 * kt; k = V_K[kset] + 4 * (4 * kt + ks); q = A_Q(x, ql, ks)
        if ks == 0: c = first_c if first_c is not None else "v[%d:%d]" % (V_NM[x] + 4 * ql, V_NM[x] + 4 * ql + 3)
        else: c = "v[%d:%d]" % (s, s + 3)
        return "v_mfma_f32_16x16x32_bf16 v[%d:%d], v[%d:%d], a[%d:%d], %s" % (s, s + 3, k, k + 3, q, q + 3, c)
    def mfma_pv(self, x, idx, vset, first=False):
        dt, ql = idx >> 1, idx & 1
        o = A_O(x, ql, dt); v = V_V[vset] + 4 * dt; p = V_P[x] + 4 * ql
        c = "0" if first else "a[%d:%d]" % (o, o + 3)
        return "v_mfma_f32_16x16x32_bf16 a[%d:%d], v[%d:%d], v[%d:%d], %s" % (o, o + 3, v, v + 3, p, p + 3, c)
    def ld_k(self, ks, kset):
        r = V_K[kset] + 4 * ks
        return "buffer_load_dwordx4 v[%d:%d], v%d, s[%d:%d], s%d offen offset:%d sc1" % (r, r + 3, V_KOFF0 + (ks >> 2), S_SRD, S_SRD + 3, S_OFF, (ks & 3) * 1024)
    def ld_v(self, idx, vset):
        r = V_V[vset] + 4 * idx
        return "buffer_load_dwordx4 v[%d:%d], v%d, s[%d:%d], s%d offen offset:%d sc1" % (r, r + 3, V_VOFF0 + (idx >> 2), S_SRD, S_SRD + 3, S_OFF, (idx & 3) * 1024)
    def op_e(self, x, r): return "v_exp_f32 v%d, v%d" % (V_E[x] + r, V_S[x] + r)
    def op_a(self, x, r):
        t = V_T[x] + (r >> 3)
        if (r & 7) == 1: return "v_add_f32 v%d, v%d, v%d" % (t, V_E[x] + r - 1, V_E[x] + r)
        return "v_add_f32 v%d, v%d, v%d" % (t, t, V_E[x] + r)
    def op_c(self, x, k): return "v_cvt_pk_bf16_f32 v%d, v%d, v%d" % (V_P[x] + k, V_E[x] + 2 * k, V_E[x] + 2 * k + 1)
    def op_f(self, x, ql): return "v_add_f32 v%d, v%d, v%d" % (V_L[x] + ql, V_L[x] + ql, V_T[x] + ql)
    def op_chk(self, x):
        stub = self.label("L_slow_%s" % x); ret = self.label("L_ret_%s" % x)
        self.stubs.append((stub, ret, x))
        return ["v_add_f32 v%d, v%d, v%d" % (V_CH, V_T[x], V_T[x] + 1), "v_cmp_nge_f32 vcc, s%d, v%d" % (S_THR, V_CH), "s_cbranch_vccnz %s" % stub, "%s:" % ret]

    PERIODS = {
      0: ["e0 F0", "e1 F1", "L", "L a1",
          "e2", "e3 c0", "L", "a2 a3 c1",
          "e4", "e5", "L", "a4 a5 c2",
          "e6 W1", "e7", "L", "a6 a7 c3",
          "e8", "e9", "L", "a9 c4",
          "e10", "e11", "L", "a10 a11 c5",
          "e12", "e13 W2", "L", "a12 a13 c6",
          "e14", "e15", "a14 a15", "c7 K"],
      1: ["e0", "e1", "L", "L",
          "e2", "e3", "F0 F1 a1", "L",
          "e4", "e5", "a2 a3 c0", "L",
          "W1 e6", "e7", "a4 a5 c1", "L",
          "e8", "e9", "a6 a7 c2", "L",
          "e10", "e11", "a9 c3 c4", "L",
          "S1 e12", "W2 e13", "L", "a10 a11 c5",
          "S2 e14", "e15", "a12 a13 a14 c6", "a15 c7 K"],
      2: ["e0", "e1", "L", "L",
          "e2", "e3", "F0 F1", "L",
          "e4", "a1 a2 c0", "e5", "L",
          "W1 e6", "a3 a4 c1", "e7", "L",
          "e8", "a5 a6 c2", "e9", "L",
          "e10", "a7 a9 c3", "e11", "L",
          "S1 e12", "a10 a11 c4", "L", "W2 e13",
          "S2 e14", "e15 c5", "a12 a13 a14 c6", "a15 c7 K"],
    }
    def iteration(self, jp, loads=True):
        out = []
        kq = (jp + 1) & 1
        for p in range(64):
            if p < 16: out.append(self.mfma_qk('a', p, kq))
            elif p < 32: out.append(self.mfma_pv('b', p - 16, jp))
            elif p < 48: out.append(self.mfma_qk('b', p - 32, kq))
            else: out.append(self.mfma_pv('a', p - 48, kq))
            if p < 16: x, u = 'b', p + 16
            elif p < 48: x, u = 'a', p - 16
            else: x, u = 'b', p - 48
            y = 'a' if x == 'b' else 'b'
            for tok in self.PERIOD[u].split():
                c = tok[0]
                if c == 'L':
                    li = sum(self.PERIOD[v].split().count('L') for v in range(u))
                    if not loads: continue
                    if x == 'a': out.append(self.ld_v(li, jp))
                    elif p >= 48: out.append(self.ld_k(li, kq))
                    else: out.append(self.ld_k(li, jp))
                elif c == 'e': out.append(self.op_e(x, int(tok[1:])))
                elif c == 'a': out.append(self.op_a(x, int(tok[1:])))
                elif c == 'c': out.append(self.op_c(x, int(tok[1:])))
                elif c == 'F': out.append(self.op_f(y, int(tok[1:])))
                elif c == 'K': out += self.op_chk(x)
                elif c == 'W':
                    if tok == "W2" and x == 'a': out.append("@WAIT_V")
                    if tok == "W1" and x == 'b': out.append("@WAIT_K")
                elif c == 'S':
                    if x == 'a' and loads: out.append("@" + tok)
        return out
    def emit_iter(self, it):
        A = self.A
        lastv = max(k for k, s in enumerate(it) if s.startswith("buffer_load") and (" v%d," % V_VOFF1) in s)
        for k, s in enumerate(it):
            if s == "@WAIT_V": s = "s_waitcnt vmcnt(%d)" % self.wv
            if s == "@WAIT_K": s = "s_waitcnt vmcnt(%d)" % self.wk
            if s == "@S1": s = "s_add_u32 m0, m0, 1"
            if s == "@S2":
                assert k > lastv
                s = "s_movrels_b32 s%d, s%d" % (S_OFF, S_TBL)
            A(s)
            if "@S1" not in it:
                if k == lastv - 5: A("s_add_u32 m0, m0, 1")
                if k == lastv + 6: A("s_movrels_b32 s%d, s%d" % (S_OFF, S_TBL))
    def compute_waits(self):
        self.stubs = []
        it = self.iteration(0)
        seq = it + it + it
        n = len(it)
        isld = lambda s: s.startswith("buffer_load")
        isv = lambda s: isld(s) and ((" v%d," % V_VOFF0) in s or (" v%d," % V_VOFF1) in s)
        kv = 2 * n + it.index("@WAIT_V")
        lastv = max(k for k in range(n, 2 * n) if isv(seq[k]))
        self.wv = sum(1 for k in range(lastv + 1, kv) if isld(seq[k]))
        kk = 2 * n + it.index("@WAIT_K")
        idx = [k for k, s in enumerate(it) if s.startswith("v_mfma")]
        lastk = 2 * n + max(k for k in range(0, idx[16]) if isld(it[k]))
        self.wk = sum(1 for k in range(lastk + 1, kk) if isld(seq[k]))
        self.uid = 0
        self.stubs = []

    def xlane(self, op, t0, t1):
        o = []
        for sw in ("v_permlane16_swap_b32", "v_permlane32_swap_b32"):
            o += ["v_mov_b32 v%d, v%d" % (t1, t0), "s_nop 1", "%s v%d, v%d" % (sw, t0, t1), "s_nop 1", "%s v%d, v%d, v%d" % (op, t0, t0, t1)]
        return o
    def max8(self, t0, s, last):
        o = ["v_max3_f32 v%d, v%d, v%d, v%d" % (t0, s, s + 1, s + 2)]
        o += ["v_max3_f32 v%d, v%d, v%d, v%d" % (t0, s + r, s + r + 1, t0) for r in (3, 5)]
        o.append("v_max3_f32 v%d, v%d, v%d, %s" % (t0, s + 7, t0, last))
        return o

    def slow_sub(self, x):
        A = self.A
        t0, t1 = V_TMP0, V_TMP1
        A("L_sub_%s:" % x)
        A("s_nop 7")
        for ql in range(2):
            s, nm = V_S[x] + 8 * ql, V_NM[x] + 4 * ql
            for l in self.max8(t0, s, "0") + self.xlane("v_max_f32", t0, t1): A(l)
            A("v_exp_f32 v%d, -v%d" % (t1, t0))
            for r in range(8): A("v_sub_f32 v%d, v%d, v%d" % (s + r, s + r, t0))
            for r in range(4): A("v_sub_f32 v%d, v%d, v%d" % (nm + r, nm + r, t0))
            A("v_mul_f32 v%d, v%d, v%d" % (V_L[x] + ql, V_L[x] + ql, t1))
            for r in range(32):
                a = A_O(x, ql, 0) + r
                A("v_accvgpr_read_b32 v%d, a%d\nv_mul_f32 v%d, v%d, v%d\nv_accvgpr_write_b32 a%d, v%d" % (V_TMP2, a, V_TMP2, V_TMP2, t1, a, V_TMP2))
        for r in range(16): A(self.op_e(x, r))
        A("s_nop 0")
        for r in range(16):
            if r & 7: A(self.op_a(x, r))
        for k in range(8): A(self.op_c(x, k))
        A("s_nop 3")
        A("s_setpc_b64 s[%d:%d]" % (S_RET, S_RET + 1))

    def first_fix(self, x):
        seqs = []
        for ql in range(2):
            s, nm = V_S[x] + 8 * ql, V_NM[x] + 4 * ql
            t0, t1 = V_T[x] + ql, V_E[x] + ql
            o = self.max8(t0, s, "v%d" % t0) + [l for l in self.xlane("v_max_f32", t0, t1)]
            o += ["v_sub_f32 v%d, v%d, v%d" % (s + r, s + r, t0) for r in range(8)]
            o += ["v_sub_f32 v%d, 0, v%d" % (nm + r, t0) for r in range(4)]
            seqs.append(o)
        out = []
        for a, b in zip(*seqs):
            if a == "s_nop 1": out.append("s_nop 0")
            else: out += [a, b]
        return out

    def main(self):
        A = self.A; M = self.M
        for r in range(4): A("v_mov_b32 v%d, 0" % (V_L['a'] + r))
        pend = [(self.ld_v(k, 0), "V0") for k in range(8)] + [None] + [(self.ld_k(k, 1), "K1") for k in range(8)] + [(self.ld_v(k, 1), "V1") for k in range(8)]
        def nxt():
            if not pend: return
            if pend[0] is None:
                pend.pop(0); A("s_mov_b32 s%d, s%d" % (S_OFF, S_TBL + 1))
            M(*pend.pop(0))
        for k in range(self.vpre): nxt()
        self.wait("K0", " lgkmcnt(0)")
        self.stamp(4)
        for idx in range(16):
            A(self.mfma_qk('a', idx, 0, first_c="0"))
            if idx & 1: nxt()
        seq = self.first_fix('a')
        for r in range(16):
            seq.append(self.op_e('a', r))
            if r >= 1 and ((r - 1) & 7): seq.append(self.op_a('a', r - 1))
        seq += [self.op_c('a', 0), self.op_a('a', 15)] + [self.op_c('a', k) for k in range(1, 8)]
        pos = 0
        for idx in range(16):
            A(self.mfma_qk('b', idx, 0, first_c="0"))
            if idx < 4:
                if idx & 1: nxt()
            else:
                for s in seq[pos:pos + 2]: A(s)
                pos += 2
        rest = seq[pos:] + self.first_fix('b')
        for k, s in enumerate(rest):
            A(s)
            if k % 4 == 3: nxt()
        while pend: nxt()
        A("s_mov_b32 m0, 2\ns_mov_b32 s%d, s%d" % (S_OFF, S_TBL + 2))
        self.wait("V0")
        self.flag_store(1)
        it = self.iteration(1)
        idx = [k for k, s in enumerate(it) if s.startswith("v_mfma")]
        tail = it[idx[48]:]
        nm = 0
        for s in tail:
            if s.startswith("v_mfma"):
                s = self.mfma_pv('a', nm, 0, first=True); nm += 1
            if s == "@WAIT_K": self.wait("K1"); continue
            if s.startswith("buffer_load"): M(s, "K2"); continue
            A(s)
        self.stamp(5)
        self.cstamp(8)
        A("global_load_dword v%d, v%d, %s sc1       ; stage-1 flags" % (V_FA, V_PA, sp(S_WS)))
        A("s_mov_b32 s%d, 4" % S_LIM)
        A(".p2align 6")
        A("L_loop:")
        self.emit_iter(self.iteration(0))
        A("s_cmp_eq_u32 m0, 3\ns_cbranch_scc1 L_hook")
        A("L_mid:")
        self.emit_iter(self.iteration(1))
        A("s_cmp_lt_u32 m0, s%d\ns_cbranch_scc1 L_loop" % S_LIM)
        A("s_cmp_eq_u32 m0, 16\ns_cbranch_scc1 L_tail")
        A("s_cmp_eq_u32 m0, 6\ns_cbranch_scc1 L_ev2")
        A("v_and_b32 v%d, 4, v%d\nv_cmp_eq_u32 vcc, 0, v%d\nv_xor_b32 v%d, %d, v%d\nv_add_u32 v%d, %d, v%d\nv_cndmask_b32 v%d, v%d, v%d, vcc" %
          (V_TMP0, V_LANE, V_TMP0, V_TMP1, 8 << self.fs, V_PA, V_TMP2, 2 << self.fs, V_PA, V_PA, V_TMP2, V_TMP1))
        A("global_load_dword v%d, v%d, %s sc1" % (V_FA, V_PA, sp(S_WS)))
        A("s_mov_b32 s%d, 6\ns_branch L_loop" % S_LIM)
        A("L_ev2:")
        A("s_mov_b32 s%d, 16" % S_LIM)
        A("v_cmp_ne_u32 vcc, s%d, v%d\ns_cbranch_vccz L_loop" % (S_TAG, V_FA))
        self.poll(V_PA)
        A("s_branch L_loop")
        A("L_hook:")
        A("s_waitcnt vmcnt(16)")
        A("v_cmp_ne_u32 vcc, s%d, v%d\ns_cbranch_vccz L_mid" % (S_TAG, V_FA))
        self.poll(V_PA)
        A("s_branch L_mid")
        A("L_tail:")
        it = self.iteration(0, loads=False)
        for s in it:
            if s in ("@WAIT_V", "@WAIT_K"): s = "s_waitcnt vmcnt(0)"
            A(s)
        it = self.iteration(1, loads=False)
        idx = [k for k, s in enumerate(it) if s.startswith("v_mfma")]
        prev = ""
        for k, s in enumerate(it[:idx[32]]):
            if s.startswith("v_mfma") and k < idx[16]: continue
            if k >= idx[16] and not s.startswith("v_mfma"):
                if s not in (self.op_f('b', 0), self.op_f('b', 1)): continue
            if s.startswith("@"): continue
            if prev.startswith("v_exp") and not s.startswith("v_exp"): A("s_nop 0")
            A(s); prev = s
        self.stamp(6)
        self.cstamp(9)

    def epilogue(self):
        A = self.A
        ln = V_LANE
        NM = V_NM['a']; LL = V_L['a']
        seqs = [self.xlane("v_add_f32", LL + q, 16 + q) for q in range(4)]
        for grp in zip(*seqs):
            if grp[0].startswith("s_nop"): continue
            for l in grp: A(l)
        for q in range(4): A("v_mov_b32 v%d, v%d" % (NM + 4 * q + 1, LL + q))
        A("s_lshl_b32 s%d, s%d, 11\ns_add_u32 s%d, s%d, %d" % (S_T0, S_W, S_T0, S_T0, L_ST))
        A("v_lshlrev_b32 v44, 3, v%d\nv_add_u32 v45, s%d, v44" % (ln, S_T0))
        for q in range(4): A("ds_write_b64 v45, v[%d:%d] offset:%d" % (NM + 4 * q, NM + 4 * q + 1, 512 * q))
        for d in range(4):
            skip = self.label("L_skipw")
            A("s_cmp_eq_u32 s%d, %d\ns_cbranch_scc1 %s" % (S_W, d, skip))
            A("s_sub_u32 s%d, s%d, %d\ns_and_b32 s%d, s%d, 3\ns_lshl_b32 s%d, s%d, 13\ns_add_u32 s%d, s%d, %d" %
              (S_T0, S_W, d + 1, S_T0, S_T0, S_T0, S_T0, S_T0, S_T0, L_O + d * 3 * 8192))
            A("v_add_u32 v45, s%d, v%d" % (S_T0, V_KOFF0))
            for idx in range(8): A("ds_write_b128 v45, a[%d:%d] offset:%d" % (32 * d + 4 * idx, 32 * d + 4 * idx + 3, idx * 1024))
            A("%s:" % skip)
        own = 128
        done = self.label("L_own")
        for d in range(4):
            nxt = self.label("L_ownn")
            if d < 3: A("s_cmp_lg_u32 s%d, %d\ns_cbranch_scc1 %s" % (S_W, d, nxt))
            for r in range(32): A("v_accvgpr_read_b32 v%d, a%d" % (own + r, 32 * d + r))
            if d < 3: A("s_branch %s\n%s:" % (done, nxt))
        A("%s:" % done)
        A("s_waitcnt lgkmcnt(0)\ns_barrier")
        st = 16
        A("s_lshl_b32 s%d, s%d, 9\ns_add_u32 s%d, s%d, %d" % (S_T1, S_W, S_T1, S_T1, L_ST))
        for k in range(4):
            A("s_add_u32 s%d, s%d, %d\ns_and_b32 s%d, s%d, 3\ns_lshl_b32 s%d, s%d, 11\ns_add_u32 s%d, s%d, s%d" % (S_T0, S_W, k, S_T0, S_T0, S_T0, S_T0, S_T0, S_T0, S_T1))
            A("v_add_u32 v45, s%d, v44" % S_T0)
            A("ds_read_b64 v[%d:%d], v45" % (st + 2 * k, st + 2 * k + 1))
        A("s_mul_i32 s%d, s%d, 24576\ns_add_u32 s%d, s%d, %d\nv_add_u32 v45, s%d, v%d" % (S_T0, S_W, S_T0, S_T0, L_O, S_T0, V_KOFF0))
        pb = 160
        order = [(k, idx) for idx in range(8) for k in range(3)]
        for (k, idx) in order[:9]:
            r = pb + (k * 8 + idx) * 4
            A("ds_read_b128 v[%d:%d], v45 offset:%d" % (r, r + 3, k * 8192 + idx * 1024))
        A("s_waitcnt lgkmcnt(9)")
        F = 32
        A("v_min3_f32 v40, v%d, v%d, v%d\nv_min_f32 v40, v40, v%d" % (st, st + 2, st + 4, st + 6))
        for k in range(4): A("v_sub_f32 v%d, v40, v%d" % (F + k, st + 2 * k))
        for k in range(4): A("v_exp_f32 v%d, v%d" % (F + k, F + k))
        A("s_nop 0")
        A("v_mul_f32 v41, v%d, v%d" % (F, st + 1))
        for k in range(1, 4): A("v_fmac_f32 v41, v%d, v%d" % (F + k, st + 2 * k + 1))
        A("v_rcp_f32 v41, v41\ns_nop 0")
        for k in range(4): A("v_mul_f32 v%d, v%d, v41" % (F + k, F + k))
        A("s_lshl_b32 s%d, s%d, 19\ns_lshl_b32 s%d, s%d, 14\ns_add_u32 s%d, s%d, s%d\ns_lshl_b32 s%d, s%d, 12\ns_add_u32 s%d, s%d, s%d" %
          (S_T0, S_H, S_T1, S_I, S_T0, S_T0, S_T1, S_T1, S_W, S_T0, S_T0, S_T1))
        A("v_and_b32 v42, 15, v%d\nv_lshrrev_b32 v43, 4, v%d\nv_lshlrev_b32 v42, 8, v42\nv_lshl_add_u32 v42, v43, 5, v42\nv_add_u32 v42, s%d, v42" % (ln, ln, S_T0))
        issued = 9
        ob = 48
        for idx in range(8):
            while issued < min(24, 3 * idx + 12):
                k, i2 = order[issued]
                r = pb + (k * 8 + i2) * 4
                A("ds_read_b128 v[%d:%d], v45 offset:%d" % (r, r + 3, k * 8192 + i2 * 1024)); issued += 1
            A("s_waitcnt lgkmcnt(%d)" % (issued - 3 * idx - 3))
            for pr in range(2):
                r = own + idx * 4 + 2 * pr
                A("v_pk_mul_f32 %s, %s, %s op_sel_hi:[1,0]" % (P2(r), P2(r), P2(F)))
                for k in range(3):
                    fr = F + 1 + k
                    q = fr & 1
                    A("v_pk_fma_f32 %s, %s, %s, %s op_sel:[0,%d,0] op_sel_hi:[1,%d,1]" % (P2(r), P2(pb + (k * 8 + idx) * 4 + 2 * pr), P2(fr & ~1), P2(r), q, q))
            if (idx & 3) == 3:
                dh = idx >> 2
                for hf in range(2):
                    o = ob + (dh * 2 + hf) * 4
                    for ii in range(2):
                        i = 2 * hf + ii
                        for tp in range(2):
                            A("v_cvt_pk_bf16_f32 v%d, v%d, v%d" % (o + 2 * ii + tp, own + (dh * 4 + 2 * tp) * 4 + i, own + (dh * 4 + 2 * tp + 1) * 4 + i))
                    A("global_store_dwordx4 v42, v[%d:%d], %s offset:%d %s" % (o, o + 3, sp(S_OUT), 128 * dh + 16 * hf, self.omod))

    def dump_stamps(self):
        if not self.stamps: return
        A = self.A
        A("s_lshl_b32 s100, s2, 2\ns_add_u32 s100, s100, s%d\ns_lshl_b32 s100, s100, 6\ns_add_u32 s100, s100, %d" % (S_W, 16 << 20))
        A("v_lshlrev_b32 v2, 2, v%d\nv_add_u32 v2, s100, v2\ns_mov_b64 exec, 0xffff" % V_LANE)
        A("global_store_dword v2, v%d, %s\ns_mov_b64 exec, -1" % (V_STAMP, sp(S_WS)))

    def build(self):
        A = self.A
        K = NAME + "_kernel"
        self.cold = []
        self.compute_waits()
        hdr = open("cdna_kernels/%s.s.ref" % NAME).read().split("; @launch")[0]
        A(hdr.rstrip("\n"))
        A("; @launch grid=(256,1,1) block=(256,1,1) lds=%d" % LDS_BYTES)
        A('.amdgcn_target "amdgcn-amd-amdhsa--gfx950"\n.text')
        A(".globl %s\n.p2align 8\n.type %s,@function\n%s:" % (K, K, K))
        self.phase1()
        self.main()
        self.epilogue()
        A("s_cmp_lg_u32 s2, 0\ns_cbranch_scc1 L_noep\ns_cmp_lg_u32 s%d, 0\ns_cbranch_scc1 L_noep" % S_W)
        A("v_mov_b32 v1, %d\nv_mov_b32 v2, s%d\ns_mov_b64 exec, 1\nglobal_store_dword v1, v2, %s sc1\ns_mov_b64 exec, -1" % (WS_EPOCH, S_TAG, sp(S_WS)))
        A("L_noep:")
        self.stamp(7)
        self.dump_stamps()
        if self.probe is not None:
            A("v_readlane_b32 s70, v7, %d\ns_nop 3\ns_add_u32 s70, s70, 3000\nL_spin:\ns_memrealtime s[100:101]\ns_waitcnt lgkmcnt(0)\ns_sub_u32 s71, s70, s100\ns_cmp_gt_i32 s71, 0\ns_cbranch_scc1 L_spin" % self.probe)
        A("L_end:\ns_endpgm")
        live = [st for st in self.stubs if any(s.endswith(' ' + st[0]) for s in self.L)]
        for stub, ret, x in live:
            A("%s:\ns_call_b64 s[%d:%d], L_sub_%s\ns_branch %s" % (stub, S_RET, S_RET + 1, x, ret))
        self.subs()
        for lab, ret, regs in self.cold:
            A("%s:" % lab)
            for k in range(0, len(regs), 2): self.round_pair(regs[k])
            A("s_branch %s" % ret)
        self.slow_sub('a'); self.slow_sub('b')
        A('.section .rodata,"a"')
        A('.p2align 6\n.amdhsa_kernel %s\n  .amdhsa_next_free_vgpr 512\n  .amdhsa_next_free_sgpr 102\n  .amdhsa_accum_offset 256\n'
          '  .amdhsa_group_segment_fixed_size 0\n  .amdhsa_kernarg_size 112\n  .amdhsa_user_sgpr_count 2\n'
          '  .amdhsa_user_sgpr_kernarg_segment_ptr 1\n  .amdhsa_system_sgpr_workgroup_id_x 1\n.end_amdhsa_kernel' % K)
        return "\n".join(self.L) + "\n"

if __name__ == "__main__":
    ap = argparse.ArgumentParser()
    ap.add_argument("out")
    ap.add_argument("--stamps", action="store_true")
    ap.add_argument("--probe", type=int, default=None)
    ap.add_argument("--sleep", type=int, default=4)
    ap.add_argument("--fs", type=int, default=6)
    ap.add_argument("--omod", default="")
    ap.add_argument("--qsplit", type=int, default=9)
    ap.add_argument("--pollearly", action="store_true")
    ap.add_argument("--r2pos", type=int, default=0)
    ap.add_argument("--vpre", type=int, default=4)
    ap.add_argument("--r1pos", type=int, default=1)
    ap.add_argument("--period", type=int, default=0)
    ap.add_argument("--exactw", type=int, default=1)
    ap.add_argument("--hshare", type=int, default=0)
    ap.add_argument("--qbar", type=int, default=0)
    ap.add_argument("--qt", default=""); ap.add_argument("--kt", default="")
    a = ap.parse_args()
    g = Gen(**vars(a))
    open(a.out, "w").write(g.build())
    print("wv", g.wv, "wk", g.wk, "lines", len(g.L))
```

```python
import sys, struct, argparse
NAME = "standalone__kv_cache_quant_pre_rope_vs_post_rope__prompt"
def f32bits(x): return struct.unpack("<I", struct.pack("<f", x))[0]
CSCALE = 1.4426950408889634 * (128.0 ** -0.5)

V_FA = 0
V_KOFF0, V_KOFF1, V_VOFF0, V_VOFF1 = 1, 2, 3, 4
V_LANE, V_PA, V_STAMP = 5, 6, 7
V_T = {'a': 8, 'b': 10}
V_L = {'a': 64, 'b': 66}
V_CH = 68
V_TMP0, V_TMP1, V_TMP2, V_TMP3 = 12, 13, 14, 15
V_S = {'a': 16, 'b': 32}
V_NM = {'a': 48, 'b': 56}
V_E = {'a': 80, 'b': 96}
V_P = {'a': 112, 'b': 120}
V_K = [128, 160]
V_V = [192, 224]
XI = {'a': 0, 'b': 1}
def A_O(x, ql, dt): return ((2 * XI[x] + ql) * 8 + dt) * 4
def A_Q(x, ql, ks): return 128 + ((2 * XI[x] + ql) * 4 + ks) * 4
V_VSC = 36
A_K0, A_K1, A_V = 192, 208, 224
S_Q, S_QK, S_KS, S_KZ, S_QV, S_VS, S_VZ, S_QC, S_QS, S_KC, S_KSN, S_OUT, S_DBG, S_WS = [4 + 2 * i for i in range(14)]
S_H, S_I, S_W, S_TAG = 32, 33, 34, 35
S_T0, S_T1, S_T2, S_T3 = 36, 37, 38, 39
S_SRD = 40
S_OFF, S_THR = 44, 45
S_C = 46
S_TBL = 48
S_RET = 66
S_SC = 68
S_CNT, S_LIM, S_HOOK = 3, 65, 28
S_KH, S_VK, S_ARG = 29, 0, 1
L_KT = 0
L_TAB = 9216
L_Q = L_TAB + 16384
L_ST = L_Q + 16 * 1040
L_O = L_ST + 8192
LDS_BYTES = L_O + 96 * 1024
WS_FK = 8 << 20
WS_FV = WS_FK + (512 << 10)
WS_EPOCH = 9 << 20
THRESH = 1024.0
P2 = lambda r: "v[%d:%d]" % (r, r + 1)
sp = lambda r: "s[%d:%d]" % (r, r + 1)

class Gen:
    def __init__(self, **kw):
        self.L = []
        self.uid = 0
        self.stamps = kw.get("stamps", False)
        self.probe = kw.get("probe", None)
        self.sleep = kw.get("sleep", 4)
        self.fs = kw.get("fs", 6)
        self.abl = kw.get("abl", "")
        self.omod = kw.get("omod", "")
        self.qsplit = kw.get("qsplit", 9)
        self.pollearly = kw.get("pollearly", False)
        self.r2pos = kw.get("r2pos", 0)
        self.vpre = kw.get("vpre", 4)
        self.r1pos = kw.get("r1pos", 1)
        self.PERIOD = self.PERIODS[kw.get("period", 0)]
        self.hshare = kw.get("hshare", 0)
        self.qbar = kw.get("qbar", 0)
        self.qt = kw.get("qt", ""); self.kt = kw.get("kt", "")
        self.vm = []; self.vl = []
        self.exactw = kw.get('exactw', 1)
        self.cpf = kw.get('cpf', 0)
    def A(self, s):
        for line in s.split("\n"): self.L.append(line)
    def label(self, base):
        self.uid += 1
        return "%s_%d" % (base, self.uid)
    def M(self, s, tag):
        self.A(s); self.vm.append(tag); self.vl.append(tag)
    def Mlo(self, s, tag):
        self.A(s); self.vl.append(tag)
    def Mhi(self, s, tag):
        self.A(s); self.vm.append(tag)
    def note(self, tag, nlo, nhi):
        self.vl += [tag] * nlo; self.vm += [tag] * nhi
    def wait(self, tag, extra=""):
        cnt = lambda v: len(v) - 1 - max(k for k, t in enumerate(v) if t == tag)
        nh, nl = cnt(self.vm), cnt(self.vl)
        assert max(nh, nl) <= 63
        if nh == nl or not self.exactw:
            self.A("s_waitcnt vmcnt(%d)%s" % (min(nh, nl), extra))
        else:
            lab = self.label("L_w")
            self.A("s_waitcnt vmcnt(%d)%s" % (max(nh, nl), extra))
            self.A("s_cmp_%s_u32 s%d, 2\ns_cbranch_scc1 %s\ns_waitcnt vmcnt(%d)\n%s:" % ("lt" if nl > nh else "ge", S_W, lab, min(nh, nl), lab))
    def cstamp(self, idx):
        if self.stamps: self.A("s_memtime s[100:101]\ns_waitcnt lgkmcnt(0)\nv_writelane_b32 v%d, s100, %d" % (V_STAMP, idx))
    def stamp(self, idx):
        if self.probe is not None:
            if idx != self.probe: return
        elif not self.stamps: return
        self.A("s_memrealtime s[100:101]\ns_waitcnt lgkmcnt(0)\nv_writelane_b32 v%d, s100, %d" % (V_STAMP, idx))

    def unpack(self, dst, src):
        self.A("v_lshlrev_b32 v%d, 16, v%d\nv_and_b32 v%d, 0xffff0000, v%d" % (dst, src, dst + 1, src))
    def round_pair(self, r):
        self.A("v_cvt_pk_bf16_f32 v%d, v%d, v%d" % (r + 1, r, r + 1))
        self.A("v_lshlrev_b32 v%d, 16, v%d\nv_and_b32 v%d, 0xffff0000, v%d" % (r, r + 1, r + 1, r + 1))
    def int_to_f32(self, regs, tmp):
        for r in regs: self.A("v_cvt_f32_i32 v%d, v%d" % (r, r))
        self.int_guard(regs, tmp)
    def int_guard(self, regs, tmp):
        A = self.A
        A("v_max3_f32 v%d, |v%d|, |v%d|, 0" % (tmp, regs[0], regs[1]))
        for k in range(2, len(regs), 2):
            A("v_max3_f32 v%d, |v%d|, |v%d|, v%d" % (tmp, regs[k], regs[k + 1], tmp))
        lab = self.label("L_big"); ret = self.label("L_bigret")
        A("v_cmp_lt_f32 vcc, 0x43800000, v%d" % tmp)
        A("s_cbranch_vccnz %s" % lab)
        A("%s:" % ret)
        self.cold.append((lab, ret, list(regs)))
    def unpack_tab(self, dst, src):
        for p in range(4):
            for k in range(4): self.unpack(dst + 8 * p + 2 * k, src + 4 * k + p)
    def rope_p(self, a, b, tab, t, u, o1, o2):
        A = self.A
        A("v_pk_mul_f32 %s, %s, %s" % (P2(t), P2(a), P2(tab)))
        A("v_pk_mul_f32 %s, %s, %s" % (P2(u), P2(b), P2(tab + 2)))
        A("v_pk_fma_f32 %s, %s, %s, %s neg_lo:[1,0,0] neg_hi:[1,0,0]" % (P2(t), P2(b), P2(tab + 4), P2(t)))
        A("v_pk_fma_f32 %s, %s, %s, %s" % (P2(u), P2(a), P2(tab + 6), P2(u)))
        A("v_cvt_pk_bf16_f32 v%d, v%d, v%d" % (o1, t, t + 1))
        A("v_cvt_pk_bf16_f32 v%d, v%d, v%d" % (o2, u, u + 1))
    def k_dequant(self, rb, sc, tmp):
        A = self.A
        z = sc + 1
        self.int_to_f32(list(range(rb, rb + 16)), tmp)
        A("v_lshlrev_b32 v%d, 16, v%d\nv_lshlrev_b32 v%d, 16, v%d" % (sc, sc, z, z))
        A("v_mul_f32 v%d, v%d, v%d" % (z, z, sc))
        for p in range(8):
            r = rb + 2 * p
            A("v_pk_fma_f32 %s, %s, %s, %s op_sel:[0,0,1] op_sel_hi:[1,0,1] neg_lo:[0,0,1] neg_hi:[0,0,1]" % (P2(r), P2(r), P2(sc), P2(sc)))
    def v_compute(self, x, rawsc, sc, nz, tmp, o):
        A = self.A
        for p in range(4):
            self.unpack(sc + 2 * p, rawsc + p)
            self.unpack(nz + 2 * p, rawsc + 4 + p)
        for p in range(4): A("v_pk_mul_f32 %s, %s, %s" % (P2(nz + 2 * p), P2(nz + 2 * p), P2(sc + 2 * p)))
    def v_compute2(self, x, sc, nz, tmp, o):
        A = self.A
        self.int_to_f32(list(range(x, x + 16)), tmp)
        for j in range(8):
            r = x + 2 * j; q = j & 1
            A("v_pk_fma_f32 %s, %s, %s, %s op_sel:[0,%d,%d] op_sel_hi:[1,%d,%d] neg_lo:[0,0,1] neg_hi:[0,0,1]" %
              (P2(r), P2(r), P2(sc + (j & ~1)), P2(nz + (j & ~1)), q, q, q, q))
        for e in range(2):
            for jj in range(4):
                A("v_cvt_pk_bf16_f32 v%d, v%d, v%d" % (o + 4 * e + jj, x + 4 * jj + e, x + 4 * jj + 2 + e))

    def raw_loads(self, f, rk, rv, bq, bs, bv, bvs, tagk, tagv):
        o = []
        for k, off in enumerate((0, 16, 256, 272)):
            o.append(("global_load_dwordx4 %s[%d:%d], v%d, %s offset:%d nt" % (f, rk + 4 * k, rk + 4 * k + 3, bq, sp(S_QK), off), tagk))
        o.append(("global_load_ushort %s%d, v%d, %s" % (f, rk + 16, bs, sp(S_KS)), tagk))
        o.append(("global_load_ushort %s%d, v%d, %s" % (f, rk + 17, bs, sp(S_KZ)), tagk))
        for j in range(8):
            off = (8 * (j >> 2) + (j & 3)) * 512 - 2560
            o.append(("global_load_dwordx2 %s[%d:%d], v%d, %s offset:%d nt" % (f, rv + 2 * j, rv + 2 * j + 1, bv, sp(S_QV), off), tagv))
        for q, sr in enumerate((S_VS, S_VZ)):
            for hf in range(2):
                r = rv + 16 + 4 * q + 2 * hf
                o.append(("global_load_dwordx2 %s[%d:%d], v%d, %s offset:%d" % (f, r, r + 1, bvs, sp(sr), 16 * hf), tagv))
        return o

    def flag_store(self, mask):
        A = self.A
        A("v_mov_b32 v%d, s%d" % (V_TMP3, S_TAG))
        A("s_mov_b64 exec, %d" % mask)
        self.M("global_store_dword v%d, v%d, %s sc1" % (V_FA, V_TMP3, sp(S_WS)), "flag")
        A("s_mov_b64 exec, -1")

    def poll(self, reg):
        A = self.A
        lab = self.label("L_poll"); done = self.label("L_polled")
        A("s_mov_b32 s%d, 0" % S_CNT)
        A("%s:" % lab)
        A("global_load_dword v%d, v%d, %s sc1" % (V_TMP0, reg, sp(S_WS)))
        A("s_add_u32 s%d, s%d, 1" % (S_CNT, S_CNT))
        A("s_waitcnt vmcnt(0)")
        A("v_cmp_ne_u32 vcc, s%d, v%d" % (S_TAG, V_TMP0))
        A("s_cbranch_vccz %s" % done)
        if self.sleep: A("s_sleep %d" % self.sleep)
        A("s_cmp_lt_u32 s%d, 0x8000\ns_cbranch_scc1 %s" % (S_CNT, lab))
        A("%s:" % done)

    XA, XB, XV = 16, 80, 96
    AQ, AT, LQ, VT, LW, LR, BO, BK = 32, 33, 34, 35, 36, 37, 38, 39
    KSC = 40
    BVO, PV0 = 44, 45
    RT, VS, RQ, TB, KT, UQ = 48, 64, 128, 176, 192, 224
    def k_raw_loads(self, slot, vaddr, tag, M):
        for k, off in enumerate((0, 16, 256, 272)):
            M("global_load_dwordx4 v[%d:%d], v%d, %s offset:%d nt" % (slot + 4 * k, slot + 4 * k + 3, vaddr, sp(S_QK), off), tag)
    def v_raw_loads(self, vaddr, tag, M):
        for j in range(8):
            M("global_load_dwordx4 v[%d:%d], v%d, %s offset:%d nt" % (self.XV + 4 * j, self.XV + 4 * j + 3, vaddr + (j >> 2), sp(S_QV), (j & 3) * 512), tag)

    def subs(self):
        A = self.A
        X, TB, KT = self.XA, self.TB, self.KT
        fs = self.fs
        O = TB + 4
        A("L_ktask1b:      ; raw data in slot B")
        for r in range(16): A("v_cvt_f32_i32 v%d, v%d" % (X + r, self.XB + r))
        A("s_mov_b32 s%d, s%d\nv_mov_b32 v%d, v%d\nv_mov_b32 v%d, v%d\ns_branch L_kbody" % (S_T3, S_ARG, self.KSC, self.KSC + 2, self.KSC + 1, self.KSC + 3))
        A("L_ktask1:")
        A("s_mov_b32 s%d, s%d\nv_mov_b32 v%d, v%d\nv_mov_b32 v%d, v%d\ns_branch L_kcvt" % (S_T3, S_ARG, self.KSC, self.KSC + 2, self.KSC + 1, self.KSC + 3))
        A("L_ktask0:")
        A("s_mov_b32 s%d, s%d" % (S_T3, S_KH))
        A("L_kcvt:")
        for r in range(16): A("v_cvt_f32_i32 v%d, v%d" % (X + r, X + r))
        A("L_kbody:")
        self.int_guard(list(range(X, X + 16)), TB)
        for p in range(8):
            r = X + 2 * p
            A("v_pk_fma_f32 %s, %s, %s, %s op_sel:[0,0,1] op_sel_hi:[1,0,1] neg_lo:[0,0,1] neg_hi:[0,0,1]" % (P2(r), P2(r), P2(self.KSC), P2(self.KSC)))
        for p in range(4): self.rope_p(X + 2 * p, X + 8 + 2 * p, KT + 8 * p, TB, TB + 2, O + p, O + 4 + p)
        A("ds_write_b128 v%d, v[%d:%d]\nds_write_b128 v%d, v[%d:%d] offset:1152" % (self.LW, O, O + 3, self.LW, O + 4, O + 7))
        A("v_add_u32 v%d, s%d, v%d" % (TB, S_T3, self.BO))
        A("s_lshr_b32 s%d, s%d, 12\ns_add_u32 s%d, s%d, s2\ns_lshl_b32 s%d, s%d, %d\ns_add_u32 s%d, s%d, %d" % (S_T0, S_T3, S_T0, S_T0, S_T0, S_T0, fs, S_T0, S_T0, WS_FK))
        A("s_waitcnt lgkmcnt(0)")
        A("ds_read_b128 v[%d:%d], v%d\nds_read_b128 v[%d:%d], v%d offset:1152" % (O, O + 3, self.LR, O + 4, O + 7, self.LR))
        A("v_mov_b32 v%d, s%d" % (V_FA, S_T0))
        A("s_waitcnt lgkmcnt(1)")
        A("global_store_dwordx4 v%d, v[%d:%d], %s sc1" % (TB, O, O + 3, sp(S_WS)))
        A("s_waitcnt lgkmcnt(0)")
        A("global_store_dwordx4 v%d, v[%d:%d], %s offset:256 sc1" % (TB, O + 4, O + 7, sp(S_WS)))
        A("s_setpc_b64 s[%d:%d]" % (S_RET, S_RET + 1))
        A("L_vtask:")
        x = self.XV
        self.int_to_f32(list(range(x, x + 32)), TB)
        sc, nz = self.VS, self.VS + 8
        for j in range(8):
            q = j & 1
            for hf in range(2):
                r = x + 4 * j + 2 * hf
                A("v_pk_fma_f32 %s, %s, %s, %s op_sel:[0,%d,%d] op_sel_hi:[1,%d,%d] neg_lo:[0,0,1] neg_hi:[0,0,1]" %
                  (P2(r), P2(r), P2(sc + (j & ~1)), P2(nz + (j & ~1)), q, q, q, q))
        for t in range(4):
            o = TB + 4 * t
            for jj in range(4): A("v_cvt_pk_bf16_f32 v%d, v%d, v%d" % (o + jj, x + 8 * jj + t, x + 8 * jj + 4 + t))
            A("global_store_dwordx4 v%d, v[%d:%d], %s offset:%d sc1" % (self.BVO, o, o + 3, sp(S_WS), 1024 * t))
        A("s_lshl_b32 s%d, s%d, 5\ns_add_u32 s%d, s%d, s%d\ns_lshl_b32 s%d, s%d, 2\ns_xor_b32 s%d, s%d, 2\ns_add_u32 s%d, s%d, s%d\ns_lshl_b32 s%d, s%d, %d\ns_add_u32 s%d, s%d, %d\nv_mov_b32 v%d, s%d" %
          (S_T0, S_H, S_T0, S_T0, S_I, S_T0, S_T0, S_T1, S_W, S_T0, S_T0, S_T1, S_T0, S_T0, fs, S_T0, S_T0, WS_FV, V_FA, S_T0))
        A("s_setpc_b64 s[%d:%d]" % (S_RET, S_RET + 1))

    def call_by_role(self, lo, hi):
        A = self.A
        l1 = self.label("L_role"); l2 = self.label("L_roled")
        A("s_cmp_ge_u32 s%d, 2\ns_cbranch_scc1 %s" % (S_W, l1))
        A("s_call_b64 s[%d:%d], %s\ns_branch %s" % (S_RET, S_RET + 1, lo, l2))
        A("%s:\ns_call_b64 s[%d:%d], %s\n%s:" % (l1, S_RET, S_RET + 1, hi, l2))

    def phase1(self):
        A = self.A; M = self.M
        ln = V_LANE
        AQ, AT, LQ, VT, LW, LR, BO, BK, KSC, BVO, PV0 = self.AQ, self.AT, self.LQ, self.VT, self.LW, self.LR, self.BO, self.BK, self.KSC, self.BVO, self.PV0
        RT, VS, RQ, TB, KT, UQ = self.RT, self.VS, self.RQ, self.TB, self.KT, self.UQ
        fs = self.fs
        nul = lambda s_, t_: A(s_)
        A("s_cmp_ge_u32 s2, 256\ns_cbranch_scc1 L_end")
        A("s_load_dwordx16 s[4:19], s[0:1], 0\ns_load_dwordx8 s[20:27], s[0:1], 64\ns_load_dwordx2 s[30:31], s[0:1], 104")
        A("v_lshrrev_b32 v1, 6, v0\nv_and_b32 v%d, 63, v0" % ln)
        hb = self.hshare
        if hb == 0:
            A("s_and_b32 s%d, s2, 7\ns_lshr_b32 s%d, s2, 3" % (S_H, S_I))
        else:
            m = (1 << hb) - 1
            A("s_and_b32 s%d, s2, %d\ns_bfe_u32 s%d, s2, 0x%x\ns_or_b32 s%d, s%d, s%d" % (S_H, 7 & ~m, S_T0, (hb << 16) | 3, S_H, S_H, S_T0))
            A("s_lshr_b32 s%d, s2, %d\ns_lshl_b32 s%d, s%d, %d\ns_and_b32 s%d, s2, %d\ns_or_b32 s%d, s%d, s%d" % (S_I, 3 + hb, S_I, S_I, hb, S_T0, m, S_I, S_I, S_T0))
        A("v_readfirstlane_b32 s%d, v1" % S_W)
        self.stamp(0)
        if self.cpf:
            A("; pull the kernel's code into L2 early: thread t reads one dword of code line t")
            A("s_getpc_b64 s[%d:%d]\nL_pc:" % (S_RET, S_RET + 1))
            A("s_sub_u32 s%d, s%d, L_pc-%s_kernel\ns_subb_u32 s%d, s%d, 0" % (S_RET, S_RET, NAME, S_RET + 1, S_RET + 1))
            A("v_lshlrev_b32 v14, 7, v0\nv_min_u32 v14, L_codeend-%s_kernel-4, v14" % NAME)
            A("global_load_dword v47, v14, s[%d:%d]" % (S_RET, S_RET + 1))
        A("s_lshr_b32 s%d, s2, 2\ns_and_b32 s%d, s%d, 2\ns_sub_u32 s%d, s%d, s%d\ns_and_b32 s%d, s%d, 3\ns_and_b32 s%d, s%d, 1\ns_lshl_b32 s%d, s%d, 2\ns_add_u32 s%d, s%d, s%d\ns_lshl_b32 s%d, s%d, 20" %
          (S_T0, S_T1, S_W, S_T1, S_T1, S_T0, S_T1, S_T1, S_T2, S_W, S_T2, S_T2, S_T1, S_T1, S_T2, S_KH, S_T1))
        A("s_xor_b32 s%d, s%d, 2\ns_sub_u32 s%d, s%d, s%d\ns_and_b32 s%d, s%d, 3\ns_lshr_b32 s%d, s%d, 1\ns_lshl_b32 s%d, s%d, 2\ns_add_u32 s%d, s%d, s%d" %
          (S_T0, S_W, S_T0, S_T0, S_H, S_T0, S_T0, S_T1, S_I, S_T1, S_T1, S_LIM, S_T0, S_T1))
        A("v_lshrrev_b32 v8, 3, v%d\nv_and_b32 v9, 7, v%d\nv_lshlrev_b32 v%d, 8, v8\nv_lshl_add_u32 v%d, v9, 4, v%d" % (ln, ln, AT, AT, AT))
        A("s_lshl_b32 s%d, s2, 11\nv_add_u32 v%d, s%d, v%d\nv_lshlrev_b32 v%d, 1, v%d\nv_add_u32 v10, s%d, v%d" % (S_T0, VT, S_T0, AT, BK, VT, S_KH, BK))
        A("s_lshl_b32 s%d, s%d, 20\ns_lshl_b32 s%d, s%d, 14\ns_add_u32 s%d, s%d, s%d\ns_and_b32 s%d, s%d, 1\ns_lshl_b32 s%d, s%d, 8\ns_add_u32 s%d, s%d, s%d" %
          (S_T0, S_H, S_T1, S_LIM, S_HOOK, S_T0, S_T1, S_T1, S_I, S_T1, S_T1, S_T0, S_HOOK, S_T1))
        A("v_lshrrev_b32 v12, 4, v%d\nv_and_b32 v13, 15, v%d\nv_lshlrev_b32 v%d, 11, v12\nv_lshl_add_u32 v%d, v13, 4, v%d\nv_add_u32 v%d, s%d, v%d\nv_add_u32 v%d, 8192, v%d" %
          (ln, ln, PV0, PV0, PV0, PV0, S_T0, PV0, PV0 + 1, PV0))
        A("; Q: row = 64 i + 16 w + 8u + (l>>3)")
        A("s_lshl_b32 s%d, s%d, 14\ns_lshl_b32 s%d, s%d, 12\ns_add_u32 s%d, s%d, s%d\ns_lshl_b32 s%d, s%d, 19\nv_add_u32 v%d, s%d, v%d\nv_add_u32 v%d, s%d, v%d" % (S_T0, S_I, S_T1, S_W, S_T0, S_T0, S_T1, S_T1, S_H, AT, S_T0, AT, AQ, S_T1, AT))
        A("s_cmp_ge_u32 s%d, 2" % S_W)
        A("s_waitcnt lgkmcnt(0)")
        A("s_cbranch_scc1 L_r0v")
        self.k_raw_loads(self.XA, 10, "r0", nul)
        for k, (sr, off) in enumerate(((S_KC, 0), (S_KC, 128), (S_KSN, 0), (S_KSN, 128))):
            A("global_load_dwordx4 v[%d:%d], v%d, %s offset:%d %s" % (RT + 4 * k, RT + 4 * k + 3, VT, sp(sr), off, self.kt))
        A("s_branch L_r0d\nL_r0v:")
        self.v_raw_loads(PV0, "r0", M)
        A("L_r0d:")
        ql = []
        for u in range(2):
            b = RQ + 24 * u
            for (r, v, sr, off, m_) in ((0, AQ, S_Q, 0, "nt"), (4, AQ, S_Q, 128, "nt"), (8, AT, S_QC, 0, self.qt), (12, AT, S_QC, 128, self.qt), (16, AT, S_QS, 0, self.qt), (20, AT, S_QS, 128, self.qt)):
                ql.append(("global_load_dwordx4 v[%d:%d], v%d, %s offset:%d %s" % (b + r, b + r + 3, v, sp(sr), 2048 * u + off, m_), "q%d" % u))
        A("s_add_u32 s%d, s%d, 0x100000\ns_and_b32 s%d, s%d, 0x300000\ns_and_b32 s%d, s%d, 0x400000\ns_or_b32 s%d, s%d, s%d" % (S_T2, S_KH, S_T2, S_T2, S_ARG, S_KH, S_ARG, S_ARG, S_T2))
        A("s_lshl_b32 s%d, s2, 4\ns_lshr_b32 s%d, s%d, 8\ns_add_u32 s%d, s%d, s%d\ns_lshr_b32 s%d, s%d, 8\ns_add_u32 s%d, s%d, s%d" % (S_T0, S_T1, S_KH, S_T1, S_T1, S_T0, S_T2, S_ARG, S_T2, S_T2, S_T0))
        A("s_lshl_b32 s%d, s%d, 12\ns_lshl_b32 s%d, s%d, 6\ns_add_u32 s%d, s%d, s%d\ns_mov_b32 s%d, %d" % (S_T3, S_H, S_T0, S_LIM, S_T3, S_T3, S_T0, S_T0, WS_EPOCH))
        A("s_load_dword s%d, %s, s%d" % (S_TAG, sp(S_WS), S_T0))
        A("s_load_dwordx4 s[%d:%d], %s, s%d\ns_load_dwordx4 s[%d:%d], %s, s%d" % (S_SC, S_SC + 3, sp(S_KS), S_T1, S_SC + 4, S_SC + 7, sp(S_KZ), S_T1))
        A("s_load_dwordx4 s[%d:%d], %s, s%d\ns_load_dwordx4 s[%d:%d], %s, s%d" % (S_SC + 8, S_SC + 11, sp(S_KS), S_T2, S_SC + 12, S_SC + 15, sp(S_KZ), S_T2))
        A("s_load_dwordx16 s[48:63], %s, s%d\ns_load_dwordx16 s[84:99], %s, s%d" % (sp(S_VS), S_T3, sp(S_VZ), S_T3))
        for s, t in ql[:self.qsplit]: M(s, t)
        A("v_lshlrev_b32 v%d, 4, v%d\nv_add_u32 v%d, 4096, v%d\nv_add_u32 v%d, 8192, v%d\nv_add_u32 v%d, 12288, v%d" % (V_KOFF0, ln, V_KOFF1, V_KOFF0, V_VOFF0, V_KOFF0, V_VOFF1, V_KOFF0))
        A("s_mul_i32 s0, s%d, 2304" % S_W)
        A("v_mul_u32_u24 v%d, 144, v9\nv_lshl_add_u32 v%d, v8, 4, v%d\nv_add_u32 v%d, s0, v%d" % (LW, LW, LW, LW, LW))
        A("v_mul_u32_u24 v%d, 144, v8\nv_lshl_add_u32 v%d, v9, 4, v%d\nv_add_u32 v%d, s0, v%d" % (LR, LR, LR, LR, LR))
        A("; BO = (p>>2)*16384 + ((p>>1)&1)*4096 + (p&1)*128 + (l>>3)*512 + (l&7)*16")
        A("s_lshr_b32 s0, s2, 2\ns_lshl_b32 s0, s0, 14\ns_and_b32 s3, s2, 1\ns_lshl_b32 s3, s3, 7\ns_add_u32 s0, s0, s3\ns_and_b32 s3, s2, 2\ns_lshl_b32 s3, s3, 11\ns_add_u32 s0, s0, s3")
        A("v_lshlrev_b32 v%d, 9, v8\nv_lshl_add_u32 v%d, v9, 4, v%d\nv_add_u32 v%d, s0, v%d" % (BO, BO, BO, BO, BO))
        A("s_and_b32 s0, s%d, 1\ns_lshl_b32 s0, s0, 12\ns_add_u32 s0, s0, s%d\nv_add_u32 v%d, s0, v%d" % (S_I, S_HOOK, BVO, V_VOFF0))
        A("s_mul_i32 s0, s%d, 4160\ns_add_u32 s0, s0, %d" % (S_W, L_Q))
        A("v_lshrrev_b32 v12, 1, v9\nv_mul_u32_u24 v%d, 1040, v12\nv_and_b32 v12, 1, v9\nv_lshl_add_u32 v%d, v12, 9, v%d\nv_lshl_add_u32 v%d, v8, 4, v%d\nv_add_u32 v%d, s0, v%d" % (LQ, LQ, LQ, LQ, LQ, LQ, LQ))
        A("v_lshrrev_b32 v12, 5, v%d\nv_bfe_u32 v13, v%d, 3, 2\nv_lshl_add_u32 v13, v13, 2, s%d" % (ln, ln, S_W))
        A("v_subrev_u32 v14, s%d, v12\nv_and_b32 v14, 3, v14\nv_lshl_add_u32 v14, v13, 2, v14\nv_lshlrev_b32 v14, 2, v14\nv_add_u32 v14, v9, v14" % S_H)
        A("s_lshl_b32 s0, s%d, 8\nv_add_u32 v14, s0, v14\nv_lshlrev_b32 v14, %d, v14\nv_add_u32 v14, %d, v14" % (S_H, fs, WS_FK))
        A("v_and_b32 v15, 1, v9\nv_lshl_add_u32 v15, v13, 1, v15\nv_lshl_add_u32 v15, v15, 2, v12\ns_lshl_b32 s0, s%d, 7\nv_add_u32 v15, s0, v15\nv_lshlrev_b32 v15, %d, v15\nv_add_u32 v15, %d, v15" % (S_H, fs, WS_FV))
        A("v_cmp_gt_u32 vcc, 4, v9\ns_nop 1\nv_cndmask_b32 v%d, v15, v14, vcc" % V_PA)
        A("v_add_u32 v11, s%d, v%d\ns_cmp_lt_u32 s%d, 2\ns_cselect_b32 s0, s%d, s%d\nv_add_u32 v10, s0, v%d" % (S_ARG, BK, S_W, S_ARG, S_KH, BK))
        A("s_mov_b32 s%d, 0x%08x\ns_mov_b32 s%d, 0x%08x\ns_mov_b32 s%d, 0x%08x" % (S_C, f32bits(CSCALE), S_C + 1, f32bits(CSCALE), S_THR, f32bits(THRESH)))
        A("s_mov_b32 s%d, s%d\ns_mov_b32 s%d, s%d\ns_mov_b32 s%d, 0x800000\ns_mov_b32 s%d, 0x20000" % (S_SRD, S_WS, S_SRD + 1, S_WS + 1, S_SRD + 2, S_SRD + 3))
        A("v_and_b32 v12, 1, v8\nv_lshlrev_b32 v12, 4, v12")
        A("s_waitcnt lgkmcnt(0)")
        for g in range(4):
            if g: A("s_lshl_b64 exec, -1, %d" % (16 * g))
            for k in range(4): A("v_mov_b32 v%d, s%d" % (KSC + k, S_SC + 4 * k + g))
            for z, sb in enumerate((48, 84)):
                for k, dw in enumerate((0, 1, 8, 9)): A("v_mov_b32 v%d, s%d" % (TB + 4 * z + k, sb + dw + 2 * g))
        A("s_mov_b64 exec, -1")
        for k in range(4): A("v_lshrrev_b32 v%d, v12, v%d\nv_lshlrev_b32 v%d, 16, v%d" % (KSC + k, KSC + k, KSC + k, KSC + k))
        A("v_mul_f32 v%d, v%d, v%d\nv_mul_f32 v%d, v%d, v%d" % (KSC + 1, KSC + 1, KSC, KSC + 3, KSC + 3, KSC + 2))
        self.v_compute(None, TB, VS, VS + 8, None, None)
        A("s_lshl_b32 s%d, s%d, 20\ns_lshl_b32 s%d, s%d, 16\ns_add_u32 s%d, s%d, s%d" % (S_T0, S_H, S_T1, S_W, S_T0, S_T0, S_T1))
        A("s_lshr_b32 s%d, s%d, %d" % (S_T2, S_I, self.hshare))
        for n in range(4):
            A("s_add_u32 s%d, s%d, %d\ns_and_b32 s%d, s%d, 3\ns_lshl_b32 s%d, s%d, 18\ns_add_u32 s%d, s%d, s%d" % (S_T1, S_T2, n, S_T1, S_T1, S_T1, S_T1, S_TBL + 12 + n, S_T1, S_T0))
        for sg in range(4):
            A("s_sub_u32 s%d, %d, s%d\ns_and_b32 s%d, s%d, 3\ns_lshl_b32 s%d, s%d, 14" % (S_T1, sg, S_H, S_T1, S_T1, S_T1, S_T1))
            for n in range(4): A("s_add_u32 s%d, s%d, s%d" % (S_TBL + 4 * sg + n, S_TBL + 12 + n, S_T1))
        A("s_mov_b32 s%d, s%d\ns_mov_b32 s%d, s%d" % (S_TBL + 16, S_TBL, S_OFF, S_TBL))
        A("s_add_u32 s%d, s%d, 0x9e3779b9" % (S_TAG, S_TAG))
        A("s_and_b32 s0, s%d, 1\ns_lshl_b32 s0, s0, 13\nv_add_u32 v%d, s0, v%d" % (S_W, VT, V_KOFF0))
        def r2loads():
            A("s_cmp_ge_u32 s%d, 2\ns_cbranch_scc1 L_r2k" % S_W)
            self.v_raw_loads(PV0, "r2", self.Mlo)
            A("s_branch L_r2d\nL_r2k:")
            self.k_raw_loads(self.XB, 11, "r2", self.Mhi)
            A("L_r2d:")
        A("; ---- round 0")
        self.wait("r0")
        self.stamp(1)
        A("s_cmp_ge_u32 s%d, 2\ns_cbranch_scc1 L_t0v" % S_W)
        self.unpack_tab(KT, RT)
        A("s_call_b64 s[%d:%d], L_ktask0" % (S_RET, S_RET + 1))
        for k in range(8): A("ds_write_b128 v%d, v[%d:%d] offset:%d" % (VT, KT + 4 * k, KT + 4 * k + 3, L_TAB + 1024 * k))
        A("s_waitcnt lgkmcnt(0)\ns_branch L_t0d")
        A("L_t0v:\ns_call_b64 s[%d:%d], L_vtask\nL_t0d:" % (S_RET, S_RET + 1))
        self.note("st", 2, 4)
        self.stamp(13)
        A("s_barrier")
        for s, t in ql[self.qsplit:]: M(s, t)
        self.k_raw_loads(self.XA, 10, "r1", M)
        for k in range(8): A("ds_read_b128 v[%d:%d], v%d offset:%d" % (KT + 4 * k, KT + 4 * k + 3, VT, L_TAB + 1024 * k))
        for r in range(64): A("v_accvgpr_write_b32 a%d, 0" % (64 + r))
        self.wait("st")
        self.flag_store(1)
        self.stamp(2)
        if self.r2pos == 0: r2loads()
        def qunit(u):
            b = RQ + 24 * u
            self.unpack_tab(UQ, b + 8)
            x1, x2 = 48, 56
            for p in range(4):
                self.unpack(x1 + 2 * p, b + p); self.unpack(x2 + 2 * p, b + 4 + p)
            for p in range(8): A("v_pk_mul_f32 %s, %s, %s" % (P2(x1 + 2 * p), P2(x1 + 2 * p), sp(S_C)))
            for p in range(4): self.rope_p(x1 + 2 * p, x2 + 2 * p, UQ + 8 * p, 12, 14, b + p, b + 4 + p)
            A("ds_write_b128 v%d, v[%d:%d] offset:%d\nds_write_b128 v%d, v[%d:%d] offset:%d" % (LQ, b, b + 3, 128 * u, LQ, b + 4, b + 7, 128 * u + 256))
        self.wait("q0")
        self.stamp(10)
        qunit(0)
        if self.r2pos == 1: r2loads()
        self.wait("q1")
        qunit(1)
        self.stamp(14)
        A("; ---- round 1")
        self.wait("r1", " lgkmcnt(0)")
        self.call_by_role("L_ktask1", "L_ktask0")
        self.note("st", 2, 2)
        M("global_load_dword v%d, v%d, %s sc1" % (AQ, V_PA, sp(S_WS)), "poll")
        A("s_barrier")
        self.stamp(11)
        for f in range(16):
            a = 128 + 4 * f
            A("ds_read_b128 a[%d:%d], v%d offset:%d" % (a, a + 3, V_KOFF0, L_Q + f * 1040))
        self.wait("poll")
        self.stamp(15)
        self.flag_store(1)
        A("v_cmp_ne_u32 vcc, s%d, v%d\ns_mov_b32 s%d, vcc_lo\ns_cmp_lg_u32 vcc_lo, 0\ns_cbranch_scc1 L_nok0" % (S_TAG, AQ, S_HOOK))
        for k in range(8): A(self.ld_k(k, 0))
        A("L_nok0:")
        A("; ---- round 2")
        self.call_by_role("L_vtask", "L_ktask1b")
        self.stamp(12)
        A("s_cmp_eq_u32 s%d, 0\ns_cbranch_scc1 L_havek" % S_HOOK)
        A("s_mov_b32 s%d, 0" % S_CNT)
        A("L_p0:")
        A("global_load_dword v%d, v%d, %s sc1\ns_waitcnt vmcnt(0)" % (AQ, V_PA, sp(S_WS)))
        A("v_cmp_ne_u32 vcc, s%d, v%d\ns_cmp_eq_u32 vcc_lo, 0\ns_cbranch_scc1 L_p0d" % (S_TAG, AQ))
        if self.sleep: A("s_sleep %d" % self.sleep)
        A("s_add_u32 s%d, s%d, 1\ns_cmp_lt_u32 s%d, 0x8000\ns_cbranch_scc1 L_p0" % (S_CNT, S_CNT, S_CNT))
        A("L_p0d:")
        for k in range(8): A(self.ld_k(k, 0))
        A("s_waitcnt vmcnt(0)")
        A("L_havek:")
        self.stamp(3)
        self.vm = ["K0", "st2", "st2"]; self.vl = ["K0", "st2", "st2", "st2", "st2"]

    def mfma_qk(self, x, idx, kset, first_c=None):
        ql, kt, ks = idx >> 3, (idx >> 2) & 1, idx & 3
        s = V_S[x] + 8 * ql + 4 * kt; k = V_K[kset] + 4 * (4 * kt + ks); q = A_Q(x, ql, ks)
        if ks == 0: c = first_c if first_c is not None else "v[%d:%d]" % (V_NM[x] + 4 * ql, V_NM[x] + 4 * ql + 3)
        else: c = "v[%d:%d]" % (s, s + 3)
        return "v_mfma_f32_16x16x32_bf16 v[%d:%d], v[%d:%d], a[%d:%d], %s" % (s, s + 3, k, k + 3, q, q + 3, c)
    def mfma_pv(self, x, idx, vset, first=False):
        dt, ql = idx >> 1, idx & 1
        o = A_O(x, ql, dt); v = V_V[vset] + 4 * dt; p = V_P[x] + 4 * ql
        c = "0" if first else "a[%d:%d]" % (o, o + 3)
        return "v_mfma_f32_16x16x32_bf16 a[%d:%d], v[%d:%d], v[%d:%d], %s" % (o, o + 3, v, v + 3, p, p + 3, c)
    def ld_k(self, ks, kset):
        r = V_K[kset] + 4 * ks
        return "buffer_load_dwordx4 v[%d:%d], v%d, s[%d:%d], s%d offen offset:%d sc1" % (r, r + 3, V_KOFF0 + (ks >> 2), S_SRD, S_SRD + 3, S_OFF, (ks & 3) * 1024)
    def ld_v(self, idx, vset):
        r = V_V[vset] + 4 * idx
        return "buffer_load_dwordx4 v[%d:%d], v%d, s[%d:%d], s%d offen offset:%d sc1" % (r, r + 3, V_VOFF0 + (idx >> 2), S_SRD, S_SRD + 3, S_OFF, (idx & 3) * 1024)
    def op_e(self, x, r): return "v_exp_f32 v%d, v%d" % (V_E[x] + r, V_S[x] + r)
    def op_a(self, x, r):
        t = V_T[x] + (r >> 3)
        if (r & 7) == 1: return "v_add_f32 v%d, v%d, v%d" % (t, V_E[x] + r - 1, V_E[x] + r)
        return "v_add_f32 v%d, v%d, v%d" % (t, t, V_E[x] + r)
    def op_c(self, x, k): return "v_cvt_pk_bf16_f32 v%d, v%d, v%d" % (V_P[x] + k, V_E[x] + 2 * k, V_E[x] + 2 * k + 1)
    def op_f(self, x, ql): return "v_add_f32 v%d, v%d, v%d" % (V_L[x] + ql, V_L[x] + ql, V_T[x] + ql)
    def op_chk(self, x):
        stub = self.label("L_slow_%s" % x); ret = self.label("L_ret_%s" % x)
        self.stubs.append((stub, ret, x))
        return ["v_add_f32 v%d, v%d, v%d" % (V_CH, V_T[x], V_T[x] + 1), "v_cmp_nge_f32 vcc, s%d, v%d" % (S_THR, V_CH), "s_cbranch_vccnz %s" % stub, "%s:" % ret]

    PERIODS = {
      0: ["e0 F0", "e1 F1", "L", "L a1",
          "e2", "e3 c0", "L", "a2 a3 c1",
          "e4", "e5", "L", "a4 a5 c2",
          "e6 W1", "e7", "L", "a6 a7 c3",
          "e8", "e9", "L", "a9 c4",
          "e10", "e11", "L", "a10 a11 c5",
          "e12", "e13 W2", "L", "a12 a13 c6",
          "e14", "e15", "a14 a15", "c7 K"],
      1: ["e0", "e1", "L", "L",
          "e2", "e3", "F0 F1 a1", "L",
          "e4", "e5", "a2 a3 c0", "L",
          "W1 e6", "e7", "a4 a5 c1", "L",
          "e8", "e9", "a6 a7 c2", "L",
          "e10", "e11", "a9 c3 c4", "L",
          "S1 e12", "W2 e13", "L", "a10 a11 c5",
          "S2 e14", "e15", "a12 a13 a14 c6", "a15 c7 K"],
      2: ["e0", "e1", "L", "L",
          "e2", "e3", "F0 F1", "L",
          "e4", "a1 a2 c0", "e5", "L",
          "W1 e6", "a3 a4 c1", "e7", "L",
          "e8", "a5 a6 c2", "e9", "L",
          "e10", "a7 a9 c3", "e11", "L",
          "S1 e12", "a10 a11 c4", "L", "W2 e13",
          "S2 e14", "e15 c5", "a12 a13 a14 c6", "a15 c7 K"],
    }
    def iteration(self, jp, loads=True):
        out = []
        kq = (jp + 1) & 1
        for p in range(64):
            if p < 16: out.append(self.mfma_qk('a', p, kq))
            elif p < 32: out.append(self.mfma_pv('b', p - 16, jp))
            elif p < 48: out.append(self.mfma_qk('b', p - 32, kq))
            else: out.append(self.mfma_pv('a', p - 48, kq))
            if p < 16: x, u = 'b', p + 16
            elif p < 48: x, u = 'a', p - 16
            else: x, u = 'b', p - 48
            y = 'a' if x == 'b' else 'b'
            for tok in self.PERIOD[u].split():
                c = tok[0]
                if c == 'L':
                    li = sum(self.PERIOD[v].split().count('L') for v in range(u))
                    if not loads: continue
                    if x == 'a': out.append(self.ld_v(li, jp))
                    elif p >= 48: out.append(self.ld_k(li, kq))
                    else: out.append(self.ld_k(li, jp))
                elif c == 'e': out.append(self.op_e(x, int(tok[1:])))
                elif c == 'a': out.append(self.op_a(x, int(tok[1:])))
                elif c == 'c': out.append(self.op_c(x, int(tok[1:])))
                elif c == 'F': out.append(self.op_f(y, int(tok[1:])))
                elif c == 'K': out += self.op_chk(x)
                elif c == 'W':
                    if tok == "W2" and x == 'a': out.append("@WAIT_V")
                    if tok == "W1" and x == 'b': out.append("@WAIT_K")
                elif c == 'S':
                    if x == 'a' and loads: out.append("@" + tok)
        return out
    def emit_iter(self, it):
        A = self.A
        lastv = max(k for k, s in enumerate(it) if s.startswith("buffer_load") and (" v%d," % V_VOFF1) in s)
        for k, s in enumerate(it):
            if s == "@WAIT_V": s = "s_waitcnt vmcnt(%d)" % self.wv
            if s == "@WAIT_K": s = "s_waitcnt vmcnt(%d)" % self.wk
            if s == "@S1": s = "s_add_u32 m0, m0, 1"
            if s == "@S2":
                assert k > lastv
                s = "s_movrels_b32 s%d, s%d" % (S_OFF, S_TBL)
            A(s)
            if "@S1" not in it:
                if k == lastv - 5: A("s_add_u32 m0, m0, 1")
                if k == lastv + 6: A("s_movrels_b32 s%d, s%d" % (S_OFF, S_TBL))
    def compute_waits(self):
        self.stubs = []
        it = self.iteration(0)
        seq = it + it + it
        n = len(it)
        isld = lambda s: s.startswith("buffer_load")
        isv = lambda s: isld(s) and ((" v%d," % V_VOFF0) in s or (" v%d," % V_VOFF1) in s)
        kv = 2 * n + it.index("@WAIT_V")
        lastv = max(k for k in range(n, 2 * n) if isv(seq[k]))
        self.wv = sum(1 for k in range(lastv + 1, kv) if isld(seq[k]))
        kk = 2 * n + it.index("@WAIT_K")
        idx = [k for k, s in enumerate(it) if s.startswith("v_mfma")]
        lastk = 2 * n + max(k for k in range(0, idx[16]) if isld(it[k]))
        self.wk = sum(1 for k in range(lastk + 1, kk) if isld(seq[k]))
        self.uid = 0
        self.stubs = []

    def xlane(self, op, t0, t1):
        o = []
        for sw in ("v_permlane16_swap_b32", "v_permlane32_swap_b32"):
            o += ["v_mov_b32 v%d, v%d" % (t1, t0), "s_nop 1", "%s v%d, v%d" % (sw, t0, t1), "s_nop 1", "%s v%d, v%d, v%d" % (op, t0, t0, t1)]
        return o
    def max8(self, t0, s, last):
        o = ["v_max3_f32 v%d, v%d, v%d, v%d" % (t0, s, s + 1, s + 2)]
        o += ["v_max3_f32 v%d, v%d, v%d, v%d" % (t0, s + r, s + r + 1, t0) for r in (3, 5)]
        o.append("v_max3_f32 v%d, v%d, v%d, %s" % (t0, s + 7, t0, last))
        return o

    def slow_sub(self, x):
        A = self.A
        t0, t1 = V_TMP0, V_TMP1
        A("L_sub_%s:" % x)
        A("s_nop 7")
        for ql in range(2):
            s, nm = V_S[x] + 8 * ql, V_NM[x] + 4 * ql
            for l in self.max8(t0, s, "0") + self.xlane("v_max_f32", t0, t1): A(l)
            A("v_exp_f32 v%d, -v%d" % (t1, t0))
            for r in range(8): A("v_sub_f32 v%d, v%d, v%d" % (s + r, s + r, t0))
            for r in range(4): A("v_sub_f32 v%d, v%d, v%d" % (nm + r, nm + r, t0))
            A("v_mul_f32 v%d, v%d, v%d" % (V_L[x] + ql, V_L[x] + ql, t1))
            for r in range(32):
                a = A_O(x, ql, 0) + r
                A("v_accvgpr_read_b32 v%d, a%d\nv_mul_f32 v%d, v%d, v%d\nv_accvgpr_write_b32 a%d, v%d" % (V_TMP2, a, V_TMP2, V_TMP2, t1, a, V_TMP2))
        for r in range(16): A(self.op_e(x, r))
        A("s_nop 0")
        for r in range(16):
            if r & 7: A(self.op_a(x, r))
        for k in range(8): A(self.op_c(x, k))
        A("s_nop 3")
        A("s_setpc_b64 s[%d:%d]" % (S_RET, S_RET + 1))

    def first_fix(self, x):
        seqs = []
        for ql in range(2):
            s, nm = V_S[x] + 8 * ql, V_NM[x] + 4 * ql
            t0, t1 = V_T[x] + ql, V_E[x] + ql
            o = self.max8(t0, s, "v%d" % t0) + [l for l in self.xlane("v_max_f32", t0, t1)]
            o += ["v_sub_f32 v%d, v%d, v%d" % (s + r, s + r, t0) for r in range(8)]
            o += ["v_sub_f32 v%d, 0, v%d" % (nm + r, t0) for r in range(4)]
            seqs.append(o)
        out = []
        for a, b in zip(*seqs):
            if a == "s_nop 1": out.append("s_nop 0")
            else: out += [a, b]
        return out

    def main(self):
        A = self.A; M = self.M
        for r in range(4): A("v_mov_b32 v%d, 0" % (V_L['a'] + r))
        pend = [(self.ld_v(k, 0), "V0") for k in range(8)] + [None] + [(self.ld_k(k, 1), "K1") for k in range(8)] + [(self.ld_v(k, 1), "V1") for k in range(8)]
        def nxt():
            if not pend: return
            if pend[0] is None:
                pend.pop(0); A("s_mov_b32 s%d, s%d" % (S_OFF, S_TBL + 1))
            M(*pend.pop(0))
        for k in range(self.vpre): nxt()
        self.wait("K0", " lgkmcnt(0)")
        self.stamp(4)
        for idx in range(16):
            A(self.mfma_qk('a', idx, 0, first_c="0"))
            if idx & 1: nxt()
        seq = self.first_fix('a')
        for r in range(16):
            seq.append(self.op_e('a', r))
            if r >= 1 and ((r - 1) & 7): seq.append(self.op_a('a', r - 1))
        seq += [self.op_c('a', 0), self.op_a('a', 15)] + [self.op_c('a', k) for k in range(1, 8)]
        pos = 0
        for idx in range(16):
            A(self.mfma_qk('b', idx, 0, first_c="0"))
            if idx < 4:
                if idx & 1: nxt()
            else:
                for s in seq[pos:pos + 2]: A(s)
                pos += 2
        rest = seq[pos:] + self.first_fix('b')
        for k, s in enumerate(rest):
            A(s)
            if k % 4 == 3: nxt()
        while pend: nxt()
        A("s_mov_b32 m0, 2\ns_mov_b32 s%d, s%d" % (S_OFF, S_TBL + 2))
        self.wait("V0")
        self.flag_store(1)
        it = self.iteration(1)
        idx = [k for k, s in enumerate(it) if s.startswith("v_mfma")]
        tail = it[idx[48]:]
        nm = 0
        for s in tail:
            if s.startswith("v_mfma"):
                s = self.mfma_pv('a', nm, 0, first=True); nm += 1
            if s == "@WAIT_K": self.wait("K1"); continue
            if s.startswith("buffer_load"): M(s, "K2"); continue
            A(s)
        self.stamp(5)
        self.cstamp(8)
        A("global_load_dword v%d, v%d, %s sc1       ; stage-1 flags" % (V_FA, V_PA, sp(S_WS)))
        A("s_mov_b32 s%d, 4" % S_LIM)
        A(".p2align 6")
        A("L_loop:")
        self.emit_iter(self.iteration(0))
        A("s_cmp_eq_u32 m0, 3\ns_cbranch_scc1 L_hook")
        A("L_mid:")
        self.emit_iter(self.iteration(1))
        A("s_cmp_lt_u32 m0, s%d\ns_cbranch_scc1 L_loop" % S_LIM)
        A("s_cmp_eq_u32 m0, 16\ns_cbranch_scc1 L_tail")
        A("s_cmp_eq_u32 m0, 6\ns_cbranch_scc1 L_ev2")
        A("v_and_b32 v%d, 4, v%d\nv_cmp_eq_u32 vcc, 0, v%d\nv_xor_b32 v%d, %d, v%d\nv_add_u32 v%d, %d, v%d\nv_cndmask_b32 v%d, v%d, v%d, vcc" %
          (V_TMP0, V_LANE, V_TMP0, V_TMP1, 8 << self.fs, V_PA, V_TMP2, 2 << self.fs, V_PA, V_PA, V_TMP2, V_TMP1))
        A("global_load_dword v%d, v%d, %s sc1" % (V_FA, V_PA, sp(S_WS)))
        A("s_mov_b32 s%d, 6\ns_branch L_loop" % S_LIM)
        A("L_ev2:")
        A("s_mov_b32 s%d, 16" % S_LIM)
        A("v_cmp_ne_u32 vcc, s%d, v%d\ns_cbranch_vccz L_loop" % (S_TAG, V_FA))
        self.poll(V_PA)
        A("s_branch L_loop")
        A("L_hook:")
        A("s_waitcnt vmcnt(16)")
        A("v_cmp_ne_u32 vcc, s%d, v%d\ns_cbranch_vccz L_mid" % (S_TAG, V_FA))
        self.poll(V_PA)
        A("s_branch L_mid")
        A("L_tail:")
        it = self.iteration(0, loads=False)
        for s in it:
            if s in ("@WAIT_V", "@WAIT_K"): s = "s_waitcnt vmcnt(0)"
            A(s)
        it = self.iteration(1, loads=False)
        idx = [k for k, s in enumerate(it) if s.startswith("v_mfma")]
        prev = ""
        for k, s in enumerate(it[:idx[32]]):
            if s.startswith("v_mfma") and k < idx[16]: continue
            if k >= idx[16] and not s.startswith("v_mfma"):
                if s not in (self.op_f('b', 0), self.op_f('b', 1)): continue
            if s.startswith("@"): continue
            if prev.startswith("v_exp") and not s.startswith("v_exp"): A("s_nop 0")
            A(s); prev = s
        self.stamp(6)
        self.cstamp(9)

    def epilogue(self):
        A = self.A
        ln = V_LANE
        NM = V_NM['a']; LL = V_L['a']
        seqs = [self.xlane("v_add_f32", LL + q, 16 + q) for q in range(4)]
        for grp in zip(*seqs):
            if grp[0].startswith("s_nop"): continue
            for l in grp: A(l)
        for q in range(4): A("v_mov_b32 v%d, v%d" % (NM + 4 * q + 1, LL + q))
        A("s_lshl_b32 s%d, s%d, 11\ns_add_u32 s%d, s%d, %d" % (S_T0, S_W, S_T0, S_T0, L_ST))
        A("v_lshlrev_b32 v44, 3, v%d\nv_add_u32 v45, s%d, v44" % (ln, S_T0))
        for q in range(4): A("ds_write_b64 v45, v[%d:%d] offset:%d" % (NM + 4 * q, NM + 4 * q + 1, 512 * q))
        for d in range(4):
            skip = self.label("L_skipw")
            A("s_cmp_eq_u32 s%d, %d\ns_cbranch_scc1 %s" % (S_W, d, skip))
            A("s_sub_u32 s%d, s%d, %d\ns_and_b32 s%d, s%d, 3\ns_lshl_b32 s%d, s%d, 13\ns_add_u32 s%d, s%d, %d" %
              (S_T0, S_W, d + 1, S_T0, S_T0, S_T0, S_T0, S_T0, S_T0, L_O + d * 3 * 8192))
            A("v_add_u32 v45, s%d, v%d" % (S_T0, V_KOFF0))
            for idx in range(8): A("ds_write_b128 v45, a[%d:%d] offset:%d" % (32 * d + 4 * idx, 32 * d + 4 * idx + 3, idx * 1024))
            A("%s:" % skip)
        own = 128
        done = self.label("L_own")
        for d in range(4):
            nxt = self.label("L_ownn")
            if d < 3: A("s_cmp_lg_u32 s%d, %d\ns_cbranch_scc1 %s" % (S_W, d, nxt))
            for r in range(32): A("v_accvgpr_read_b32 v%d, a%d" % (own + r, 32 * d + r))
            if d < 3: A("s_branch %s\n%s:" % (done, nxt))
        A("%s:" % done)
        A("s_waitcnt lgkmcnt(0)\ns_barrier")
        st = 16
        A("s_lshl_b32 s%d, s%d, 9\ns_add_u32 s%d, s%d, %d" % (S_T1, S_W, S_T1, S_T1, L_ST))
        for k in range(4):
            A("s_add_u32 s%d, s%d, %d\ns_and_b32 s%d, s%d, 3\ns_lshl_b32 s%d, s%d, 11\ns_add_u32 s%d, s%d, s%d" % (S_T0, S_W, k, S_T0, S_T0, S_T0, S_T0, S_T0, S_T0, S_T1))
            A("v_add_u32 v45, s%d, v44" % S_T0)
            A("ds_read_b64 v[%d:%d], v45" % (st + 2 * k, st + 2 * k + 1))
        A("s_mul_i32 s%d, s%d, 24576\ns_add_u32 s%d, s%d, %d\nv_add_u32 v45, s%d, v%d" % (S_T0, S_W, S_T0, S_T0, L_O, S_T0, V_KOFF0))
        pb = 160
        order = [(k, idx) for idx in range(8) for k in range(3)]
        for (k, idx) in order[:9]:
            r = pb + (k * 8 + idx) * 4
            A("ds_read_b128 v[%d:%d], v45 offset:%d" % (r, r + 3, k * 8192 + idx * 1024))
        A("s_waitcnt lgkmcnt(9)")
        F = 32
        A("v_min3_f32 v40, v%d, v%d, v%d\nv_min_f32 v40, v40, v%d" % (st, st + 2, st + 4, st + 6))
        for k in range(4): A("v_sub_f32 v%d, v40, v%d" % (F + k, st + 2 * k))
        for k in range(4): A("v_exp_f32 v%d, v%d" % (F + k, F + k))
        A("s_nop 0")
        A("v_mul_f32 v41, v%d, v%d" % (F, st + 1))
        for k in range(1, 4): A("v_fmac_f32 v41, v%d, v%d" % (F + k, st + 2 * k + 1))
        A("v_rcp_f32 v41, v41\ns_nop 0")
        for k in range(4): A("v_mul_f32 v%d, v%d, v41" % (F + k, F + k))
        A("s_lshl_b32 s%d, s%d, 19\ns_lshl_b32 s%d, s%d, 14\ns_add_u32 s%d, s%d, s%d\ns_lshl_b32 s%d, s%d, 12\ns_add_u32 s%d, s%d, s%d" %
          (S_T0, S_H, S_T1, S_I, S_T0, S_T0, S_T1, S_T1, S_W, S_T0, S_T0, S_T1))
        A("v_and_b32 v42, 15, v%d\nv_lshrrev_b32 v43, 4, v%d\nv_lshlrev_b32 v42, 8, v42\nv_lshl_add_u32 v42, v43, 5, v42\nv_add_u32 v42, s%d, v42" % (ln, ln, S_T0))
        issued = 9
        ob = 48
        for idx in range(8):
            while issued < min(24, 3 * idx + 12):
                k, i2 = order[issued]
                r = pb + (k * 8 + i2) * 4
                A("ds_read_b128 v[%d:%d], v45 offset:%d" % (r, r + 3, k * 8192 + i2 * 1024)); issued += 1
            A("s_waitcnt lgkmcnt(%d)" % (issued - 3 * idx - 3))
            for pr in range(2):
                r = own + idx * 4 + 2 * pr
                A("v_pk_mul_f32 %s, %s, %s op_sel_hi:[1,0]" % (P2(r), P2(r), P2(F)))
                for k in range(3):
                    fr = F + 1 + k
                    q = fr & 1
                    A("v_pk_fma_f32 %s, %s, %s, %s op_sel:[0,%d,0] op_sel_hi:[1,%d,1]" % (P2(r), P2(pb + (k * 8 + idx) * 4 + 2 * pr), P2(fr & ~1), P2(r), q, q))
            if (idx & 3) == 3:
                dh = idx >> 2
                for hf in range(2):
                    o = ob + (dh * 2 + hf) * 4
                    for ii in range(2):
                        i = 2 * hf + ii
                        for tp in range(2):
                            A("v_cvt_pk_bf16_f32 v%d, v%d, v%d" % (o + 2 * ii + tp, own + (dh * 4 + 2 * tp) * 4 + i, own + (dh * 4 + 2 * tp + 1) * 4 + i))
                    A("global_store_dwordx4 v42, v[%d:%d], %s offset:%d %s" % (o, o + 3, sp(S_OUT), 128 * dh + 16 * hf, self.omod))

    def dump_stamps(self):
        if not self.stamps: return
        A = self.A
        A("s_lshl_b32 s100, s2, 2\ns_add_u32 s100, s100, s%d\ns_lshl_b32 s100, s100, 6\ns_add_u32 s100, s100, %d" % (S_W, 16 << 20))
        A("v_lshlrev_b32 v2, 2, v%d\nv_add_u32 v2, s100, v2\ns_mov_b64 exec, 0xffff" % V_LANE)
        A("global_store_dword v2, v%d, %s\ns_mov_b64 exec, -1" % (V_STAMP, sp(S_WS)))

    def build(self):
        A = self.A
        K = NAME + "_kernel"
        self.cold = []
        self.compute_waits()
        hdr = open("cdna_kernels/%s.s.ref" % NAME).read().split("; @launch")[0]
        A(hdr.rstrip("\n"))
        A("; @launch grid=(256,1,1) block=(256,1,1) lds=%d" % LDS_BYTES)
        A('.amdgcn_target "amdgcn-amd-amdhsa--gfx950"\n.text')
        A(".globl %s\n.p2align 8\n.type %s,@function\n%s:" % (K, K, K))
        self.phase1()
        self.main()
        self.epilogue()
        A("s_cmp_lg_u32 s2, 0\ns_cbranch_scc1 L_noep\ns_cmp_lg_u32 s%d, 0\ns_cbranch_scc1 L_noep" % S_W)
        A("v_mov_b32 v1, %d\nv_mov_b32 v2, s%d\ns_mov_b64 exec, 1\nglobal_store_dword v1, v2, %s sc1\ns_mov_b64 exec, -1" % (WS_EPOCH, S_TAG, sp(S_WS)))
        A("L_noep:")
        self.stamp(7)
        self.dump_stamps()
        if self.probe is not None:
            A("v_readlane_b32 s70, v7, %d\ns_nop 3\ns_add_u32 s70, s70, 3000\nL_spin:\ns_memrealtime s[100:101]\ns_waitcnt lgkmcnt(0)\ns_sub_u32 s71, s70, s100\ns_cmp_gt_i32 s71, 0\ns_cbranch_scc1 L_spin" % self.probe)
        A("L_end:\ns_endpgm")
        live = [st for st in self.stubs if any(s.endswith(' ' + st[0]) for s in self.L)]
        for stub, ret, x in live:
            A("%s:\ns_call_b64 s[%d:%d], L_sub_%s\ns_branch %s" % (stub, S_RET, S_RET + 1, x, ret))
        self.subs()
        A("L_codeend:")
        for lab, ret, regs in self.cold:
            A("%s:" % lab)
            for k in range(0, len(regs), 2): self.round_pair(regs[k])
            A("s_branch %s" % ret)
        self.slow_sub('a'); self.slow_sub('b')
        A('.section .rodata,"a"')
        A('.p2align 6\n.amdhsa_kernel %s\n  .amdhsa_next_free_vgpr 512\n  .amdhsa_next_free_sgpr 102\n  .amdhsa_accum_offset 256\n'
          '  .amdhsa_group_segment_fixed_size 0\n  .amdhsa_kernarg_size 112\n  .amdhsa_user_sgpr_count 2\n'
          '  .amdhsa_user_sgpr_kernarg_segment_ptr 1\n  .amdhsa_system_sgpr_workgroup_id_x 1\n.end_amdhsa_kernel' % K)
        return "\n".join(self.L) + "\n"

if __name__ == "__main__":
    ap = argparse.ArgumentParser()
    ap.add_argument("out")
    ap.add_argument("--stamps", action="store_true")
    ap.add_argument("--probe", type=int, default=None)
    ap.add_argument("--sleep", type=int, default=4)
    ap.add_argument("--fs", type=int, default=6)
    ap.add_argument("--omod", default="")
    ap.add_argument("--qsplit", type=int, default=9)
    ap.add_argument("--pollearly", action="store_true")
    ap.add_argument("--r2pos", type=int, default=0)
    ap.add_argument("--vpre", type=int, default=4)
    ap.add_argument("--r1pos", type=int, default=1)
    ap.add_argument("--period", type=int, default=0)
    ap.add_argument("--exactw", type=int, default=1)
    ap.add_argument("--cpf", type=int, default=0)
    ap.add_argument("--hshare", type=int, default=0)
    ap.add_argument("--qbar", type=int, default=0)
    ap.add_argument("--qt", default=""); ap.add_argument("--kt", default="")
    a = ap.parse_args()
    g = Gen(**vars(a))
    open(a.out, "w").write(g.build())
    print("wv", g.wv, "wk", g.wk, "lines", len(g.L))
```

```python
import sys, struct, argparse
NAME = "standalone__kv_cache_quant_pre_rope_vs_post_rope__prompt"
def f32bits(x): return struct.unpack("<I", struct.pack("<f", x))[0]
CSCALE = 1.4426950408889634 * (128.0 ** -0.5)

V_FA = 0
V_KOFF0, V_KOFF1, V_VOFF0, V_VOFF1 = 1, 2, 3, 4
V_LANE, V_PA, V_STAMP = 5, 6, 7
V_T = {'a': 8, 'b': 10}
V_L = {'a': 64, 'b': 66}
V_CH = 68
V_TMP0, V_TMP1, V_TMP2, V_TMP3 = 12, 13, 14, 15
V_S = {'a': 16, 'b': 32}
V_NM = {'a': 48, 'b': 56}
V_E = {'a': 80, 'b': 96}
V_P = {'a': 112, 'b': 120}
V_K = [128, 160]
V_V = [192, 224]
XI = {'a': 0, 'b': 1}
def A_O(x, ql, dt): return ((2 * XI[x] + ql) * 8 + dt) * 4
def A_Q(x, ql, ks): return 128 + ((2 * XI[x] + ql) * 4 + ks) * 4
V_VSC = 36
A_K0, A_K1, A_V = 192, 208, 224
S_Q, S_QK, S_KS, S_KZ, S_QV, S_VS, S_VZ, S_QC, S_QS, S_KC, S_KSN, S_OUT, S_DBG, S_WS = [4 + 2 * i for i in range(14)]
S_H, S_I, S_W, S_TAG = 32, 33, 34, 35
S_T0, S_T1, S_T2, S_T3 = 36, 37, 38, 39
S_SRD = 40
S_OFF, S_THR = 44, 45
S_C = 46
S_TBL = 48
S_RET = 66
S_SC = 68
S_CNT, S_LIM, S_HOOK = 3, 65, 28
S_KH, S_VK, S_ARG = 29, 0, 1
L_KT = 0
L_TAB = 9216
L_Q = L_TAB + 16384
L_ST = L_Q + 16 * 1040
L_O = L_ST + 8192
LDS_BYTES = L_O + 96 * 1024
WS_FK = 8 << 20
WS_FV = WS_FK + (512 << 10)
WS_EPOCH = 9 << 20
THRESH = 1024.0
P2 = lambda r: "v[%d:%d]" % (r, r + 1)
sp = lambda r: "s[%d:%d]" % (r, r + 1)

class Gen:
    def __init__(self, **kw):
        self.L = []
        self.uid = 0
        self.stamps = kw.get("stamps", False)
        self.probe = kw.get("probe", None)
        self.sleep = kw.get("sleep", 4)
        self.fs = kw.get("fs", 6)
        self.abl = kw.get("abl", "")
        self.omod = kw.get("omod", "")
        self.qsplit = kw.get("qsplit", 9)
        self.pollearly = kw.get("pollearly", False)
        self.r2pos = kw.get("r2pos", 0)
        self.vpre = kw.get("vpre", 4)
        self.r1pos = kw.get("r1pos", 1)
        self.PERIOD = self.PERIODS[kw.get("period", 0)]
        self.hshare = kw.get("hshare", 0)
        self.qbar = kw.get("qbar", 0)
        self.qt = kw.get("qt", ""); self.kt = kw.get("kt", "")
        self.vm = []; self.vl = []
        self.exactw = kw.get('exactw', 1)
        self.cpf = kw.get('cpf', 0)
        self.cpf2 = kw.get('cpf2', 0)
    def A(self, s):
        for line in s.split("\n"): self.L.append(line)
    def label(self, base):
        self.uid += 1
        return "%s_%d" % (base, self.uid)
    def M(self, s, tag):
        self.A(s); self.vm.append(tag); self.vl.append(tag)
    def Mlo(self, s, tag):
        self.A(s); self.vl.append(tag)
    def Mhi(self, s, tag):
        self.A(s); self.vm.append(tag)
    def note(self, tag, nlo, nhi):
        self.vl += [tag] * nlo; self.vm += [tag] * nhi
    def wait(self, tag, extra=""):
        cnt = lambda v: len(v) - 1 - max(k for k, t in enumerate(v) if t == tag)
        nh, nl = cnt(self.vm), cnt(self.vl)
        assert max(nh, nl) <= 63
        if nh == nl or not self.exactw:
            self.A("s_waitcnt vmcnt(%d)%s" % (min(nh, nl), extra))
        else:
            lab = self.label("L_w")
            self.A("s_waitcnt vmcnt(%d)%s" % (max(nh, nl), extra))
            self.A("s_cmp_%s_u32 s%d, 2\ns_cbranch_scc1 %s\ns_waitcnt vmcnt(%d)\n%s:" % ("lt" if nl > nh else "ge", S_W, lab, min(nh, nl), lab))
    def cstamp(self, idx):
        if self.stamps: self.A("s_memtime s[100:101]\ns_waitcnt lgkmcnt(0)\nv_writelane_b32 v%d, s100, %d" % (V_STAMP, idx))
    def stamp(self, idx):
        if self.probe is not None:
            if idx != self.probe: return
        elif not self.stamps: return
        self.A("s_memrealtime s[100:101]\ns_waitcnt lgkmcnt(0)\nv_writelane_b32 v%d, s100, %d" % (V_STAMP, idx))

    def unpack(self, dst, src):
        self.A("v_lshlrev_b32 v%d, 16, v%d\nv_and_b32 v%d, 0xffff0000, v%d" % (dst, src, dst + 1, src))
    def round_pair(self, r):
        self.A("v_cvt_pk_bf16_f32 v%d, v%d, v%d" % (r + 1, r, r + 1))
        self.A("v_lshlrev_b32 v%d, 16, v%d\nv_and_b32 v%d, 0xffff0000, v%d" % (r, r + 1, r + 1, r + 1))
    def int_to_f32(self, regs, tmp):
        for r in regs: self.A("v_cvt_f32_i32 v%d, v%d" % (r, r))
        self.int_guard(regs, tmp)
    def int_guard(self, regs, tmp):
        A = self.A
        A("v_max3_f32 v%d, |v%d|, |v%d|, 0" % (tmp, regs[0], regs[1]))
        for k in range(2, len(regs), 2):
            A("v_max3_f32 v%d, |v%d|, |v%d|, v%d" % (tmp, regs[k], regs[k + 1], tmp))
        lab = self.label("L_big"); ret = self.label("L_bigret")
        A("v_cmp_lt_f32 vcc, 0x43800000, v%d" % tmp)
        A("s_cbranch_vccnz %s" % lab)
        A("%s:" % ret)
        self.cold.append((lab, ret, list(regs)))
    def unpack_tab(self, dst, src):
        for p in range(4):
            for k in range(4): self.unpack(dst + 8 * p + 2 * k, src + 4 * k + p)
    def rope_p(self, a, b, tab, t, u, o1, o2):
        A = self.A
        A("v_pk_mul_f32 %s, %s, %s" % (P2(t), P2(a), P2(tab)))
        A("v_pk_mul_f32 %s, %s, %s" % (P2(u), P2(b), P2(tab + 2)))
        A("v_pk_fma_f32 %s, %s, %s, %s neg_lo:[1,0,0] neg_hi:[1,0,0]" % (P2(t), P2(b), P2(tab + 4), P2(t)))
        A("v_pk_fma_f32 %s, %s, %s, %s" % (P2(u), P2(a), P2(tab + 6), P2(u)))
        A("v_cvt_pk_bf16_f32 v%d, v%d, v%d" % (o1, t, t + 1))
        A("v_cvt_pk_bf16_f32 v%d, v%d, v%d" % (o2, u, u + 1))
    def k_dequant(self, rb, sc, tmp):
        A = self.A
        z = sc + 1
        self.int_to_f32(list(range(rb, rb + 16)), tmp)
        A("v_lshlrev_b32 v%d, 16, v%d\nv_lshlrev_b32 v%d, 16, v%d" % (sc, sc, z, z))
        A("v_mul_f32 v%d, v%d, v%d" % (z, z, sc))
        for p in range(8):
            r = rb + 2 * p
            A("v_pk_fma_f32 %s, %s, %s, %s op_sel:[0,0,1] op_sel_hi:[1,0,1] neg_lo:[0,0,1] neg_hi:[0,0,1]" % (P2(r), P2(r), P2(sc), P2(sc)))
    def v_compute(self, x, rawsc, sc, nz, tmp, o):
        A = self.A
        for p in range(4):
            self.unpack(sc + 2 * p, rawsc + p)
            self.unpack(nz + 2 * p, rawsc + 4 + p)
        for p in range(4): A("v_pk_mul_f32 %s, %s, %s" % (P2(nz + 2 * p), P2(nz + 2 * p), P2(sc + 2 * p)))
    def v_compute2(self, x, sc, nz, tmp, o):
        A = self.A
        self.int_to_f32(list(range(x, x + 16)), tmp)
        for j in range(8):
            r = x + 2 * j; q = j & 1
            A("v_pk_fma_f32 %s, %s, %s, %s op_sel:[0,%d,%d] op_sel_hi:[1,%d,%d] neg_lo:[0,0,1] neg_hi:[0,0,1]" %
              (P2(r), P2(r), P2(sc + (j & ~1)), P2(nz + (j & ~1)), q, q, q, q))
        for e in range(2):
            for jj in range(4):
                A("v_cvt_pk_bf16_f32 v%d, v%d, v%d" % (o + 4 * e + jj, x + 4 * jj + e, x + 4 * jj + 2 + e))

    def raw_loads(self, f, rk, rv, bq, bs, bv, bvs, tagk, tagv):
        o = []
        for k, off in enumerate((0, 16, 256, 272)):
            o.append(("global_load_dwordx4 %s[%d:%d], v%d, %s offset:%d nt" % (f, rk + 4 * k, rk + 4 * k + 3, bq, sp(S_QK), off), tagk))
        o.append(("global_load_ushort %s%d, v%d, %s" % (f, rk + 16, bs, sp(S_KS)), tagk))
        o.append(("global_load_ushort %s%d, v%d, %s" % (f, rk + 17, bs, sp(S_KZ)), tagk))
        for j in range(8):
            off = (8 * (j >> 2) + (j & 3)) * 512 - 2560
            o.append(("global_load_dwordx2 %s[%d:%d], v%d, %s offset:%d nt" % (f, rv + 2 * j, rv + 2 * j + 1, bv, sp(S_QV), off), tagv))
        for q, sr in enumerate((S_VS, S_VZ)):
            for hf in range(2):
                r = rv + 16 + 4 * q + 2 * hf
                o.append(("global_load_dwordx2 %s[%d:%d], v%d, %s offset:%d" % (f, r, r + 1, bvs, sp(sr), 16 * hf), tagv))
        return o

    def flag_store(self, mask):
        A = self.A
        A("v_mov_b32 v%d, s%d" % (V_TMP3, S_TAG))
        A("s_mov_b64 exec, %d" % mask)
        self.M("global_store_dword v%d, v%d, %s sc1" % (V_FA, V_TMP3, sp(S_WS)), "flag")
        A("s_mov_b64 exec, -1")

    def poll(self, reg):
        A = self.A
        lab = self.label("L_poll"); done = self.label("L_polled")
        A("s_mov_b32 s%d, 0" % S_CNT)
        A("%s:" % lab)
        A("global_load_dword v%d, v%d, %s sc1" % (V_TMP0, reg, sp(S_WS)))
        A("s_add_u32 s%d, s%d, 1" % (S_CNT, S_CNT))
        A("s_waitcnt vmcnt(0)")
        A("v_cmp_ne_u32 vcc, s%d, v%d" % (S_TAG, V_TMP0))
        A("s_cbranch_vccz %s" % done)
        if self.sleep: A("s_sleep %d" % self.sleep)
        A("s_cmp_lt_u32 s%d, 0x8000\ns_cbranch_scc1 %s" % (S_CNT, lab))
        A("%s:" % done)

    XA, XB, XV = 16, 80, 96
    AQ, AT, LQ, VT, LW, LR, BO, BK = 32, 33, 34, 35, 36, 37, 38, 39
    KSC = 40
    BVO, PV0 = 44, 45
    RT, VS, RQ, TB, KT, UQ = 48, 64, 128, 176, 192, 224
    def k_raw_loads(self, slot, vaddr, tag, M):
        for k, off in enumerate((0, 16, 256, 272)):
            M("global_load_dwordx4 v[%d:%d], v%d, %s offset:%d nt" % (slot + 4 * k, slot + 4 * k + 3, vaddr, sp(S_QK), off), tag)
    def v_raw_loads(self, vaddr, tag, M):
        for j in range(8):
            M("global_load_dwordx4 v[%d:%d], v%d, %s offset:%d nt" % (self.XV + 4 * j, self.XV + 4 * j + 3, vaddr + (j >> 2), sp(S_QV), (j & 3) * 512), tag)

    def subs(self):
        A = self.A
        X, TB, KT = self.XA, self.TB, self.KT
        fs = self.fs
        O = TB + 4
        A("L_ktask1b:      ; raw data in slot B")
        for r in range(16): A("v_cvt_f32_i32 v%d, v%d" % (X + r, self.XB + r))
        A("s_mov_b32 s%d, s%d\nv_mov_b32 v%d, v%d\nv_mov_b32 v%d, v%d\ns_branch L_kbody" % (S_T3, S_ARG, self.KSC, self.KSC + 2, self.KSC + 1, self.KSC + 3))
        A("L_ktask1:")
        A("s_mov_b32 s%d, s%d\nv_mov_b32 v%d, v%d\nv_mov_b32 v%d, v%d\ns_branch L_kcvt" % (S_T3, S_ARG, self.KSC, self.KSC + 2, self.KSC + 1, self.KSC + 3))
        A("L_ktask0:")
        A("s_mov_b32 s%d, s%d" % (S_T3, S_KH))
        A("L_kcvt:")
        for r in range(16): A("v_cvt_f32_i32 v%d, v%d" % (X + r, X + r))
        A("L_kbody:")
        self.int_guard(list(range(X, X + 16)), TB)
        for p in range(8):
            r = X + 2 * p
            A("v_pk_fma_f32 %s, %s, %s, %s op_sel:[0,0,1] op_sel_hi:[1,0,1] neg_lo:[0,0,1] neg_hi:[0,0,1]" % (P2(r), P2(r), P2(self.KSC), P2(self.KSC)))
        for p in range(4): self.rope_p(X + 2 * p, X + 8 + 2 * p, KT + 8 * p, TB, TB + 2, O + p, O + 4 + p)
        A("ds_write_b128 v%d, v[%d:%d]\nds_write_b128 v%d, v[%d:%d] offset:1152" % (self.LW, O, O + 3, self.LW, O + 4, O + 7))
        A("v_add_u32 v%d, s%d, v%d" % (TB, S_T3, self.BO))
        A("s_lshr_b32 s%d, s%d, 12\ns_add_u32 s%d, s%d, s2\ns_lshl_b32 s%d, s%d, %d\ns_add_u32 s%d, s%d, %d" % (S_T0, S_T3, S_T0, S_T0, S_T0, S_T0, fs, S_T0, S_T0, WS_FK))
        A("s_waitcnt lgkmcnt(0)")
        A("ds_read_b128 v[%d:%d], v%d\nds_read_b128 v[%d:%d], v%d offset:1152" % (O, O + 3, self.LR, O + 4, O + 7, self.LR))
        A("v_mov_b32 v%d, s%d" % (V_FA, S_T0))
        A("s_waitcnt lgkmcnt(1)")
        A("global_store_dwordx4 v%d, v[%d:%d], %s sc1" % (TB, O, O + 3, sp(S_WS)))
        A("s_waitcnt lgkmcnt(0)")
        A("global_store_dwordx4 v%d, v[%d:%d], %s offset:256 sc1" % (TB, O + 4, O + 7, sp(S_WS)))
        A("s_setpc_b64 s[%d:%d]" % (S_RET, S_RET + 1))
        A("L_vtask:")
        x = self.XV
        self.int_to_f32(list(range(x, x + 32)), TB)
        sc, nz = self.VS, self.VS + 8
        for j in range(8):
            q = j & 1
            for hf in range(2):
                r = x + 4 * j + 2 * hf
                A("v_pk_fma_f32 %s, %s, %s, %s op_sel:[0,%d,%d] op_sel_hi:[1,%d,%d] neg_lo:[0,0,1] neg_hi:[0,0,1]" %
                  (P2(r), P2(r), P2(sc + (j & ~1)), P2(nz + (j & ~1)), q, q, q, q))
        for t in range(4):
            o = TB + 4 * t
            for jj in range(4): A("v_cvt_pk_bf16_f32 v%d, v%d, v%d" % (o + jj, x + 8 * jj + t, x + 8 * jj + 4 + t))
            A("global_store_dwordx4 v%d, v[%d:%d], %s offset:%d sc1" % (self.BVO, o, o + 3, sp(S_WS), 1024 * t))
        A("s_lshl_b32 s%d, s%d, 5\ns_add_u32 s%d, s%d, s%d\ns_lshl_b32 s%d, s%d, 2\ns_xor_b32 s%d, s%d, 2\ns_add_u32 s%d, s%d, s%d\ns_lshl_b32 s%d, s%d, %d\ns_add_u32 s%d, s%d, %d\nv_mov_b32 v%d, s%d" %
          (S_T0, S_H, S_T0, S_T0, S_I, S_T0, S_T0, S_T1, S_W, S_T0, S_T0, S_T1, S_T0, S_T0, fs, S_T0, S_T0, WS_FV, V_FA, S_T0))
        A("s_setpc_b64 s[%d:%d]" % (S_RET, S_RET + 1))

    def call_by_role(self, lo, hi):
        A = self.A
        l1 = self.label("L_role"); l2 = self.label("L_roled")
        A("s_cmp_ge_u32 s%d, 2\ns_cbranch_scc1 %s" % (S_W, l1))
        A("s_call_b64 s[%d:%d], %s\ns_branch %s" % (S_RET, S_RET + 1, lo, l2))
        A("%s:\ns_call_b64 s[%d:%d], %s\n%s:" % (l1, S_RET, S_RET + 1, hi, l2))

    def phase1(self):
        A = self.A; M = self.M
        ln = V_LANE
        AQ, AT, LQ, VT, LW, LR, BO, BK, KSC, BVO, PV0 = self.AQ, self.AT, self.LQ, self.VT, self.LW, self.LR, self.BO, self.BK, self.KSC, self.BVO, self.PV0
        RT, VS, RQ, TB, KT, UQ = self.RT, self.VS, self.RQ, self.TB, self.KT, self.UQ
        fs = self.fs
        nul = lambda s_, t_: A(s_)
        A("s_cmp_ge_u32 s2, 256\ns_cbranch_scc1 L_end")
        A("s_load_dwordx16 s[4:19], s[0:1], 0\ns_load_dwordx8 s[20:27], s[0:1], 64\ns_load_dwordx2 s[30:31], s[0:1], 104")
        A("v_lshrrev_b32 v1, 6, v0\nv_and_b32 v%d, 63, v0" % ln)
        hb = self.hshare
        if hb == 0:
            A("s_and_b32 s%d, s2, 7\ns_lshr_b32 s%d, s2, 3" % (S_H, S_I))
        else:
            m = (1 << hb) - 1
            A("s_and_b32 s%d, s2, %d\ns_bfe_u32 s%d, s2, 0x%x\ns_or_b32 s%d, s%d, s%d" % (S_H, 7 & ~m, S_T0, (hb << 16) | 3, S_H, S_H, S_T0))
            A("s_lshr_b32 s%d, s2, %d\ns_lshl_b32 s%d, s%d, %d\ns_and_b32 s%d, s2, %d\ns_or_b32 s%d, s%d, s%d" % (S_I, 3 + hb, S_I, S_I, hb, S_T0, m, S_I, S_I, S_T0))
        A("v_readfirstlane_b32 s%d, v1" % S_W)
        self.stamp(0)
        if self.cpf:
            A("; pull the kernel's code into L2 early: thread t reads one dword of code line t")
            A("s_getpc_b64 s[%d:%d]\nL_pc:" % (S_RET, S_RET + 1))
            A("s_sub_u32 s%d, s%d, L_pc-%s_kernel\ns_subb_u32 s%d, s%d, 0" % (S_RET, S_RET, NAME, S_RET + 1, S_RET + 1))
            A("v_lshlrev_b32 v14, 7, v0\nv_min_u32 v14, L_codeend-%s_kernel-4, v14" % NAME)
            A("global_load_dword v47, v14, s[%d:%d]" % (S_RET, S_RET + 1))
        A("s_lshr_b32 s%d, s2, 2\ns_and_b32 s%d, s%d, 2\ns_sub_u32 s%d, s%d, s%d\ns_and_b32 s%d, s%d, 3\ns_and_b32 s%d, s%d, 1\ns_lshl_b32 s%d, s%d, 2\ns_add_u32 s%d, s%d, s%d\ns_lshl_b32 s%d, s%d, 20" %
          (S_T0, S_T1, S_W, S_T1, S_T1, S_T0, S_T1, S_T1, S_T2, S_W, S_T2, S_T2, S_T1, S_T1, S_T2, S_KH, S_T1))
        A("s_xor_b32 s%d, s%d, 2\ns_sub_u32 s%d, s%d, s%d\ns_and_b32 s%d, s%d, 3\ns_lshr_b32 s%d, s%d, 1\ns_lshl_b32 s%d, s%d, 2\ns_add_u32 s%d, s%d, s%d" %
          (S_T0, S_W, S_T0, S_T0, S_H, S_T0, S_T0, S_T1, S_I, S_T1, S_T1, S_LIM, S_T0, S_T1))
        A("v_lshrrev_b32 v8, 3, v%d\nv_and_b32 v9, 7, v%d\nv_lshlrev_b32 v%d, 8, v8\nv_lshl_add_u32 v%d, v9, 4, v%d" % (ln, ln, AT, AT, AT))
        A("s_lshl_b32 s%d, s2, 11\nv_add_u32 v%d, s%d, v%d\nv_lshlrev_b32 v%d, 1, v%d\nv_add_u32 v10, s%d, v%d" % (S_T0, VT, S_T0, AT, BK, VT, S_KH, BK))
        A("s_lshl_b32 s%d, s%d, 20\ns_lshl_b32 s%d, s%d, 14\ns_add_u32 s%d, s%d, s%d\ns_and_b32 s%d, s%d, 1\ns_lshl_b32 s%d, s%d, 8\ns_add_u32 s%d, s%d, s%d" %
          (S_T0, S_H, S_T1, S_LIM, S_HOOK, S_T0, S_T1, S_T1, S_I, S_T1, S_T1, S_T0, S_HOOK, S_T1))
        A("v_lshrrev_b32 v12, 4, v%d\nv_and_b32 v13, 15, v%d\nv_lshlrev_b32 v%d, 11, v12\nv_lshl_add_u32 v%d, v13, 4, v%d\nv_add_u32 v%d, s%d, v%d\nv_add_u32 v%d, 8192, v%d" %
          (ln, ln, PV0, PV0, PV0, PV0, S_T0, PV0, PV0 + 1, PV0))
        A("; Q: row = 64 i + 16 w + 8u + (l>>3)")
        A("s_lshl_b32 s%d, s%d, 14\ns_lshl_b32 s%d, s%d, 12\ns_add_u32 s%d, s%d, s%d\ns_lshl_b32 s%d, s%d, 19\nv_add_u32 v%d, s%d, v%d\nv_add_u32 v%d, s%d, v%d" % (S_T0, S_I, S_T1, S_W, S_T0, S_T0, S_T1, S_T1, S_H, AT, S_T0, AT, AQ, S_T1, AT))
        A("s_cmp_ge_u32 s%d, 2" % S_W)
        A("s_waitcnt lgkmcnt(0)")
        A("s_cbranch_scc1 L_r0v")
        self.k_raw_loads(self.XA, 10, "r0", nul)
        for k, (sr, off) in enumerate(((S_KC, 0), (S_KC, 128), (S_KSN, 0), (S_KSN, 128))):
            A("global_load_dwordx4 v[%d:%d], v%d, %s offset:%d %s" % (RT + 4 * k, RT + 4 * k + 3, VT, sp(sr), off, self.kt))
        A("s_branch L_r0d\nL_r0v:")
        self.v_raw_loads(PV0, "r0", M)
        A("L_r0d:")
        ql = []
        for u in range(2):
            b = RQ + 24 * u
            for (r, v, sr, off, m_) in ((0, AQ, S_Q, 0, "nt"), (4, AQ, S_Q, 128, "nt"), (8, AT, S_QC, 0, self.qt), (12, AT, S_QC, 128, self.qt), (16, AT, S_QS, 0, self.qt), (20, AT, S_QS, 128, self.qt)):
                ql.append(("global_load_dwordx4 v[%d:%d], v%d, %s offset:%d %s" % (b + r, b + r + 3, v, sp(sr), 2048 * u + off, m_), "q%d" % u))
        A("s_add_u32 s%d, s%d, 0x100000\ns_and_b32 s%d, s%d, 0x300000\ns_and_b32 s%d, s%d, 0x400000\ns_or_b32 s%d, s%d, s%d" % (S_T2, S_KH, S_T2, S_T2, S_ARG, S_KH, S_ARG, S_ARG, S_T2))
        A("s_lshl_b32 s%d, s2, 4\ns_lshr_b32 s%d, s%d, 8\ns_add_u32 s%d, s%d, s%d\ns_lshr_b32 s%d, s%d, 8\ns_add_u32 s%d, s%d, s%d" % (S_T0, S_T1, S_KH, S_T1, S_T1, S_T0, S_T2, S_ARG, S_T2, S_T2, S_T0))
        A("s_lshl_b32 s%d, s%d, 12\ns_lshl_b32 s%d, s%d, 6\ns_add_u32 s%d, s%d, s%d\ns_mov_b32 s%d, %d" % (S_T3, S_H, S_T0, S_LIM, S_T3, S_T3, S_T0, S_T0, WS_EPOCH))
        A("s_load_dword s%d, %s, s%d" % (S_TAG, sp(S_WS), S_T0))
        A("s_load_dwordx4 s[%d:%d], %s, s%d\ns_load_dwordx4 s[%d:%d], %s, s%d" % (S_SC, S_SC + 3, sp(S_KS), S_T1, S_SC + 4, S_SC + 7, sp(S_KZ), S_T1))
        A("s_load_dwordx4 s[%d:%d], %s, s%d\ns_load_dwordx4 s[%d:%d], %s, s%d" % (S_SC + 8, S_SC + 11, sp(S_KS), S_T2, S_SC + 12, S_SC + 15, sp(S_KZ), S_T2))
        A("s_load_dwordx16 s[48:63], %s, s%d\ns_load_dwordx16 s[84:99], %s, s%d" % (sp(S_VS), S_T3, sp(S_VZ), S_T3))
        for s, t in ql[:self.qsplit]: M(s, t)
        A("v_lshlrev_b32 v%d, 4, v%d\nv_add_u32 v%d, 4096, v%d\nv_add_u32 v%d, 8192, v%d\nv_add_u32 v%d, 12288, v%d" % (V_KOFF0, ln, V_KOFF1, V_KOFF0, V_VOFF0, V_KOFF0, V_VOFF1, V_KOFF0))
        A("s_mul_i32 s0, s%d, 2304" % S_W)
        A("v_mul_u32_u24 v%d, 144, v9\nv_lshl_add_u32 v%d, v8, 4, v%d\nv_add_u32 v%d, s0, v%d" % (LW, LW, LW, LW, LW))
        A("v_mul_u32_u24 v%d, 144, v8\nv_lshl_add_u32 v%d, v9, 4, v%d\nv_add_u32 v%d, s0, v%d" % (LR, LR, LR, LR, LR))
        A("; BO = (p>>2)*16384 + ((p>>1)&1)*4096 + (p&1)*128 + (l>>3)*512 + (l&7)*16")
        A("s_lshr_b32 s0, s2, 2\ns_lshl_b32 s0, s0, 14\ns_and_b32 s3, s2, 1\ns_lshl_b32 s3, s3, 7\ns_add_u32 s0, s0, s3\ns_and_b32 s3, s2, 2\ns_lshl_b32 s3, s3, 11\ns_add_u32 s0, s0, s3")
        A("v_lshlrev_b32 v%d, 9, v8\nv_lshl_add_u32 v%d, v9, 4, v%d\nv_add_u32 v%d, s0, v%d" % (BO, BO, BO, BO, BO))
        A("s_and_b32 s0, s%d, 1\ns_lshl_b32 s0, s0, 12\ns_add_u32 s0, s0, s%d\nv_add_u32 v%d, s0, v%d" % (S_I, S_HOOK, BVO, V_VOFF0))
        A("s_mul_i32 s0, s%d, 4160\ns_add_u32 s0, s0, %d" % (S_W, L_Q))
        A("v_lshrrev_b32 v12, 1, v9\nv_mul_u32_u24 v%d, 1040, v12\nv_and_b32 v12, 1, v9\nv_lshl_add_u32 v%d, v12, 9, v%d\nv_lshl_add_u32 v%d, v8, 4, v%d\nv_add_u32 v%d, s0, v%d" % (LQ, LQ, LQ, LQ, LQ, LQ, LQ))
        A("v_lshrrev_b32 v12, 5, v%d\nv_bfe_u32 v13, v%d, 3, 2\nv_lshl_add_u32 v13, v13, 2, s%d" % (ln, ln, S_W))
        A("v_subrev_u32 v14, s%d, v12\nv_and_b32 v14, 3, v14\nv_lshl_add_u32 v14, v13, 2, v14\nv_lshlrev_b32 v14, 2, v14\nv_add_u32 v14, v9, v14" % S_H)
        A("s_lshl_b32 s0, s%d, 8\nv_add_u32 v14, s0, v14\nv_lshlrev_b32 v14, %d, v14\nv_add_u32 v14, %d, v14" % (S_H, fs, WS_FK))
        A("v_and_b32 v15, 1, v9\nv_lshl_add_u32 v15, v13, 1, v15\nv_lshl_add_u32 v15, v15, 2, v12\ns_lshl_b32 s0, s%d, 7\nv_add_u32 v15, s0, v15\nv_lshlrev_b32 v15, %d, v15\nv_add_u32 v15, %d, v15" % (S_H, fs, WS_FV))
        A("v_cmp_gt_u32 vcc, 4, v9\ns_nop 1\nv_cndmask_b32 v%d, v15, v14, vcc" % V_PA)
        A("v_add_u32 v11, s%d, v%d\ns_cmp_lt_u32 s%d, 2\ns_cselect_b32 s0, s%d, s%d\nv_add_u32 v10, s0, v%d" % (S_ARG, BK, S_W, S_ARG, S_KH, BK))
        A("s_mov_b32 s%d, 0x%08x\ns_mov_b32 s%d, 0x%08x\ns_mov_b32 s%d, 0x%08x" % (S_C, f32bits(CSCALE), S_C + 1, f32bits(CSCALE), S_THR, f32bits(THRESH)))
        A("s_mov_b32 s%d, s%d\ns_mov_b32 s%d, s%d\ns_mov_b32 s%d, 0x800000\ns_mov_b32 s%d, 0x20000" % (S_SRD, S_WS, S_SRD + 1, S_WS + 1, S_SRD + 2, S_SRD + 3))
        A("v_and_b32 v12, 1, v8\nv_lshlrev_b32 v12, 4, v12")
        A("s_waitcnt lgkmcnt(0)")
        for g in range(4):
            if g: A("s_lshl_b64 exec, -1, %d" % (16 * g))
            for k in range(4): A("v_mov_b32 v%d, s%d" % (KSC + k, S_SC + 4 * k + g))
            for z, sb in enumerate((48, 84)):
                for k, dw in enumerate((0, 1, 8, 9)): A("v_mov_b32 v%d, s%d" % (TB + 4 * z + k, sb + dw + 2 * g))
        A("s_mov_b64 exec, -1")
        for k in range(4): A("v_lshrrev_b32 v%d, v12, v%d\nv_lshlrev_b32 v%d, 16, v%d" % (KSC + k, KSC + k, KSC + k, KSC + k))
        A("v_mul_f32 v%d, v%d, v%d\nv_mul_f32 v%d, v%d, v%d" % (KSC + 1, KSC + 1, KSC, KSC + 3, KSC + 3, KSC + 2))
        self.v_compute(None, TB, VS, VS + 8, None, None)
        A("s_lshl_b32 s%d, s%d, 20\ns_lshl_b32 s%d, s%d, 16\ns_add_u32 s%d, s%d, s%d" % (S_T0, S_H, S_T1, S_W, S_T0, S_T0, S_T1))
        A("s_lshr_b32 s%d, s%d, %d" % (S_T2, S_I, self.hshare))
        for n in range(4):
            A("s_add_u32 s%d, s%d, %d\ns_and_b32 s%d, s%d, 3\ns_lshl_b32 s%d, s%d, 18\ns_add_u32 s%d, s%d, s%d" % (S_T1, S_T2, n, S_T1, S_T1, S_T1, S_T1, S_TBL + 12 + n, S_T1, S_T0))
        for sg in range(4):
            A("s_sub_u32 s%d, %d, s%d\ns_and_b32 s%d, s%d, 3\ns_lshl_b32 s%d, s%d, 14" % (S_T1, sg, S_H, S_T1, S_T1, S_T1, S_T1))
            for n in range(4): A("s_add_u32 s%d, s%d, s%d" % (S_TBL + 4 * sg + n, S_TBL + 12 + n, S_T1))
        A("s_mov_b32 s%d, s%d\ns_mov_b32 s%d, s%d" % (S_TBL + 16, S_TBL, S_OFF, S_TBL))
        A("s_add_u32 s%d, s%d, 0x9e3779b9" % (S_TAG, S_TAG))
        A("s_and_b32 s0, s%d, 1\ns_lshl_b32 s0, s0, 13\nv_add_u32 v%d, s0, v%d" % (S_W, VT, V_KOFF0))
        def r2loads():
            A("s_cmp_ge_u32 s%d, 2\ns_cbranch_scc1 L_r2k" % S_W)
            self.v_raw_loads(PV0, "r2", self.Mlo)
            A("s_branch L_r2d\nL_r2k:")
            self.k_raw_loads(self.XB, 11, "r2", self.Mhi)
            A("L_r2d:")
        A("; ---- round 0")
        self.wait("r0")
        self.stamp(1)
        A("s_cmp_ge_u32 s%d, 2\ns_cbranch_scc1 L_t0v" % S_W)
        self.unpack_tab(KT, RT)
        A("s_call_b64 s[%d:%d], L_ktask0" % (S_RET, S_RET + 1))
        for k in range(8): A("ds_write_b128 v%d, v[%d:%d] offset:%d" % (VT, KT + 4 * k, KT + 4 * k + 3, L_TAB + 1024 * k))
        A("s_waitcnt lgkmcnt(0)\ns_branch L_t0d")
        A("L_t0v:\ns_call_b64 s[%d:%d], L_vtask\nL_t0d:" % (S_RET, S_RET + 1))
        self.note("st", 2, 4)
        self.stamp(13)
        A("s_barrier")
        for s, t in ql[self.qsplit:]: M(s, t)
        self.k_raw_loads(self.XA, 10, "r1", M)
        for k in range(8): A("ds_read_b128 v[%d:%d], v%d offset:%d" % (KT + 4 * k, KT + 4 * k + 3, VT, L_TAB + 1024 * k))
        for r in range(64): A("v_accvgpr_write_b32 a%d, 0" % (64 + r))
        self.wait("st")
        self.flag_store(1)
        self.stamp(2)
        if self.r2pos == 0: r2loads()
        def qunit(u):
            b = RQ + 24 * u
            self.unpack_tab(UQ, b + 8)
            x1, x2 = 48, 56
            for p in range(4):
                self.unpack(x1 + 2 * p, b + p); self.unpack(x2 + 2 * p, b + 4 + p)
            for p in range(8): A("v_pk_mul_f32 %s, %s, %s" % (P2(x1 + 2 * p), P2(x1 + 2 * p), sp(S_C)))
            for p in range(4): self.rope_p(x1 + 2 * p, x2 + 2 * p, UQ + 8 * p, 12, 14, b + p, b + 4 + p)
            A("ds_write_b128 v%d, v[%d:%d] offset:%d\nds_write_b128 v%d, v[%d:%d] offset:%d" % (LQ, b, b + 3, 128 * u, LQ, b + 4, b + 7, 128 * u + 256))
        self.wait("q0")
        self.stamp(10)
        qunit(0)
        if self.r2pos == 1: r2loads()
        self.wait("q1")
        qunit(1)
        self.stamp(14)
        A("; ---- round 1")
        self.wait("r1", " lgkmcnt(0)")
        self.call_by_role("L_ktask1", "L_ktask0")
        self.note("st", 2, 2)
        M("global_load_dword v%d, v%d, %s sc1" % (AQ, V_PA, sp(S_WS)), "poll")
        A("s_barrier")
        self.stamp(11)
        for f in range(16):
            a = 128 + 4 * f
            A("ds_read_b128 a[%d:%d], v%d offset:%d" % (a, a + 3, V_KOFF0, L_Q + f * 1040))
        self.wait("poll")
        self.stamp(15)
        self.flag_store(1)
        A("v_cmp_ne_u32 vcc, s%d, v%d\ns_mov_b32 s%d, vcc_lo\ns_cmp_lg_u32 vcc_lo, 0\ns_cbranch_scc1 L_nok0" % (S_TAG, AQ, S_HOOK))
        for k in range(8): A(self.ld_k(k, 0))
        A("L_nok0:")
        A("; ---- round 2")
        self.call_by_role("L_vtask", "L_ktask1b")
        self.stamp(12)
        A("s_cmp_eq_u32 s%d, 0\ns_cbranch_scc1 L_havek" % S_HOOK)
        A("s_mov_b32 s%d, 0" % S_CNT)
        A("L_p0:")
        A("global_load_dword v%d, v%d, %s sc1\ns_waitcnt vmcnt(0)" % (AQ, V_PA, sp(S_WS)))
        A("v_cmp_ne_u32 vcc, s%d, v%d\ns_cmp_eq_u32 vcc_lo, 0\ns_cbranch_scc1 L_p0d" % (S_TAG, AQ))
        if self.sleep: A("s_sleep %d" % self.sleep)
        A("s_add_u32 s%d, s%d, 1\ns_cmp_lt_u32 s%d, 0x8000\ns_cbranch_scc1 L_p0" % (S_CNT, S_CNT, S_CNT))
        A("L_p0d:")
        for k in range(8): A(self.ld_k(k, 0))
        A("s_waitcnt vmcnt(0)")
        A("L_havek:")
        self.stamp(3)
        self.vm = ["K0", "st2", "st2"]; self.vl = ["K0", "st2", "st2", "st2", "st2"]

    def mfma_qk(self, x, idx, kset, first_c=None):
        ql, kt, ks = idx >> 3, (idx >> 2) & 1, idx & 3
        s = V_S[x] + 8 * ql + 4 * kt; k = V_K[kset] + 4 * (4 * kt + ks); q = A_Q(x, ql, ks)
        if ks == 0: c = first_c if first_c is not None else "v[%d:%d]" % (V_NM[x] + 4 * ql, V_NM[x] + 4 * ql + 3)
        else: c = "v[%d:%d]" % (s, s + 3)
        return "v_mfma_f32_16x16x32_bf16 v[%d:%d], v[%d:%d], a[%d:%d], %s" % (s, s + 3, k, k + 3, q, q + 3, c)
    def mfma_pv(self, x, idx, vset, first=False):
        dt, ql = idx >> 1, idx & 1
        o = A_O(x, ql, dt); v = V_V[vset] + 4 * dt; p = V_P[x] + 4 * ql
        c = "0" if first else "a[%d:%d]" % (o, o + 3)
        return "v_mfma_f32_16x16x32_bf16 a[%d:%d], v[%d:%d], v[%d:%d], %s" % (o, o + 3, v, v + 3, p, p + 3, c)
    def ld_k(self, ks, kset):
        r = V_K[kset] + 4 * ks
        return "buffer_load_dwordx4 v[%d:%d], v%d, s[%d:%d], s%d offen offset:%d sc1" % (r, r + 3, V_KOFF0 + (ks >> 2), S_SRD, S_SRD + 3, S_OFF, (ks & 3) * 1024)
    def ld_v(self, idx, vset):
        r = V_V[vset] + 4 * idx
        return "buffer_load_dwordx4 v[%d:%d], v%d, s[%d:%d], s%d offen offset:%d sc1" % (r, r + 3, V_VOFF0 + (idx >> 2), S_SRD, S_SRD + 3, S_OFF, (idx & 3) * 1024)
    def op_e(self, x, r): return "v_exp_f32 v%d, v%d" % (V_E[x] + r, V_S[x] + r)
    def op_a(self, x, r):
        t = V_T[x] + (r >> 3)
        if (r & 7) == 1: return "v_add_f32 v%d, v%d, v%d" % (t, V_E[x] + r - 1, V_E[x] + r)
        return "v_add_f32 v%d, v%d, v%d" % (t, t, V_E[x] + r)
    def op_c(self, x, k): return "v_cvt_pk_bf16_f32 v%d, v%d, v%d" % (V_P[x] + k, V_E[x] + 2 * k, V_E[x] + 2 * k + 1)
    def op_f(self, x, ql): return "v_add_f32 v%d, v%d, v%d" % (V_L[x] + ql, V_L[x] + ql, V_T[x] + ql)
    def op_chk(self, x):
        stub = self.label("L_slow_%s" % x); ret = self.label("L_ret_%s" % x)
        self.stubs.append((stub, ret, x))
        return ["v_add_f32 v%d, v%d, v%d" % (V_CH, V_T[x], V_T[x] + 1), "v_cmp_nge_f32 vcc, s%d, v%d" % (S_THR, V_CH), "s_cbranch_vccnz %s" % stub, "%s:" % ret]

    PERIODS = {
      0: ["e0 F0", "e1 F1", "L", "L a1",
          "e2", "e3 c0", "L", "a2 a3 c1",
          "e4", "e5", "L", "a4 a5 c2",
          "e6 W1", "e7", "L", "a6 a7 c3",
          "e8", "e9", "L", "a9 c4",
          "e10", "e11", "L", "a10 a11 c5",
          "e12", "e13 W2", "L", "a12 a13 c6",
          "e14", "e15", "a14 a15", "c7 K"],
      1: ["e0", "e1", "L", "L",
          "e2", "e3", "F0 F1 a1", "L",
          "e4", "e5", "a2 a3 c0", "L",
          "W1 e6", "e7", "a4 a5 c1", "L",
          "e8", "e9", "a6 a7 c2", "L",
          "e10", "e11", "a9 c3 c4", "L",
          "S1 e12", "W2 e13", "L", "a10 a11 c5",
          "S2 e14", "e15", "a12 a13 a14 c6", "a15 c7 K"],
      2: ["e0", "e1", "L", "L",
          "e2", "e3", "F0 F1", "L",
          "e4", "a1 a2 c0", "e5", "L",
          "W1 e6", "a3 a4 c1", "e7", "L",
          "e8", "a5 a6 c2", "e9", "L",
          "e10", "a7 a9 c3", "e11", "L",
          "S1 e12", "a10 a11 c4", "L", "W2 e13",
          "S2 e14", "e15 c5", "a12 a13 a14 c6", "a15 c7 K"],
    }
    def iteration(self, jp, loads=True):
        out = []
        kq = (jp + 1) & 1
        for p in range(64):
            if p < 16: out.append(self.mfma_qk('a', p, kq))
            elif p < 32: out.append(self.mfma_pv('b', p - 16, jp))
            elif p < 48: out.append(self.mfma_qk('b', p - 32, kq))
            else: out.append(self.mfma_pv('a', p - 48, kq))
            if p < 16: x, u = 'b', p + 16
            elif p < 48: x, u = 'a', p - 16
            else: x, u = 'b', p - 48
            y = 'a' if x == 'b' else 'b'
            for tok in self.PERIOD[u].split():
                c = tok[0]
                if c == 'L':
                    li = sum(self.PERIOD[v].split().count('L') for v in range(u))
                    if not loads: continue
                    if x == 'a': out.append(self.ld_v(li, jp))
                    elif p >= 48: out.append(self.ld_k(li, kq))
                    else: out.append(self.ld_k(li, jp))
                elif c == 'e': out.append(self.op_e(x, int(tok[1:])))
                elif c == 'a': out.append(self.op_a(x, int(tok[1:])))
                elif c == 'c': out.append(self.op_c(x, int(tok[1:])))
                elif c == 'F': out.append(self.op_f(y, int(tok[1:])))
                elif c == 'K': out += self.op_chk(x)
                elif c == 'W':
                    if tok == "W2" and x == 'a': out.append("@WAIT_V")
                    if tok == "W1" and x == 'b': out.append("@WAIT_K")
                elif c == 'S':
                    if x == 'a' and loads: out.append("@" + tok)
        return out
    def emit_iter(self, it):
        A = self.A
        lastv = max(k for k, s in enumerate(it) if s.startswith("buffer_load") and (" v%d," % V_VOFF1) in s)
        for k, s in enumerate(it):
            if s == "@WAIT_V": s = "s_waitcnt vmcnt(%d)" % self.wv
            if s == "@WAIT_K": s = "s_waitcnt vmcnt(%d)" % self.wk
            if s == "@S1": s = "s_add_u32 m0, m0, 1"
            if s == "@S2":
                assert k > lastv
                s = "s_movrels_b32 s%d, s%d" % (S_OFF, S_TBL)
            A(s)
            if "@S1" not in it:
                if k == lastv - 5: A("s_add_u32 m0, m0, 1")
                if k == lastv + 6: A("s_movrels_b32 s%d, s%d" % (S_OFF, S_TBL))
    def compute_waits(self):
        self.stubs = []
        it = self.iteration(0)
        seq = it + it + it
        n = len(it)
        isld = lambda s: s.startswith("buffer_load")
        isv = lambda s: isld(s) and ((" v%d," % V_VOFF0) in s or (" v%d," % V_VOFF1) in s)
        kv = 2 * n + it.index("@WAIT_V")
        lastv = max(k for k in range(n, 2 * n) if isv(seq[k]))
        self.wv = sum(1 for k in range(lastv + 1, kv) if isld(seq[k]))
        kk = 2 * n + it.index("@WAIT_K")
        idx = [k for k, s in enumerate(it) if s.startswith("v_mfma")]
        lastk = 2 * n + max(k for k in range(0, idx[16]) if isld(it[k]))
        self.wk = sum(1 for k in range(lastk + 1, kk) if isld(seq[k]))
        self.uid = 0
        self.stubs = []

    def xlane(self, op, t0, t1):
        o = []
        for sw in ("v_permlane16_swap_b32", "v_permlane32_swap_b32"):
            o += ["v_mov_b32 v%d, v%d" % (t1, t0), "s_nop 1", "%s v%d, v%d" % (sw, t0, t1), "s_nop 1", "%s v%d, v%d, v%d" % (op, t0, t0, t1)]
        return o
    def max8(self, t0, s, last):
        o = ["v_max3_f32 v%d, v%d, v%d, v%d" % (t0, s, s + 1, s + 2)]
        o += ["v_max3_f32 v%d, v%d, v%d, v%d" % (t0, s + r, s + r + 1, t0) for r in (3, 5)]
        o.append("v_max3_f32 v%d, v%d, v%d, %s" % (t0, s + 7, t0, last))
        return o

    def slow_sub(self, x):
        A = self.A
        t0, t1 = V_TMP0, V_TMP1
        A("L_sub_%s:" % x)
        A("s_nop 7")
        for ql in range(2):
            s, nm = V_S[x] + 8 * ql, V_NM[x] + 4 * ql
            for l in self.max8(t0, s, "0") + self.xlane("v_max_f32", t0, t1): A(l)
            A("v_exp_f32 v%d, -v%d" % (t1, t0))
            for r in range(8): A("v_sub_f32 v%d, v%d, v%d" % (s + r, s + r, t0))
            for r in range(4): A("v_sub_f32 v%d, v%d, v%d" % (nm + r, nm + r, t0))
            A("v_mul_f32 v%d, v%d, v%d" % (V_L[x] + ql, V_L[x] + ql, t1))
            for r in range(32):
                a = A_O(x, ql, 0) + r
                A("v_accvgpr_read_b32 v%d, a%d\nv_mul_f32 v%d, v%d, v%d\nv_accvgpr_write_b32 a%d, v%d" % (V_TMP2, a, V_TMP2, V_TMP2, t1, a, V_TMP2))
        for r in range(16): A(self.op_e(x, r))
        A("s_nop 0")
        for r in range(16):
            if r & 7: A(self.op_a(x, r))
        for k in range(8): A(self.op_c(x, k))
        A("s_nop 3")
        A("s_setpc_b64 s[%d:%d]" % (S_RET, S_RET + 1))

    def first_fix(self, x):
        seqs = []
        for ql in range(2):
            s, nm = V_S[x] + 8 * ql, V_NM[x] + 4 * ql
            t0, t1 = V_T[x] + ql, V_E[x] + ql
            o = self.max8(t0, s, "v%d" % t0) + [l for l in self.xlane("v_max_f32", t0, t1)]
            o += ["v_sub_f32 v%d, v%d, v%d" % (s + r, s + r, t0) for r in range(8)]
            o += ["v_sub_f32 v%d, 0, v%d" % (nm + r, t0) for r in range(4)]
            seqs.append(o)
        out = []
        for a, b in zip(*seqs):
            if a == "s_nop 1": out.append("s_nop 0")
            else: out += [a, b]
        return out

    def main(self):
        A = self.A; M = self.M
        for r in range(4): A("v_mov_b32 v%d, 0" % (V_L['a'] + r))
        pend = [(self.ld_v(k, 0), "V0") for k in range(8)] + [None] + [(self.ld_k(k, 1), "K1") for k in range(8)] + [(self.ld_v(k, 1), "V1") for k in range(8)]
        def nxt():
            if not pend: return
            if pend[0] is None:
                pend.pop(0); A("s_mov_b32 s%d, s%d" % (S_OFF, S_TBL + 1))
            M(*pend.pop(0))
        for k in range(self.vpre): nxt()
        self.wait("K0", " lgkmcnt(0)")
        self.stamp(4)
        for idx in range(16):
            A(self.mfma_qk('a', idx, 0, first_c="0"))
            if idx & 1: nxt()
        seq = self.first_fix('a')
        for r in range(16):
            seq.append(self.op_e('a', r))
            if r >= 1 and ((r - 1) & 7): seq.append(self.op_a('a', r - 1))
        seq += [self.op_c('a', 0), self.op_a('a', 15)] + [self.op_c('a', k) for k in range(1, 8)]
        pos = 0
        for idx in range(16):
            A(self.mfma_qk('b', idx, 0, first_c="0"))
            if idx < 4:
                if idx & 1: nxt()
            else:
                for s in seq[pos:pos + 2]: A(s)
                pos += 2
        rest = seq[pos:] + self.first_fix('b')
        for k, s in enumerate(rest):
            A(s)
            if k % 4 == 3: nxt()
        while pend: nxt()
        A("s_mov_b32 m0, 2\ns_mov_b32 s%d, s%d" % (S_OFF, S_TBL + 2))
        self.wait("V0")
        self.flag_store(1)
        it = self.iteration(1)
        idx = [k for k, s in enumerate(it) if s.startswith("v_mfma")]
        tail = it[idx[48]:]
        nm = 0
        for s in tail:
            if s.startswith("v_mfma"):
                s = self.mfma_pv('a', nm, 0, first=True); nm += 1
            if s == "@WAIT_K": self.wait("K1"); continue
            if s.startswith("buffer_load"): M(s, "K2"); continue
            A(s)
        self.stamp(5)
        self.cstamp(8)
        A("global_load_dword v%d, v%d, %s sc1       ; stage-1 flags" % (V_FA, V_PA, sp(S_WS)))
        A("s_mov_b32 s%d, 4" % S_LIM)
        A(".p2align 6")
        A("L_loop:")
        self.emit_iter(self.iteration(0))
        A("s_cmp_eq_u32 m0, 3\ns_cbranch_scc1 L_hook")
        A("L_mid:")
        self.emit_iter(self.iteration(1))
        A("s_cmp_lt_u32 m0, s%d\ns_cbranch_scc1 L_loop" % S_LIM)
        A("s_cmp_eq_u32 m0, 16\ns_cbranch_scc1 L_tail")
        A("s_cmp_eq_u32 m0, 6\ns_cbranch_scc1 L_ev2")
        if self.cpf2:
            A("s_cmp_eq_u32 m0, 4\ns_cbranch_scc1 L_ev1")
            A("s_getpc_b64 s[%d:%d]\nL_pc2:" % (S_T0, S_T1))
            A("v_lshlrev_b32 v%d, 7, v%d\nv_min_u32 v%d, L_end-L_pc2, v%d" % (V_TMP0, V_LANE, V_TMP0, V_TMP0))
            A("global_load_dword v%d, v%d, s[%d:%d]" % (V_FA, V_TMP0, S_T0, S_T1))
            A("s_mov_b32 s%d, 16\ns_branch L_loop" % S_LIM)
            A("L_ev1:")
        A("v_and_b32 v%d, 4, v%d\nv_cmp_eq_u32 vcc, 0, v%d\nv_xor_b32 v%d, %d, v%d\nv_add_u32 v%d, %d, v%d\nv_cndmask_b32 v%d, v%d, v%d, vcc" %
          (V_TMP0, V_LANE, V_TMP0, V_TMP1, 8 << self.fs, V_PA, V_TMP2, 2 << self.fs, V_PA, V_PA, V_TMP2, V_TMP1))
        A("global_load_dword v%d, v%d, %s sc1" % (V_FA, V_PA, sp(S_WS)))
        A("s_mov_b32 s%d, 6\ns_branch L_loop" % S_LIM)
        A("L_ev2:")
        A("s_mov_b32 s%d, %d" % (S_LIM, self.cpf2 if self.cpf2 else 16))
        A("v_cmp_ne_u32 vcc, s%d, v%d\ns_cbranch_vccz L_loop" % (S_TAG, V_FA))
        self.poll(V_PA)
        A("s_branch L_loop")
        A("L_hook:")
        A("s_waitcnt vmcnt(16)")
        A("v_cmp_ne_u32 vcc, s%d, v%d\ns_cbranch_vccz L_mid" % (S_TAG, V_FA))
        self.poll(V_PA)
        A("s_branch L_mid")
        A("L_tail:")
        it = self.iteration(0, loads=False)
        for s in it:
            if s in ("@WAIT_V", "@WAIT_K"): s = "s_waitcnt vmcnt(0)"
            A(s)
        it = self.iteration(1, loads=False)
        idx = [k for k, s in enumerate(it) if s.startswith("v_mfma")]
        prev = ""
        for k, s in enumerate(it[:idx[32]]):
            if s.startswith("v_mfma") and k < idx[16]: continue
            if k >= idx[16] and not s.startswith("v_mfma"):
                if s not in (self.op_f('b', 0), self.op_f('b', 1)): continue
            if s.startswith("@"): continue
            if prev.startswith("v_exp") and not s.startswith("v_exp"): A("s_nop 0")
            A(s); prev = s
        self.stamp(6)
        self.cstamp(9)

    def epilogue(self):
        A = self.A
        ln = V_LANE
        NM = V_NM['a']; LL = V_L['a']
        seqs = [self.xlane("v_add_f32", LL + q, 16 + q) for q in range(4)]
        for grp in zip(*seqs):
            if grp[0].startswith("s_nop"): continue
            for l in grp: A(l)
        for q in range(4): A("v_mov_b32 v%d, v%d" % (NM + 4 * q + 1, LL + q))
        A("s_lshl_b32 s%d, s%d, 11\ns_add_u32 s%d, s%d, %d" % (S_T0, S_W, S_T0, S_T0, L_ST))
        A("v_lshlrev_b32 v44, 3, v%d\nv_add_u32 v45, s%d, v44" % (ln, S_T0))
        for q in range(4): A("ds_write_b64 v45, v[%d:%d] offset:%d" % (NM + 4 * q, NM + 4 * q + 1, 512 * q))
        for d in range(4):
            skip = self.label("L_skipw")
            A("s_cmp_eq_u32 s%d, %d\ns_cbranch_scc1 %s" % (S_W, d, skip))
            A("s_sub_u32 s%d, s%d, %d\ns_and_b32 s%d, s%d, 3\ns_lshl_b32 s%d, s%d, 13\ns_add_u32 s%d, s%d, %d" %
              (S_T0, S_W, d + 1, S_T0, S_T0, S_T0, S_T0, S_T0, S_T0, L_O + d * 3 * 8192))
            A("v_add_u32 v45, s%d, v%d" % (S_T0, V_KOFF0))
            for idx in range(8): A("ds_write_b128 v45, a[%d:%d] offset:%d" % (32 * d + 4 * idx, 32 * d + 4 * idx + 3, idx * 1024))
            A("%s:" % skip)
        own = 128
        done = self.label("L_own")
        for d in range(4):
            nxt = self.label("L_ownn")
            if d < 3: A("s_cmp_lg_u32 s%d, %d\ns_cbranch_scc1 %s" % (S_W, d, nxt))
            for r in range(32): A("v_accvgpr_read_b32 v%d, a%d" % (own + r, 32 * d + r))
            if d < 3: A("s_branch %s\n%s:" % (done, nxt))
        A("%s:" % done)
        A("s_waitcnt lgkmcnt(0)\ns_barrier")
        st = 16
        A("s_lshl_b32 s%d, s%d, 9\ns_add_u32 s%d, s%d, %d" % (S_T1, S_W, S_T1, S_T1, L_ST))
        for k in range(4):
            A("s_add_u32 s%d, s%d, %d\ns_and_b32 s%d, s%d, 3\ns_lshl_b32 s%d, s%d, 11\ns_add_u32 s%d, s%d, s%d" % (S_T0, S_W, k, S_T0, S_T0, S_T0, S_T0, S_T0, S_T0, S_T1))
            A("v_add_u32 v45, s%d, v44" % S_T0)
            A("ds_read_b64 v[%d:%d], v45" % (st + 2 * k, st + 2 * k + 1))
        A("s_mul_i32 s%d, s%d, 24576\ns_add_u32 s%d, s%d, %d\nv_add_u32 v45, s%d, v%d" % (S_T0, S_W, S_T0, S_T0, L_O, S_T0, V_KOFF0))
        pb = 160
        order = [(k, idx) for idx in range(8) for k in range(3)]
        for (k, idx) in order[:9]:
            r = pb + (k * 8 + idx) * 4
            A("ds_read_b128 v[%d:%d], v45 offset:%d" % (r, r + 3, k * 8192 + idx * 1024))
        A("s_waitcnt lgkmcnt(9)")
        F = 32
        A("v_min3_f32 v40, v%d, v%d, v%d\nv_min_f32 v40, v40, v%d" % (st, st + 2, st + 4, st + 6))
        for k in range(4): A("v_sub_f32 v%d, v40, v%d" % (F + k, st + 2 * k))
        for k in range(4): A("v_exp_f32 v%d, v%d" % (F + k, F + k))
        A("s_nop 0")
        A("v_mul_f32 v41, v%d, v%d" % (F, st + 1))
        for k in range(1, 4): A("v_fmac_f32 v41, v%d, v%d" % (F + k, st + 2 * k + 1))
        A("v_rcp_f32 v41, v41\ns_nop 0")
        for k in range(4): A("v_mul_f32 v%d, v%d, v41" % (F + k, F + k))
        A("s_lshl_b32 s%d, s%d, 19\ns_lshl_b32 s%d, s%d, 14\ns_add_u32 s%d, s%d, s%d\ns_lshl_b32 s%d, s%d, 12\ns_add_u32 s%d, s%d, s%d" %
          (S_T0, S_H, S_T1, S_I, S_T0, S_T0, S_T1, S_T1, S_W, S_T0, S_T0, S_T1))
        A("v_and_b32 v42, 15, v%d\nv_lshrrev_b32 v43, 4, v%d\nv_lshlrev_b32 v42, 8, v42\nv_lshl_add_u32 v42, v43, 5, v42\nv_add_u32 v42, s%d, v42" % (ln, ln, S_T0))
        issued = 9
        ob = 48
        for idx in range(8):
            while issued < min(24, 3 * idx + 12):
                k, i2 = order[issued]
                r = pb + (k * 8 + i2) * 4
                A("ds_read_b128 v[%d:%d], v45 offset:%d" % (r, r + 3, k * 8192 + i2 * 1024)); issued += 1
            A("s_waitcnt lgkmcnt(%d)" % (issued - 3 * idx - 3))
            for pr in range(2):
                r = own + idx * 4 + 2 * pr
                A("v_pk_mul_f32 %s, %s, %s op_sel_hi:[1,0]" % (P2(r), P2(r), P2(F)))
                for k in range(3):
                    fr = F + 1 + k
                    q = fr & 1
                    A("v_pk_fma_f32 %s, %s, %s, %s op_sel:[0,%d,0] op_sel_hi:[1,%d,1]" % (P2(r), P2(pb + (k * 8 + idx) * 4 + 2 * pr), P2(fr & ~1), P2(r), q, q))
            if (idx & 3) == 3:
                dh = idx >> 2
                for hf in range(2):
                    o = ob + (dh * 2 + hf) * 4
                    for ii in range(2):
                        i = 2 * hf + ii
                        for tp in range(2):
                            A("v_cvt_pk_bf16_f32 v%d, v%d, v%d" % (o + 2 * ii + tp, own + (dh * 4 + 2 * tp) * 4 + i, own + (dh * 4 + 2 * tp + 1) * 4 + i))
                    A("global_store_dwordx4 v42, v[%d:%d], %s offset:%d %s" % (o, o + 3, sp(S_OUT), 128 * dh + 16 * hf, self.omod))

    def dump_stamps(self):
        if not self.stamps: return
        A = self.A
        A("s_lshl_b32 s100, s2, 2\ns_add_u32 s100, s100, s%d\ns_lshl_b32 s100, s100, 6\ns_add_u32 s100, s100, %d" % (S_W, 16 << 20))
        A("v_lshlrev_b32 v2, 2, v%d\nv_add_u32 v2, s100, v2\ns_mov_b64 exec, 0xffff" % V_LANE)
        A("global_store_dword v2, v%d, %s\ns_mov_b64 exec, -1" % (V_STAMP, sp(S_WS)))

    def build(self):
        A = self.A
        K = NAME + "_kernel"
        self.cold = []
        self.compute_waits()
        hdr = open("cdna_kernels/%s.s.ref" % NAME).read().split("; @launch")[0]
        A(hdr.rstrip("\n"))
        A("; @launch grid=(256,1,1) block=(256,1,1) lds=%d" % LDS_BYTES)
        A('.amdgcn_target "amdgcn-amd-amdhsa--gfx950"\n.text')
        A(".globl %s\n.p2align 8\n.type %s,@function\n%s:" % (K, K, K))
        self.phase1()
        self.main()
        self.epilogue()
        A("s_cmp_lg_u32 s2, 0\ns_cbranch_scc1 L_noep\ns_cmp_lg_u32 s%d, 0\ns_cbranch_scc1 L_noep" % S_W)
        A("v_mov_b32 v1, %d\nv_mov_b32 v2, s%d\ns_mov_b64 exec, 1\nglobal_store_dword v1, v2, %s sc1\ns_mov_b64 exec, -1" % (WS_EPOCH, S_TAG, sp(S_WS)))
        A("L_noep:")
        self.stamp(7)
        self.dump_stamps()
        if self.probe is not None:
            A("v_readlane_b32 s70, v7, %d\ns_nop 3\ns_add_u32 s70, s70, 3000\nL_spin:\ns_memrealtime s[100:101]\ns_waitcnt lgkmcnt(0)\ns_sub_u32 s71, s70, s100\ns_cmp_gt_i32 s71, 0\ns_cbranch_scc1 L_spin" % self.probe)
        A("L_end:\ns_endpgm")
        live = [st for st in self.stubs if any(s.endswith(' ' + st[0]) for s in self.L)]
        for stub, ret, x in live:
            A("%s:\ns_call_b64 s[%d:%d], L_sub_%s\ns_branch %s" % (stub, S_RET, S_RET + 1, x, ret))
        self.subs()
        A("L_codeend:")
        for lab, ret, regs in self.cold:
            A("%s:" % lab)
            for k in range(0, len(regs), 2): self.round_pair(regs[k])
            A("s_branch %s" % ret)
        self.slow_sub('a'); self.slow_sub('b')
        A('.section .rodata,"a"')
        A('.p2align 6\n.amdhsa_kernel %s\n  .amdhsa_next_free_vgpr 512\n  .amdhsa_next_free_sgpr 102\n  .amdhsa_accum_offset 256\n'
          '  .amdhsa_group_segment_fixed_size 0\n  .amdhsa_kernarg_size 112\n  .amdhsa_user_sgpr_count 2\n'
          '  .amdhsa_user_sgpr_kernarg_segment_ptr 1\n  .amdhsa_system_sgpr_workgroup_id_x 1\n.end_amdhsa_kernel' % K)
        return "\n".join(self.L) + "\n"

if __name__ == "__main__":
    ap = argparse.ArgumentParser()
    ap.add_argument("out")
    ap.add_argument("--stamps", action="store_true")
    ap.add_argument("--probe", type=int, default=None)
    ap.add_argument("--sleep", type=int, default=4)
    ap.add_argument("--fs", type=int, default=6)
    ap.add_argument("--omod", default="")
    ap.add_argument("--qsplit", type=int, default=9)
    ap.add_argument("--pollearly", action="store_true")
    ap.add_argument("--r2pos", type=int, default=0)
    ap.add_argument("--vpre", type=int, default=4)
    ap.add_argument("--r1pos", type=int, default=1)
    ap.add_argument("--period", type=int, default=0)
    ap.add_argument("--exactw", type=int, default=1)
    ap.add_argument("--cpf", type=int, default=0)
    ap.add_argument("--cpf2", type=int, default=0)
    ap.add_argument("--hshare", type=int, default=0)
    ap.add_argument("--qbar", type=int, default=0)
    ap.add_argument("--qt", default=""); ap.add_argument("--kt", default="")
    a = ap.parse_args()
    g = Gen(**vars(a))
    open(a.out, "w").write(g.build())
    print("wv", g.wv, "wk", g.wk, "lines", len(g.L))
```

```python
import sys, struct, argparse
NAME = "standalone__kv_cache_quant_pre_rope_vs_post_rope__prompt"
def f32bits(x): return struct.unpack("<I", struct.pack("<f", x))[0]
CSCALE = 1.4426950408889634 * (128.0 ** -0.5)

V_FA = 0
V_KOFF0, V_KOFF1, V_VOFF0, V_VOFF1 = 1, 2, 3, 4
V_LANE, V_PA, V_STAMP = 5, 6, 7
V_T = {'a': 8, 'b': 10}
V_L = {'a': 64, 'b': 66}
V_CH = 68
V_TMP0, V_TMP1, V_TMP2, V_TMP3 = 12, 13, 14, 15
V_S = {'a': 16, 'b': 32}
V_NM = {'a': 48, 'b': 56}
V_E = {'a': 80, 'b': 96}
V_P = {'a': 112, 'b': 120}
V_K = [128, 160]
V_V = [192, 224]
XI = {'a': 0, 'b': 1}
def A_O(x, ql, dt): return ((2 * XI[x] + ql) * 8 + dt) * 4
def A_Q(x, ql, ks): return 128 + ((2 * XI[x] + ql) * 4 + ks) * 4
V_VSC = 36
A_K0, A_K1, A_V = 192, 208, 224
S_Q, S_QK, S_KS, S_KZ, S_QV, S_VS, S_VZ, S_QC, S_QS, S_KC, S_KSN, S_OUT, S_DBG, S_WS = [4 + 2 * i for i in range(14)]
S_H, S_I, S_W, S_TAG = 32, 33, 34, 35
S_T0, S_T1, S_T2, S_T3 = 36, 37, 38, 39
S_SRD = 40
S_OFF, S_THR = 44, 45
S_C = 46
S_TBL = 48
S_RET = 66
S_SC = 68
S_CNT, S_LIM, S_HOOK = 3, 65, 28
S_KH, S_VK, S_ARG = 29, 0, 1
L_KT = 0
L_TAB = 9216
L_Q = L_TAB + 16384
L_ST = L_Q + 16 * 1040
L_O = L_ST + 8192
LDS_BYTES = L_O + 96 * 1024
WS_FK = 8 << 20
WS_FV = WS_FK + (512 << 10)
WS_EPOCH = 9 << 20
THRESH = 1024.0
P2 = lambda r: "v[%d:%d]" % (r, r + 1)
sp = lambda r: "s[%d:%d]" % (r, r + 1)

class Gen:
    def __init__(self, **kw):
        self.L = []
        self.uid = 0
        self.stamps = kw.get("stamps", False)
        self.probe = kw.get("probe", None)
        self.sleep = kw.get("sleep", 4)
        self.fs = kw.get("fs", 6)
        self.abl = kw.get("abl", "")
        self.omod = kw.get("omod", "")
        self.qsplit = kw.get("qsplit", 9)
        self.pollearly = kw.get("pollearly", False)
        self.r2pos = kw.get("r2pos", 0)
        self.vpre = kw.get("vpre", 4)
        self.r1pos = kw.get("r1pos", 1)
        self.PERIOD = self.PERIODS[kw.get("period", 0)]
        self.hshare = kw.get("hshare", 0)
        self.qbar = kw.get("qbar", 0)
        self.qt = kw.get("qt", ""); self.kt = kw.get("kt", "")
        self.vm = []; self.vl = []
        self.exactw = kw.get('exactw', 1)
        self.cpf = kw.get('cpf', 0)
        self.cpf2 = kw.get('cpf2', 0)
        self.nopeel = kw.get('nopeel', 0)
    def A(self, s):
        for line in s.split("\n"): self.L.append(line)
    def label(self, base):
        self.uid += 1
        return "%s_%d" % (base, self.uid)
    def M(self, s, tag):
        self.A(s); self.vm.append(tag); self.vl.append(tag)
    def Mlo(self, s, tag):
        self.A(s); self.vl.append(tag)
    def Mhi(self, s, tag):
        self.A(s); self.vm.append(tag)
    def note(self, tag, nlo, nhi):
        self.vl += [tag] * nlo; self.vm += [tag] * nhi
    def wait(self, tag, extra=""):
        cnt = lambda v: len(v) - 1 - max(k for k, t in enumerate(v) if t == tag)
        nh, nl = cnt(self.vm), cnt(self.vl)
        assert max(nh, nl) <= 63
        if nh == nl or not self.exactw:
            self.A("s_waitcnt vmcnt(%d)%s" % (min(nh, nl), extra))
        else:
            lab = self.label("L_w")
            self.A("s_waitcnt vmcnt(%d)%s" % (max(nh, nl), extra))
            self.A("s_cmp_%s_u32 s%d, 2\ns_cbranch_scc1 %s\ns_waitcnt vmcnt(%d)\n%s:" % ("lt" if nl > nh else "ge", S_W, lab, min(nh, nl), lab))
    def cstamp(self, idx):
        if self.stamps: self.A("s_memtime s[100:101]\ns_waitcnt lgkmcnt(0)\nv_writelane_b32 v%d, s100, %d" % (V_STAMP, idx))
    def stamp(self, idx):
        if self.probe is not None:
            if idx != self.probe: return
        elif not self.stamps: return
        self.A("s_memrealtime s[100:101]\ns_waitcnt lgkmcnt(0)\nv_writelane_b32 v%d, s100, %d" % (V_STAMP, idx))

    def unpack(self, dst, src):
        self.A("v_lshlrev_b32 v%d, 16, v%d\nv_and_b32 v%d, 0xffff0000, v%d" % (dst, src, dst + 1, src))
    def round_pair(self, r):
        self.A("v_cvt_pk_bf16_f32 v%d, v%d, v%d" % (r + 1, r, r + 1))
        self.A("v_lshlrev_b32 v%d, 16, v%d\nv_and_b32 v%d, 0xffff0000, v%d" % (r, r + 1, r + 1, r + 1))
    def int_to_f32(self, regs, tmp):
        for r in regs: self.A("v_cvt_f32_i32 v%d, v%d" % (r, r))
        self.int_guard(regs, tmp)
    def int_guard(self, regs, tmp):
        A = self.A
        A("v_max3_f32 v%d, |v%d|, |v%d|, 0" % (tmp, regs[0], regs[1]))
        for k in range(2, len(regs), 2):
            A("v_max3_f32 v%d, |v%d|, |v%d|, v%d" % (tmp, regs[k], regs[k + 1], tmp))
        lab = self.label("L_big"); ret = self.label("L_bigret")
        A("v_cmp_lt_f32 vcc, 0x43800000, v%d" % tmp)
        A("s_cbranch_vccnz %s" % lab)
        A("%s:" % ret)
        self.cold.append((lab, ret, list(regs)))
    def unpack_tab(self, dst, src):
        for p in range(4):
            for k in range(4): self.unpack(dst + 8 * p + 2 * k, src + 4 * k + p)
    def rope_p(self, a, b, tab, t, u, o1, o2):
        A = self.A
        A("v_pk_mul_f32 %s, %s, %s" % (P2(t), P2(a), P2(tab)))
        A("v_pk_mul_f32 %s, %s, %s" % (P2(u), P2(b), P2(tab + 2)))
        A("v_pk_fma_f32 %s, %s, %s, %s neg_lo:[1,0,0] neg_hi:[1,0,0]" % (P2(t), P2(b), P2(tab + 4), P2(t)))
        A("v_pk_fma_f32 %s, %s, %s, %s" % (P2(u), P2(a), P2(tab + 6), P2(u)))
        A("v_cvt_pk_bf16_f32 v%d, v%d, v%d" % (o1, t, t + 1))
        A("v_cvt_pk_bf16_f32 v%d, v%d, v%d" % (o2, u, u + 1))
    def k_dequant(self, rb, sc, tmp):
        A = self.A
        z = sc + 1
        self.int_to_f32(list(range(rb, rb + 16)), tmp)
        A("v_lshlrev_b32 v%d, 16, v%d\nv_lshlrev_b32 v%d, 16, v%d" % (sc, sc, z, z))
        A("v_mul_f32 v%d, v%d, v%d" % (z, z, sc))
        for p in range(8):
            r = rb + 2 * p
            A("v_pk_fma_f32 %s, %s, %s, %s op_sel:[0,0,1] op_sel_hi:[1,0,1] neg_lo:[0,0,1] neg_hi:[0,0,1]" % (P2(r), P2(r), P2(sc), P2(sc)))
    def v_compute(self, x, rawsc, sc, nz, tmp, o):
        A = self.A
        for p in range(4):
            self.unpack(sc + 2 * p, rawsc + p)
            self.unpack(nz + 2 * p, rawsc + 4 + p)
        for p in range(4): A("v_pk_mul_f32 %s, %s, %s" % (P2(nz + 2 * p), P2(nz + 2 * p), P2(sc + 2 * p)))
    def v_compute2(self, x, sc, nz, tmp, o):
        A = self.A
        self.int_to_f32(list(range(x, x + 16)), tmp)
        for j in range(8):
            r = x + 2 * j; q = j & 1
            A("v_pk_fma_f32 %s, %s, %s, %s op_sel:[0,%d,%d] op_sel_hi:[1,%d,%d] neg_lo:[0,0,1] neg_hi:[0,0,1]" %
              (P2(r), P2(r), P2(sc + (j & ~1)), P2(nz + (j & ~1)), q, q, q, q))
        for e in range(2):
            for jj in range(4):
                A("v_cvt_pk_bf16_f32 v%d, v%d, v%d" % (o + 4 * e + jj, x + 4 * jj + e, x + 4 * jj + 2 + e))

    def raw_loads(self, f, rk, rv, bq, bs, bv, bvs, tagk, tagv):
        o = []
        for k, off in enumerate((0, 16, 256, 272)):
            o.append(("global_load_dwordx4 %s[%d:%d], v%d, %s offset:%d nt" % (f, rk + 4 * k, rk + 4 * k + 3, bq, sp(S_QK), off), tagk))
        o.append(("global_load_ushort %s%d, v%d, %s" % (f, rk + 16, bs, sp(S_KS)), tagk))
        o.append(("global_load_ushort %s%d, v%d, %s" % (f, rk + 17, bs, sp(S_KZ)), tagk))
        for j in range(8):
            off = (8 * (j >> 2) + (j & 3)) * 512 - 2560
            o.append(("global_load_dwordx2 %s[%d:%d], v%d, %s offset:%d nt" % (f, rv + 2 * j, rv + 2 * j + 1, bv, sp(S_QV), off), tagv))
        for q, sr in enumerate((S_VS, S_VZ)):
            for hf in range(2):
                r = rv + 16 + 4 * q + 2 * hf
                o.append(("global_load_dwordx2 %s[%d:%d], v%d, %s offset:%d" % (f, r, r + 1, bvs, sp(sr), 16 * hf), tagv))
        return o

    def flag_store(self, mask):
        A = self.A
        A("v_mov_b32 v%d, s%d" % (V_TMP3, S_TAG))
        A("s_mov_b64 exec, %d" % mask)
        self.M("global_store_dword v%d, v%d, %s sc1" % (V_FA, V_TMP3, sp(S_WS)), "flag")
        A("s_mov_b64 exec, -1")

    def poll(self, reg):
        A = self.A
        lab = self.label("L_poll"); done = self.label("L_polled")
        A("s_mov_b32 s%d, 0" % S_CNT)
        A("%s:" % lab)
        A("global_load_dword v%d, v%d, %s sc1" % (V_TMP0, reg, sp(S_WS)))
        A("s_add_u32 s%d, s%d, 1" % (S_CNT, S_CNT))
        A("s_waitcnt vmcnt(0)")
        A("v_cmp_ne_u32 vcc, s%d, v%d" % (S_TAG, V_TMP0))
        A("s_cbranch_vccz %s" % done)
        if self.sleep: A("s_sleep %d" % self.sleep)
        A("s_cmp_lt_u32 s%d, 0x8000\ns_cbranch_scc1 %s" % (S_CNT, lab))
        A("%s:" % done)

    XA, XB, XV = 16, 80, 96
    AQ, AT, LQ, VT, LW, LR, BO, BK = 32, 33, 34, 35, 36, 37, 38, 39
    KSC = 40
    BVO, PV0 = 44, 45
    RT, VS, RQ, TB, KT, UQ = 48, 64, 128, 176, 192, 224
    def k_raw_loads(self, slot, vaddr, tag, M):
        for k, off in enumerate((0, 16, 256, 272)):
            M("global_load_dwordx4 v[%d:%d], v%d, %s offset:%d nt" % (slot + 4 * k, slot + 4 * k + 3, vaddr, sp(S_QK), off), tag)
    def v_raw_loads(self, vaddr, tag, M):
        for j in range(8):
            M("global_load_dwordx4 v[%d:%d], v%d, %s offset:%d nt" % (self.XV + 4 * j, self.XV + 4 * j + 3, vaddr + (j >> 2), sp(S_QV), (j & 3) * 512), tag)

    def subs(self):
        A = self.A
        X, TB, KT = self.XA, self.TB, self.KT
        fs = self.fs
        O = TB + 4
        A("L_ktask1b:      ; raw data in slot B")
        for r in range(16): A("v_cvt_f32_i32 v%d, v%d" % (X + r, self.XB + r))
        A("s_mov_b32 s%d, s%d\nv_mov_b32 v%d, v%d\nv_mov_b32 v%d, v%d\ns_branch L_kbody" % (S_T3, S_ARG, self.KSC, self.KSC + 2, self.KSC + 1, self.KSC + 3))
        A("L_ktask1:")
        A("s_mov_b32 s%d, s%d\nv_mov_b32 v%d, v%d\nv_mov_b32 v%d, v%d\ns_branch L_kcvt" % (S_T3, S_ARG, self.KSC, self.KSC + 2, self.KSC + 1, self.KSC + 3))
        A("L_ktask0:")
        A("s_mov_b32 s%d, s%d" % (S_T3, S_KH))
        A("L_kcvt:")
        for r in range(16): A("v_cvt_f32_i32 v%d, v%d" % (X + r, X + r))
        A("L_kbody:")
        self.int_guard(list(range(X, X + 16)), TB)
        for p in range(8):
            r = X + 2 * p
            A("v_pk_fma_f32 %s, %s, %s, %s op_sel:[0,0,1] op_sel_hi:[1,0,1] neg_lo:[0,0,1] neg_hi:[0,0,1]" % (P2(r), P2(r), P2(self.KSC), P2(self.KSC)))
        for p in range(4): self.rope_p(X + 2 * p, X + 8 + 2 * p, KT + 8 * p, TB, TB + 2, O + p, O + 4 + p)
        A("ds_write_b128 v%d, v[%d:%d]\nds_write_b128 v%d, v[%d:%d] offset:1152" % (self.LW, O, O + 3, self.LW, O + 4, O + 7))
        A("v_add_u32 v%d, s%d, v%d" % (TB, S_T3, self.BO))
        A("s_lshr_b32 s%d, s%d, 12\ns_add_u32 s%d, s%d, s2\ns_lshl_b32 s%d, s%d, %d\ns_add_u32 s%d, s%d, %d" % (S_T0, S_T3, S_T0, S_T0, S_T0, S_T0, fs, S_T0, S_T0, WS_FK))
        A("s_waitcnt lgkmcnt(0)")
        A("ds_read_b128 v[%d:%d], v%d\nds_read_b128 v[%d:%d], v%d offset:1152" % (O, O + 3, self.LR, O + 4, O + 7, self.LR))
        A("v_mov_b32 v%d, s%d" % (V_FA, S_T0))
        A("s_waitcnt lgkmcnt(1)")
        A("global_store_dwordx4 v%d, v[%d:%d], %s sc1" % (TB, O, O + 3, sp(S_WS)))
        A("s_waitcnt lgkmcnt(0)")
        A("global_store_dwordx4 v%d, v[%d:%d], %s offset:256 sc1" % (TB, O + 4, O + 7, sp(S_WS)))
        A("s_setpc_b64 s[%d:%d]" % (S_RET, S_RET + 1))
        A("L_vtask:")
        x = self.XV
        self.int_to_f32(list(range(x, x + 32)), TB)
        sc, nz = self.VS, self.VS + 8
        for j in range(8):
            q = j & 1
            for hf in range(2):
                r = x + 4 * j + 2 * hf
                A("v_pk_fma_f32 %s, %s, %s, %s op_sel:[0,%d,%d] op_sel_hi:[1,%d,%d] neg_lo:[0,0,1] neg_hi:[0,0,1]" %
                  (P2(r), P2(r), P2(sc + (j & ~1)), P2(nz + (j & ~1)), q, q, q, q))
        for t in range(4):
            o = TB + 4 * t
            for jj in range(4): A("v_cvt_pk_bf16_f32 v%d, v%d, v%d" % (o + jj, x + 8 * jj + t, x + 8 * jj + 4 + t))
            A("global_store_dwordx4 v%d, v[%d:%d], %s offset:%d sc1" % (self.BVO, o, o + 3, sp(S_WS), 1024 * t))
        A("s_lshl_b32 s%d, s%d, 5\ns_add_u32 s%d, s%d, s%d\ns_lshl_b32 s%d, s%d, 2\ns_xor_b32 s%d, s%d, 2\ns_add_u32 s%d, s%d, s%d\ns_lshl_b32 s%d, s%d, %d\ns_add_u32 s%d, s%d, %d\nv_mov_b32 v%d, s%d" %
          (S_T0, S_H, S_T0, S_T0, S_I, S_T0, S_T0, S_T1, S_W, S_T0, S_T0, S_T1, S_T0, S_T0, fs, S_T0, S_T0, WS_FV, V_FA, S_T0))
        A("s_setpc_b64 s[%d:%d]" % (S_RET, S_RET + 1))

    def call_by_role(self, lo, hi):
        A = self.A
        l1 = self.label("L_role"); l2 = self.label("L_roled")
        A("s_cmp_ge_u32 s%d, 2\ns_cbranch_scc1 %s" % (S_W, l1))
        A("s_call_b64 s[%d:%d], %s\ns_branch %s" % (S_RET, S_RET + 1, lo, l2))
        A("%s:\ns_call_b64 s[%d:%d], %s\n%s:" % (l1, S_RET, S_RET + 1, hi, l2))

    def phase1(self):
        A = self.A; M = self.M
        ln = V_LANE
        AQ, AT, LQ, VT, LW, LR, BO, BK, KSC, BVO, PV0 = self.AQ, self.AT, self.LQ, self.VT, self.LW, self.LR, self.BO, self.BK, self.KSC, self.BVO, self.PV0
        RT, VS, RQ, TB, KT, UQ = self.RT, self.VS, self.RQ, self.TB, self.KT, self.UQ
        fs = self.fs
        nul = lambda s_, t_: A(s_)
        A("s_cmp_ge_u32 s2, 256\ns_cbranch_scc1 L_end")
        A("s_load_dwordx16 s[4:19], s[0:1], 0\ns_load_dwordx8 s[20:27], s[0:1], 64\ns_load_dwordx2 s[30:31], s[0:1], 104")
        A("v_lshrrev_b32 v1, 6, v0\nv_and_b32 v%d, 63, v0" % ln)
        hb = self.hshare
        if hb == 0:
            A("s_and_b32 s%d, s2, 7\ns_lshr_b32 s%d, s2, 3" % (S_H, S_I))
        else:
            m = (1 << hb) - 1
            A("s_and_b32 s%d, s2, %d\ns_bfe_u32 s%d, s2, 0x%x\ns_or_b32 s%d, s%d, s%d" % (S_H, 7 & ~m, S_T0, (hb << 16) | 3, S_H, S_H, S_T0))
            A("s_lshr_b32 s%d, s2, %d\ns_lshl_b32 s%d, s%d, %d\ns_and_b32 s%d, s2, %d\ns_or_b32 s%d, s%d, s%d" % (S_I, 3 + hb, S_I, S_I, hb, S_T0, m, S_I, S_I, S_T0))
        A("v_readfirstlane_b32 s%d, v1" % S_W)
        self.stamp(0)
        if self.cpf:
            A("; pull the kernel's code into L2 early: thread t reads one dword of code line t")
            A("s_getpc_b64 s[%d:%d]\nL_pc:" % (S_RET, S_RET + 1))
            A("s_sub_u32 s%d, s%d, L_pc-%s_kernel\ns_subb_u32 s%d, s%d, 0" % (S_RET, S_RET, NAME, S_RET + 1, S_RET + 1))
            A("v_lshlrev_b32 v14, 7, v0\nv_min_u32 v14, L_codeend-%s_kernel-4, v14" % NAME)
            A("global_load_dword v47, v14, s[%d:%d]" % (S_RET, S_RET + 1))
        A("s_lshr_b32 s%d, s2, 2\ns_and_b32 s%d, s%d, 2\ns_sub_u32 s%d, s%d, s%d\ns_and_b32 s%d, s%d, 3\ns_and_b32 s%d, s%d, 1\ns_lshl_b32 s%d, s%d, 2\ns_add_u32 s%d, s%d, s%d\ns_lshl_b32 s%d, s%d, 20" %
          (S_T0, S_T1, S_W, S_T1, S_T1, S_T0, S_T1, S_T1, S_T2, S_W, S_T2, S_T2, S_T1, S_T1, S_T2, S_KH, S_T1))
        A("s_xor_b32 s%d, s%d, 2\ns_sub_u32 s%d, s%d, s%d\ns_and_b32 s%d, s%d, 3\ns_lshr_b32 s%d, s%d, 1\ns_lshl_b32 s%d, s%d, 2\ns_add_u32 s%d, s%d, s%d" %
          (S_T0, S_W, S_T0, S_T0, S_H, S_T0, S_T0, S_T1, S_I, S_T1, S_T1, S_LIM, S_T0, S_T1))
        A("v_lshrrev_b32 v8, 3, v%d\nv_and_b32 v9, 7, v%d\nv_lshlrev_b32 v%d, 8, v8\nv_lshl_add_u32 v%d, v9, 4, v%d" % (ln, ln, AT, AT, AT))
        A("s_lshl_b32 s%d, s2, 11\nv_add_u32 v%d, s%d, v%d\nv_lshlrev_b32 v%d, 1, v%d\nv_add_u32 v10, s%d, v%d" % (S_T0, VT, S_T0, AT, BK, VT, S_KH, BK))
        A("s_lshl_b32 s%d, s%d, 20\ns_lshl_b32 s%d, s%d, 14\ns_add_u32 s%d, s%d, s%d\ns_and_b32 s%d, s%d, 1\ns_lshl_b32 s%d, s%d, 8\ns_add_u32 s%d, s%d, s%d" %
          (S_T0, S_H, S_T1, S_LIM, S_HOOK, S_T0, S_T1, S_T1, S_I, S_T1, S_T1, S_T0, S_HOOK, S_T1))
        A("v_lshrrev_b32 v12, 4, v%d\nv_and_b32 v13, 15, v%d\nv_lshlrev_b32 v%d, 11, v12\nv_lshl_add_u32 v%d, v13, 4, v%d\nv_add_u32 v%d, s%d, v%d\nv_add_u32 v%d, 8192, v%d" %
          (ln, ln, PV0, PV0, PV0, PV0, S_T0, PV0, PV0 + 1, PV0))
        A("; Q: row = 64 i + 16 w + 8u + (l>>3)")
        A("s_lshl_b32 s%d, s%d, 14\ns_lshl_b32 s%d, s%d, 12\ns_add_u32 s%d, s%d, s%d\ns_lshl_b32 s%d, s%d, 19\nv_add_u32 v%d, s%d, v%d\nv_add_u32 v%d, s%d, v%d" % (S_T0, S_I, S_T1, S_W, S_T0, S_T0, S_T1, S_T1, S_H, AT, S_T0, AT, AQ, S_T1, AT))
        A("s_cmp_ge_u32 s%d, 2" % S_W)
        A("s_waitcnt lgkmcnt(0)")
        A("s_cbranch_scc1 L_r0v")
        self.k_raw_loads(self.XA, 10, "r0", nul)
        for k, (sr, off) in enumerate(((S_KC, 0), (S_KC, 128), (S_KSN, 0), (S_KSN, 128))):
            A("global_load_dwordx4 v[%d:%d], v%d, %s offset:%d %s" % (RT + 4 * k, RT + 4 * k + 3, VT, sp(sr), off, self.kt))
        A("s_branch L_r0d\nL_r0v:")
        self.v_raw_loads(PV0, "r0", M)
        A("L_r0d:")
        if self.probe is not None: self.stamp(16)
        ql = []
        for u in range(2):
            b = RQ + 24 * u
            for (r, v, sr, off, m_) in ((0, AQ, S_Q, 0, "nt"), (4, AQ, S_Q, 128, "nt"), (8, AT, S_QC, 0, self.qt), (12, AT, S_QC, 128, self.qt), (16, AT, S_QS, 0, self.qt), (20, AT, S_QS, 128, self.qt)):
                ql.append(("global_load_dwordx4 v[%d:%d], v%d, %s offset:%d %s" % (b + r, b + r + 3, v, sp(sr), 2048 * u + off, m_), "q%d" % u))
        A("s_add_u32 s%d, s%d, 0x100000\ns_and_b32 s%d, s%d, 0x300000\ns_and_b32 s%d, s%d, 0x400000\ns_or_b32 s%d, s%d, s%d" % (S_T2, S_KH, S_T2, S_T2, S_ARG, S_KH, S_ARG, S_ARG, S_T2))
        A("s_lshl_b32 s%d, s2, 4\ns_lshr_b32 s%d, s%d, 8\ns_add_u32 s%d, s%d, s%d\ns_lshr_b32 s%d, s%d, 8\ns_add_u32 s%d, s%d, s%d" % (S_T0, S_T1, S_KH, S_T1, S_T1, S_T0, S_T2, S_ARG, S_T2, S_T2, S_T0))
        A("s_lshl_b32 s%d, s%d, 12\ns_lshl_b32 s%d, s%d, 6\ns_add_u32 s%d, s%d, s%d\ns_mov_b32 s%d, %d" % (S_T3, S_H, S_T0, S_LIM, S_T3, S_T3, S_T0, S_T0, WS_EPOCH))
        A("s_load_dword s%d, %s, s%d" % (S_TAG, sp(S_WS), S_T0))
        A("s_load_dwordx4 s[%d:%d], %s, s%d\ns_load_dwordx4 s[%d:%d], %s, s%d" % (S_SC, S_SC + 3, sp(S_KS), S_T1, S_SC + 4, S_SC + 7, sp(S_KZ), S_T1))
        A("s_load_dwordx4 s[%d:%d], %s, s%d\ns_load_dwordx4 s[%d:%d], %s, s%d" % (S_SC + 8, S_SC + 11, sp(S_KS), S_T2, S_SC + 12, S_SC + 15, sp(S_KZ), S_T2))
        A("s_load_dwordx16 s[48:63], %s, s%d\ns_load_dwordx16 s[84:99], %s, s%d" % (sp(S_VS), S_T3, sp(S_VZ), S_T3))
        for s, t in ql[:self.qsplit]: M(s, t)
        A("v_lshlrev_b32 v%d, 4, v%d\nv_add_u32 v%d, 4096, v%d\nv_add_u32 v%d, 8192, v%d\nv_add_u32 v%d, 12288, v%d" % (V_KOFF0, ln, V_KOFF1, V_KOFF0, V_VOFF0, V_KOFF0, V_VOFF1, V_KOFF0))
        A("s_mul_i32 s0, s%d, 2304" % S_W)
        A("v_mul_u32_u24 v%d, 144, v9\nv_lshl_add_u32 v%d, v8, 4, v%d\nv_add_u32 v%d, s0, v%d" % (LW, LW, LW, LW, LW))
        A("v_mul_u32_u24 v%d, 144, v8\nv_lshl_add_u32 v%d, v9, 4, v%d\nv_add_u32 v%d, s0, v%d" % (LR, LR, LR, LR, LR))
        A("; BO = (p>>2)*16384 + ((p>>1)&1)*4096 + (p&1)*128 + (l>>3)*512 + (l&7)*16")
        A("s_lshr_b32 s0, s2, 2\ns_lshl_b32 s0, s0, 14\ns_and_b32 s3, s2, 1\ns_lshl_b32 s3, s3, 7\ns_add_u32 s0, s0, s3\ns_and_b32 s3, s2, 2\ns_lshl_b32 s3, s3, 11\ns_add_u32 s0, s0, s3")
        A("v_lshlrev_b32 v%d, 9, v8\nv_lshl_add_u32 v%d, v9, 4, v%d\nv_add_u32 v%d, s0, v%d" % (BO, BO, BO, BO, BO))
        A("s_and_b32 s0, s%d, 1\ns_lshl_b32 s0, s0, 12\ns_add_u32 s0, s0, s%d\nv_add_u32 v%d, s0, v%d" % (S_I, S_HOOK, BVO, V_VOFF0))
        A("s_mul_i32 s0, s%d, 4160\ns_add_u32 s0, s0, %d" % (S_W, L_Q))
        A("v_lshrrev_b32 v12, 1, v9\nv_mul_u32_u24 v%d, 1040, v12\nv_and_b32 v12, 1, v9\nv_lshl_add_u32 v%d, v12, 9, v%d\nv_lshl_add_u32 v%d, v8, 4, v%d\nv_add_u32 v%d, s0, v%d" % (LQ, LQ, LQ, LQ, LQ, LQ, LQ))
        A("v_lshrrev_b32 v12, 5, v%d\nv_bfe_u32 v13, v%d, 3, 2\nv_lshl_add_u32 v13, v13, 2, s%d" % (ln, ln, S_W))
        A("v_subrev_u32 v14, s%d, v12\nv_and_b32 v14, 3, v14\nv_lshl_add_u32 v14, v13, 2, v14\nv_lshlrev_b32 v14, 2, v14\nv_add_u32 v14, v9, v14" % S_H)
        A("s_lshl_b32 s0, s%d, 8\nv_add_u32 v14, s0, v14\nv_lshlrev_b32 v14, %d, v14\nv_add_u32 v14, %d, v14" % (S_H, fs, WS_FK))
        A("v_and_b32 v15, 1, v9\nv_lshl_add_u32 v15, v13, 1, v15\nv_lshl_add_u32 v15, v15, 2, v12\ns_lshl_b32 s0, s%d, 7\nv_add_u32 v15, s0, v15\nv_lshlrev_b32 v15, %d, v15\nv_add_u32 v15, %d, v15" % (S_H, fs, WS_FV))
        A("v_cmp_gt_u32 vcc, 4, v9\ns_nop 1\nv_cndmask_b32 v%d, v15, v14, vcc" % V_PA)
        A("v_add_u32 v11, s%d, v%d\ns_cmp_lt_u32 s%d, 2\ns_cselect_b32 s0, s%d, s%d\nv_add_u32 v10, s0, v%d" % (S_ARG, BK, S_W, S_ARG, S_KH, BK))
        A("s_mov_b32 s%d, 0x%08x\ns_mov_b32 s%d, 0x%08x\ns_mov_b32 s%d, 0x%08x" % (S_C, f32bits(CSCALE), S_C + 1, f32bits(CSCALE), S_THR, f32bits(THRESH)))
        A("s_mov_b32 s%d, s%d\ns_mov_b32 s%d, s%d\ns_mov_b32 s%d, 0x800000\ns_mov_b32 s%d, 0x20000" % (S_SRD, S_WS, S_SRD + 1, S_WS + 1, S_SRD + 2, S_SRD + 3))
        A("v_and_b32 v12, 1, v8\nv_lshlrev_b32 v12, 4, v12")
        A("s_waitcnt lgkmcnt(0)")
        for g in range(4):
            if g: A("s_lshl_b64 exec, -1, %d" % (16 * g))
            for k in range(4): A("v_mov_b32 v%d, s%d" % (KSC + k, S_SC + 4 * k + g))
            for z, sb in enumerate((48, 84)):
                for k, dw in enumerate((0, 1, 8, 9)): A("v_mov_b32 v%d, s%d" % (TB + 4 * z + k, sb + dw + 2 * g))
        A("s_mov_b64 exec, -1")
        for k in range(4): A("v_lshrrev_b32 v%d, v12, v%d\nv_lshlrev_b32 v%d, 16, v%d" % (KSC + k, KSC + k, KSC + k, KSC + k))
        A("v_mul_f32 v%d, v%d, v%d\nv_mul_f32 v%d, v%d, v%d" % (KSC + 1, KSC + 1, KSC, KSC + 3, KSC + 3, KSC + 2))
        self.v_compute(None, TB, VS, VS + 8, None, None)
        A("s_lshl_b32 s%d, s%d, 20\ns_lshl_b32 s%d, s%d, 16\ns_add_u32 s%d, s%d, s%d" % (S_T0, S_H, S_T1, S_W, S_T0, S_T0, S_T1))
        A("s_lshr_b32 s%d, s%d, %d" % (S_T2, S_I, self.hshare))
        for n in range(4):
            A("s_add_u32 s%d, s%d, %d\ns_and_b32 s%d, s%d, 3\ns_lshl_b32 s%d, s%d, 18\ns_add_u32 s%d, s%d, s%d" % (S_T1, S_T2, n, S_T1, S_T1, S_T1, S_T1, S_TBL + 12 + n, S_T1, S_T0))
        for sg in range(4):
            A("s_sub_u32 s%d, %d, s%d\ns_and_b32 s%d, s%d, 3\ns_lshl_b32 s%d, s%d, 14" % (S_T1, sg, S_H, S_T1, S_T1, S_T1, S_T1))
            for n in range(4): A("s_add_u32 s%d, s%d, s%d" % (S_TBL + 4 * sg + n, S_TBL + 12 + n, S_T1))
        A("s_mov_b32 s%d, s%d\ns_mov_b32 s%d, s%d" % (S_TBL + 16, S_TBL, S_OFF, S_TBL))
        A("s_add_u32 s%d, s%d, 0x9e3779b9" % (S_TAG, S_TAG))
        A("s_and_b32 s0, s%d, 1\ns_lshl_b32 s0, s0, 13\nv_add_u32 v%d, s0, v%d" % (S_W, VT, V_KOFF0))
        def r2loads():
            A("s_cmp_ge_u32 s%d, 2\ns_cbranch_scc1 L_r2k" % S_W)
            self.v_raw_loads(PV0, "r2", self.Mlo)
            A("s_branch L_r2d\nL_r2k:")
            self.k_raw_loads(self.XB, 11, "r2", self.Mhi)
            A("L_r2d:")
        A("; ---- round 0")
        self.wait("r0")
        self.stamp(1)
        A("s_cmp_ge_u32 s%d, 2\ns_cbranch_scc1 L_t0v" % S_W)
        self.unpack_tab(KT, RT)
        A("s_call_b64 s[%d:%d], L_ktask0" % (S_RET, S_RET + 1))
        for k in range(8): A("ds_write_b128 v%d, v[%d:%d] offset:%d" % (VT, KT + 4 * k, KT + 4 * k + 3, L_TAB + 1024 * k))
        A("s_waitcnt lgkmcnt(0)\ns_branch L_t0d")
        A("L_t0v:\ns_call_b64 s[%d:%d], L_vtask\nL_t0d:" % (S_RET, S_RET + 1))
        self.note("st", 2, 4)
        self.stamp(13)
        A("s_barrier")
        for s, t in ql[self.qsplit:]: M(s, t)
        self.k_raw_loads(self.XA, 10, "r1", M)
        for k in range(8): A("ds_read_b128 v[%d:%d], v%d offset:%d" % (KT + 4 * k, KT + 4 * k + 3, VT, L_TAB + 1024 * k))
        for r in range(64): A("v_accvgpr_write_b32 a%d, 0" % (64 + r))
        self.wait("st")
        self.flag_store(1)
        self.stamp(2)
        if self.r2pos == 0: r2loads()
        def qunit(u):
            b = RQ + 24 * u
            self.unpack_tab(UQ, b + 8)
            x1, x2 = 48, 56
            for p in range(4):
                self.unpack(x1 + 2 * p, b + p); self.unpack(x2 + 2 * p, b + 4 + p)
            for p in range(8): A("v_pk_mul_f32 %s, %s, %s" % (P2(x1 + 2 * p), P2(x1 + 2 * p), sp(S_C)))
            for p in range(4): self.rope_p(x1 + 2 * p, x2 + 2 * p, UQ + 8 * p, 12, 14, b + p, b + 4 + p)
            A("ds_write_b128 v%d, v[%d:%d] offset:%d\nds_write_b128 v%d, v[%d:%d] offset:%d" % (LQ, b, b + 3, 128 * u, LQ, b + 4, b + 7, 128 * u + 256))
        self.wait("q0")
        self.stamp(10)
        qunit(0)
        if self.r2pos == 1: r2loads()
        self.wait("q1")
        qunit(1)
        self.stamp(14)
        A("; ---- round 1")
        self.wait("r1", " lgkmcnt(0)")
        self.call_by_role("L_ktask1", "L_ktask0")
        self.note("st", 2, 2)
        M("global_load_dword v%d, v%d, %s sc1" % (AQ, V_PA, sp(S_WS)), "poll")
        A("s_barrier")
        self.stamp(11)
        for f in range(16):
            a = 128 + 4 * f
            A("ds_read_b128 a[%d:%d], v%d offset:%d" % (a, a + 3, V_KOFF0, L_Q + f * 1040))
        self.wait("poll")
        self.stamp(15)
        self.flag_store(1)
        A("v_cmp_ne_u32 vcc, s%d, v%d\ns_mov_b32 s%d, vcc_lo\ns_cmp_lg_u32 vcc_lo, 0\ns_cbranch_scc1 L_nok0" % (S_TAG, AQ, S_HOOK))
        for k in range(8): A(self.ld_k(k, 0))
        A("L_nok0:")
        A("; ---- round 2")
        self.call_by_role("L_vtask", "L_ktask1b")
        self.stamp(12)
        A("s_cmp_eq_u32 s%d, 0\ns_cbranch_scc1 L_havek" % S_HOOK)
        A("s_mov_b32 s%d, 0" % S_CNT)
        A("L_p0:")
        A("global_load_dword v%d, v%d, %s sc1\ns_waitcnt vmcnt(0)" % (AQ, V_PA, sp(S_WS)))
        A("v_cmp_ne_u32 vcc, s%d, v%d\ns_cmp_eq_u32 vcc_lo, 0\ns_cbranch_scc1 L_p0d" % (S_TAG, AQ))
        if self.sleep: A("s_sleep %d" % self.sleep)
        A("s_add_u32 s%d, s%d, 1\ns_cmp_lt_u32 s%d, 0x8000\ns_cbranch_scc1 L_p0" % (S_CNT, S_CNT, S_CNT))
        A("L_p0d:")
        for k in range(8): A(self.ld_k(k, 0))
        A("s_waitcnt vmcnt(0)")
        A("L_havek:")
        self.stamp(3)
        self.vm = ["K0", "st2", "st2"]; self.vl = ["K0", "st2", "st2", "st2", "st2"]

    def mfma_qk(self, x, idx, kset, first_c=None):
        ql, kt, ks = idx >> 3, (idx >> 2) & 1, idx & 3
        s = V_S[x] + 8 * ql + 4 * kt; k = V_K[kset] + 4 * (4 * kt + ks); q = A_Q(x, ql, ks)
        if ks == 0: c = first_c if first_c is not None else "v[%d:%d]" % (V_NM[x] + 4 * ql, V_NM[x] + 4 * ql + 3)
        else: c = "v[%d:%d]" % (s, s + 3)
        return "v_mfma_f32_16x16x32_bf16 v[%d:%d], v[%d:%d], a[%d:%d], %s" % (s, s + 3, k, k + 3, q, q + 3, c)
    def mfma_pv(self, x, idx, vset, first=False):
        dt, ql = idx >> 1, idx & 1
        o = A_O(x, ql, dt); v = V_V[vset] + 4 * dt; p = V_P[x] + 4 * ql
        c = "0" if first else "a[%d:%d]" % (o, o + 3)
        return "v_mfma_f32_16x16x32_bf16 a[%d:%d], v[%d:%d], v[%d:%d], %s" % (o, o + 3, v, v + 3, p, p + 3, c)
    def ld_k(self, ks, kset):
        r = V_K[kset] + 4 * ks
        return "buffer_load_dwordx4 v[%d:%d], v%d, s[%d:%d], s%d offen offset:%d sc1" % (r, r + 3, V_KOFF0 + (ks >> 2), S_SRD, S_SRD + 3, S_OFF, (ks & 3) * 1024)
    def ld_v(self, idx, vset):
        r = V_V[vset] + 4 * idx
        return "buffer_load_dwordx4 v[%d:%d], v%d, s[%d:%d], s%d offen offset:%d sc1" % (r, r + 3, V_VOFF0 + (idx >> 2), S_SRD, S_SRD + 3, S_OFF, (idx & 3) * 1024)
    def op_e(self, x, r): return "v_exp_f32 v%d, v%d" % (V_E[x] + r, V_S[x] + r)
    def op_a(self, x, r):
        t = V_T[x] + (r >> 3)
        if (r & 7) == 1: return "v_add_f32 v%d, v%d, v%d" % (t, V_E[x] + r - 1, V_E[x] + r)
        return "v_add_f32 v%d, v%d, v%d" % (t, t, V_E[x] + r)
    def op_c(self, x, k): return "v_cvt_pk_bf16_f32 v%d, v%d, v%d" % (V_P[x] + k, V_E[x] + 2 * k, V_E[x] + 2 * k + 1)
    def op_f(self, x, ql): return "v_add_f32 v%d, v%d, v%d" % (V_L[x] + ql, V_L[x] + ql, V_T[x] + ql)
    def op_chk(self, x):
        stub = self.label("L_slow_%s" % x); ret = self.label("L_ret_%s" % x)
        self.stubs.append((stub, ret, x))
        return ["v_add_f32 v%d, v%d, v%d" % (V_CH, V_T[x], V_T[x] + 1), "v_cmp_nge_f32 vcc, s%d, v%d" % (S_THR, V_CH), "s_cbranch_vccnz %s" % stub, "%s:" % ret]

    PERIODS = {
      0: ["e0 F0", "e1 F1", "L", "L a1",
          "e2", "e3 c0", "L", "a2 a3 c1",
          "e4", "e5", "L", "a4 a5 c2",
          "e6 W1", "e7", "L", "a6 a7 c3",
          "e8", "e9", "L", "a9 c4",
          "e10", "e11", "L", "a10 a11 c5",
          "e12", "e13 W2", "L", "a12 a13 c6",
          "e14", "e15", "a14 a15", "c7 K"],
      1: ["e0", "e1", "L", "L",
          "e2", "e3", "F0 F1 a1", "L",
          "e4", "e5", "a2 a3 c0", "L",
          "W1 e6", "e7", "a4 a5 c1", "L",
          "e8", "e9", "a6 a7 c2", "L",
          "e10", "e11", "a9 c3 c4", "L",
          "S1 e12", "W2 e13", "L", "a10 a11 c5",
          "S2 e14", "e15", "a12 a13 a14 c6", "a15 c7 K"],
      2: ["e0", "e1", "L", "L",
          "e2", "e3", "F0 F1", "L",
          "e4", "a1 a2 c0", "e5", "L",
          "W1 e6", "a3 a4 c1", "e7", "L",
          "e8", "a5 a6 c2", "e9", "L",
          "e10", "a7 a9 c3", "e11", "L",
          "S1 e12", "a10 a11 c4", "L", "W2 e13",
          "S2 e14", "e15 c5", "a12 a13 a14 c6", "a15 c7 K"],
    }
    def iteration(self, jp, loads=True):
        out = []
        kq = (jp + 1) & 1
        for p in range(64):
            if p < 16: out.append(self.mfma_qk('a', p, kq))
            elif p < 32: out.append(self.mfma_pv('b', p - 16, jp))
            elif p < 48: out.append(self.mfma_qk('b', p - 32, kq))
            else: out.append(self.mfma_pv('a', p - 48, kq))
            if p < 16: x, u = 'b', p + 16
            elif p < 48: x, u = 'a', p - 16
            else: x, u = 'b', p - 48
            y = 'a' if x == 'b' else 'b'
            for tok in self.PERIOD[u].split():
                c = tok[0]
                if c == 'L':
                    li = sum(self.PERIOD[v].split().count('L') for v in range(u))
                    if not loads: continue
                    if x == 'a': out.append(self.ld_v(li, jp))
                    elif p >= 48: out.append(self.ld_k(li, kq))
                    else: out.append(self.ld_k(li, jp))
                elif c == 'e': out.append(self.op_e(x, int(tok[1:])))
                elif c == 'a': out.append(self.op_a(x, int(tok[1:])))
                elif c == 'c': out.append(self.op_c(x, int(tok[1:])))
                elif c == 'F': out.append(self.op_f(y, int(tok[1:])))
                elif c == 'K': out += self.op_chk(x)
                elif c == 'W':
                    if tok == "W2" and x == 'a': out.append("@WAIT_V")
                    if tok == "W1" and x == 'b': out.append("@WAIT_K")
                elif c == 'S':
                    if x == 'a' and loads: out.append("@" + tok)
        return out
    def emit_iter(self, it):
        A = self.A
        lastv = max(k for k, s in enumerate(it) if s.startswith("buffer_load") and (" v%d," % V_VOFF1) in s)
        for k, s in enumerate(it):
            if s == "@WAIT_V": s = "s_waitcnt vmcnt(%d)" % self.wv
            if s == "@WAIT_K": s = "s_waitcnt vmcnt(%d)" % self.wk
            if s == "@S1": s = "s_add_u32 m0, m0, 1"
            if s == "@S2":
                assert k > lastv
                s = "s_movrels_b32 s%d, s%d" % (S_OFF, S_TBL)
            A(s)
            if "@S1" not in it:
                if k == lastv - 5: A("s_add_u32 m0, m0, 1")
                if k == lastv + 6: A("s_movrels_b32 s%d, s%d" % (S_OFF, S_TBL))
    def compute_waits(self):
        self.stubs = []
        it = self.iteration(0)
        seq = it + it + it
        n = len(it)
        isld = lambda s: s.startswith("buffer_load")
        isv = lambda s: isld(s) and ((" v%d," % V_VOFF0) in s or (" v%d," % V_VOFF1) in s)
        kv = 2 * n + it.index("@WAIT_V")
        lastv = max(k for k in range(n, 2 * n) if isv(seq[k]))
        self.wv = sum(1 for k in range(lastv + 1, kv) if isld(seq[k]))
        kk = 2 * n + it.index("@WAIT_K")
        idx = [k for k, s in enumerate(it) if s.startswith("v_mfma")]
        lastk = 2 * n + max(k for k in range(0, idx[16]) if isld(it[k]))
        self.wk = sum(1 for k in range(lastk + 1, kk) if isld(seq[k]))
        self.uid = 0
        self.stubs = []

    def xlane(self, op, t0, t1):
        o = []
        for sw in ("v_permlane16_swap_b32", "v_permlane32_swap_b32"):
            o += ["v_mov_b32 v%d, v%d" % (t1, t0), "s_nop 1", "%s v%d, v%d" % (sw, t0, t1), "s_nop 1", "%s v%d, v%d, v%d" % (op, t0, t0, t1)]
        return o
    def max8(self, t0, s, last):
        o = ["v_max3_f32 v%d, v%d, v%d, v%d" % (t0, s, s + 1, s + 2)]
        o += ["v_max3_f32 v%d, v%d, v%d, v%d" % (t0, s + r, s + r + 1, t0) for r in (3, 5)]
        o.append("v_max3_f32 v%d, v%d, v%d, %s" % (t0, s + 7, t0, last))
        return o

    def slow_sub(self, x):
        A = self.A
        t0, t1 = V_TMP0, V_TMP1
        A("L_sub_%s:" % x)
        A("s_nop 7")
        for ql in range(2):
            s, nm = V_S[x] + 8 * ql, V_NM[x] + 4 * ql
            for l in self.max8(t0, s, "0") + self.xlane("v_max_f32", t0, t1): A(l)
            A("v_exp_f32 v%d, -v%d" % (t1, t0))
            for r in range(8): A("v_sub_f32 v%d, v%d, v%d" % (s + r, s + r, t0))
            for r in range(4): A("v_sub_f32 v%d, v%d, v%d" % (nm + r, nm + r, t0))
            A("v_mul_f32 v%d, v%d, v%d" % (V_L[x] + ql, V_L[x] + ql, t1))
            for r in range(32):
                a = A_O(x, ql, 0) + r
                A("v_accvgpr_read_b32 v%d, a%d\nv_mul_f32 v%d, v%d, v%d\nv_accvgpr_write_b32 a%d, v%d" % (V_TMP2, a, V_TMP2, V_TMP2, t1, a, V_TMP2))
        for r in range(16): A(self.op_e(x, r))
        A("s_nop 0")
        for r in range(16):
            if r & 7: A(self.op_a(x, r))
        for k in range(8): A(self.op_c(x, k))
        A("s_nop 3")
        A("s_setpc_b64 s[%d:%d]" % (S_RET, S_RET + 1))

    def first_fix(self, x):
        seqs = []
        for ql in range(2):
            s, nm = V_S[x] + 8 * ql, V_NM[x] + 4 * ql
            t0, t1 = V_T[x] + ql, V_E[x] + ql
            o = self.max8(t0, s, "v%d" % t0) + [l for l in self.xlane("v_max_f32", t0, t1)]
            o += ["v_sub_f32 v%d, v%d, v%d" % (s + r, s + r, t0) for r in range(8)]
            o += ["v_sub_f32 v%d, 0, v%d" % (nm + r, t0) for r in range(4)]
            seqs.append(o)
        out = []
        for a, b in zip(*seqs):
            if a == "s_nop 1": out.append("s_nop 0")
            else: out += [a, b]
        return out

    def main(self):
        A = self.A; M = self.M
        S_LL = S_KH
        FIN = 18 if self.nopeel else 16
        for r in range(4): A("v_mov_b32 v%d, 0" % (V_L['a'] + r))
        pend = [(self.ld_v(k, 0), "V0") for k in range(8)] + [None] + [(self.ld_k(k, 1), "K1") for k in range(8)] + [(self.ld_v(k, 1), "V1") for k in range(8)]
        def nxt():
            if not pend: return
            if pend[0] is None:
                pend.pop(0); A("s_mov_b32 s%d, s%d" % (S_OFF, S_TBL + 1))
            M(*pend.pop(0))
        for k in range(self.vpre): nxt()
        self.wait("K0", " lgkmcnt(0)")
        self.stamp(4)
        for idx in range(16):
            A(self.mfma_qk('a', idx, 0, first_c="0"))
            if idx & 1: nxt()
        seq = self.first_fix('a')
        for r in range(16):
            seq.append(self.op_e('a', r))
            if r >= 1 and ((r - 1) & 7): seq.append(self.op_a('a', r - 1))
        seq += [self.op_c('a', 0), self.op_a('a', 15)] + [self.op_c('a', k) for k in range(1, 8)]
        pos = 0
        for idx in range(16):
            A(self.mfma_qk('b', idx, 0, first_c="0"))
            if idx < 4:
                if idx & 1: nxt()
            else:
                for s in seq[pos:pos + 2]: A(s)
                pos += 2
        rest = seq[pos:] + self.first_fix('b')
        for k, s in enumerate(rest):
            A(s)
            if k % 4 == 3: nxt()
        while pend: nxt()
        A("s_mov_b32 m0, 2\ns_mov_b32 s%d, s%d" % (S_OFF, S_TBL + 2))
        self.wait("V0")
        self.flag_store(1)
        it = self.iteration(1)
        idx = [k for k, s in enumerate(it) if s.startswith("v_mfma")]
        tail = it[idx[48]:]
        nm = 0
        for s in tail:
            if s.startswith("v_mfma"):
                s = self.mfma_pv('a', nm, 0, first=True); nm += 1
            if s == "@WAIT_K": self.wait("K1"); continue
            if s.startswith("buffer_load"): M(s, "K2"); continue
            A(s)
        self.stamp(5)
        self.cstamp(8)
        A("global_load_dword v%d, v%d, %s sc1       ; stage-1 flags" % (V_FA, V_PA, sp(S_WS)))
        A("s_mov_b32 s%d, 4\ns_mov_b32 s%d, 3" % (S_LL, S_HOOK))
        if self.nopeel: A("s_mov_b32 s%d, 0x1000000\ns_mov_b32 s%d, 0x1000000" % (S_TBL + 16, S_TBL + 17))
        A(".p2align 6")
        A("L_loop:")
        self.emit_iter(self.iteration(0))
        if self.nopeel: A("s_cmp_eq_u32 m0, s%d\ns_cbranch_scc1 L_hook" % S_HOOK)
        else: A("s_cmp_eq_u32 m0, 3\ns_cbranch_scc1 L_hook")
        A("L_mid:")
        self.emit_iter(self.iteration(1))
        A("s_cmp_lt_u32 m0, s%d\ns_cbranch_scc1 L_loop" % S_LL)
        if not self.nopeel: A("s_cmp_eq_u32 m0, 16\ns_cbranch_scc1 L_tail")
        A("s_cmp_eq_u32 m0, 6\ns_cbranch_scc1 L_ev2")
        if self.cpf2:
            A("s_cmp_eq_u32 m0, 4\ns_cbranch_scc1 L_ev1")
            A("s_getpc_b64 s[%d:%d]\nL_pc2:" % (S_T0, S_T1))
            A("v_lshlrev_b32 v%d, 7, v%d\nv_min_u32 v%d, L_end-L_pc2, v%d" % (V_TMP0, V_LANE, V_TMP0, V_TMP0))
            A("global_load_dword v%d, v%d, s[%d:%d]" % (V_FA, V_TMP0, S_T0, S_T1))
            A("s_mov_b32 s%d, %d\ns_branch L_loop" % (S_LL, FIN))
            A("L_ev1:")
        A("v_and_b32 v%d, 4, v%d\nv_cmp_eq_u32 vcc, 0, v%d\nv_xor_b32 v%d, %d, v%d\nv_add_u32 v%d, %d, v%d\nv_cndmask_b32 v%d, v%d, v%d, vcc" %
          (V_TMP0, V_LANE, V_TMP0, V_TMP1, 8 << self.fs, V_PA, V_TMP2, 2 << self.fs, V_PA, V_PA, V_TMP2, V_TMP1))
        A("global_load_dword v%d, v%d, %s sc1" % (V_FA, V_PA, sp(S_WS)))
        A("s_mov_b32 s%d, 6\ns_branch L_loop" % S_LL)
        A("L_ev2:")
        A("s_mov_b32 s%d, %d" % (S_LL, self.cpf2 if self.cpf2 else FIN))
        A("v_cmp_ne_u32 vcc, s%d, v%d\ns_cbranch_vccz L_loop" % (S_TAG, V_FA))
        self.poll(V_PA)
        A("s_branch L_loop")
        A("L_hook:")
        if self.nopeel:
            A("s_cmp_eq_u32 m0, 17\ns_cbranch_scc1 L_tail\ns_mov_b32 s%d, 17" % S_HOOK)
        A("s_waitcnt vmcnt(16)")
        A("v_cmp_ne_u32 vcc, s%d, v%d\ns_cbranch_vccz L_mid" % (S_TAG, V_FA))
        self.poll(V_PA)
        A("s_branch L_mid")
        A("L_tail:")
        if not self.nopeel:
            it = self.iteration(0, loads=False)
            for s in it:
                if s in ("@WAIT_V", "@WAIT_K"): s = "s_waitcnt vmcnt(0)"
                A(s)
        it = self.iteration(1, loads=False)
        idx = [k for k, s in enumerate(it) if s.startswith("v_mfma")]
        prev = ""
        for k, s in enumerate(it[:idx[32]]):
            if s.startswith("v_mfma") and k < idx[16]: continue
            if k >= idx[16] and not s.startswith("v_mfma"):
                if s not in (self.op_f('b', 0), self.op_f('b', 1)): continue
            if s.startswith("@"): continue
            if prev.startswith("v_exp") and not s.startswith("v_exp"): A("s_nop 0")
            A(s); prev = s
        self.stamp(6)
        self.cstamp(9)

    def epilogue(self):
        A = self.A
        ln = V_LANE
        NM = V_NM['a']; LL = V_L['a']
        seqs = [self.xlane("v_add_f32", LL + q, 16 + q) for q in range(4)]
        for grp in zip(*seqs):
            if grp[0].startswith("s_nop"): continue
            for l in grp: A(l)
        for q in range(4): A("v_mov_b32 v%d, v%d" % (NM + 4 * q + 1, LL + q))
        A("s_lshl_b32 s%d, s%d, 11\ns_add_u32 s%d, s%d, %d" % (S_T0, S_W, S_T0, S_T0, L_ST))
        A("v_lshlrev_b32 v44, 3, v%d\nv_add_u32 v45, s%d, v44" % (ln, S_T0))
        for q in range(4): A("ds_write_b64 v45, v[%d:%d] offset:%d" % (NM + 4 * q, NM + 4 * q + 1, 512 * q))
        for d in range(4):
            skip = self.label("L_skipw")
            A("s_cmp_eq_u32 s%d, %d\ns_cbranch_scc1 %s" % (S_W, d, skip))
            A("s_sub_u32 s%d, s%d, %d\ns_and_b32 s%d, s%d, 3\ns_lshl_b32 s%d, s%d, 13\ns_add_u32 s%d, s%d, %d" %
              (S_T0, S_W, d + 1, S_T0, S_T0, S_T0, S_T0, S_T0, S_T0, L_O + d * 3 * 8192))
            A("v_add_u32 v45, s%d, v%d" % (S_T0, V_KOFF0))
            for idx in range(8): A("ds_write_b128 v45, a[%d:%d] offset:%d" % (32 * d + 4 * idx, 32 * d + 4 * idx + 3, idx * 1024))
            A("%s:" % skip)
        own = 128
        done = self.label("L_own")
        for d in range(4):
            nxt = self.label("L_ownn")
            if d < 3: A("s_cmp_lg_u32 s%d, %d\ns_cbranch_scc1 %s" % (S_W, d, nxt))
            for r in range(32): A("v_accvgpr_read_b32 v%d, a%d" % (own + r, 32 * d + r))
            if d < 3: A("s_branch %s\n%s:" % (done, nxt))
        A("%s:" % done)
        A("s_waitcnt lgkmcnt(0)\ns_barrier")
        st = 16
        A("s_lshl_b32 s%d, s%d, 9\ns_add_u32 s%d, s%d, %d" % (S_T1, S_W, S_T1, S_T1, L_ST))
        for k in range(4):
            A("s_add_u32 s%d, s%d, %d\ns_and_b32 s%d, s%d, 3\ns_lshl_b32 s%d, s%d, 11\ns_add_u32 s%d, s%d, s%d" % (S_T0, S_W, k, S_T0, S_T0, S_T0, S_T0, S_T0, S_T0, S_T1))
            A("v_add_u32 v45, s%d, v44" % S_T0)
            A("ds_read_b64 v[%d:%d], v45" % (st + 2 * k, st + 2 * k + 1))
        A("s_mul_i32 s%d, s%d, 24576\ns_add_u32 s%d, s%d, %d\nv_add_u32 v45, s%d, v%d" % (S_T0, S_W, S_T0, S_T0, L_O, S_T0, V_KOFF0))
        pb = 160
        order = [(k, idx) for idx in range(8) for k in range(3)]
        for (k, idx) in order[:9]:
            r = pb + (k * 8 + idx) * 4
            A("ds_read_b128 v[%d:%d], v45 offset:%d" % (r, r + 3, k * 8192 + idx * 1024))
        A("s_waitcnt lgkmcnt(9)")
        F = 32
        A("v_min3_f32 v40, v%d, v%d, v%d\nv_min_f32 v40, v40, v%d" % (st, st + 2, st + 4, st + 6))
        for k in range(4): A("v_sub_f32 v%d, v40, v%d" % (F + k, st + 2 * k))
        for k in range(4): A("v_exp_f32 v%d, v%d" % (F + k, F + k))
        A("s_nop 0")
        A("v_mul_f32 v41, v%d, v%d" % (F, st + 1))
        for k in range(1, 4): A("v_fmac_f32 v41, v%d, v%d" % (F + k, st + 2 * k + 1))
        A("v_rcp_f32 v41, v41\ns_nop 0")
        for k in range(4): A("v_mul_f32 v%d, v%d, v41" % (F + k, F + k))
        A("s_lshl_b32 s%d, s%d, 19\ns_lshl_b32 s%d, s%d, 14\ns_add_u32 s%d, s%d, s%d\ns_lshl_b32 s%d, s%d, 12\ns_add_u32 s%d, s%d, s%d" %
          (S_T0, S_H, S_T1, S_I, S_T0, S_T0, S_T1, S_T1, S_W, S_T0, S_T0, S_T1))
        A("v_and_b32 v42, 15, v%d\nv_lshrrev_b32 v43, 4, v%d\nv_lshlrev_b32 v42, 8, v42\nv_lshl_add_u32 v42, v43, 5, v42\nv_add_u32 v42, s%d, v42" % (ln, ln, S_T0))
        issued = 9
        ob = 48
        for idx in range(8):
            while issued < min(24, 3 * idx + 12):
                k, i2 = order[issued]
                r = pb + (k * 8 + i2) * 4
                A("ds_read_b128 v[%d:%d], v45 offset:%d" % (r, r + 3, k * 8192 + i2 * 1024)); issued += 1
            A("s_waitcnt lgkmcnt(%d)" % (issued - 3 * idx - 3))
            for pr in range(2):
                r = own + idx * 4 + 2 * pr
                A("v_pk_mul_f32 %s, %s, %s op_sel_hi:[1,0]" % (P2(r), P2(r), P2(F)))
                for k in range(3):
                    fr = F + 1 + k
                    q = fr & 1
                    A("v_pk_fma_f32 %s, %s, %s, %s op_sel:[0,%d,0] op_sel_hi:[1,%d,1]" % (P2(r), P2(pb + (k * 8 + idx) * 4 + 2 * pr), P2(fr & ~1), P2(r), q, q))
            if (idx & 3) == 3:
                dh = idx >> 2
                for hf in range(2):
                    o = ob + (dh * 2 + hf) * 4
                    for ii in range(2):
                        i = 2 * hf + ii
                        for tp in range(2):
                            A("v_cvt_pk_bf16_f32 v%d, v%d, v%d" % (o + 2 * ii + tp, own + (dh * 4 + 2 * tp) * 4 + i, own + (dh * 4 + 2 * tp + 1) * 4 + i))
                    A("global_store_dwordx4 v42, v[%d:%d], %s offset:%d %s" % (o, o + 3, sp(S_OUT), 128 * dh + 16 * hf, self.omod))

    def dump_stamps(self):
        if not self.stamps: return
        A = self.A
        A("s_lshl_b32 s100, s2, 2\ns_add_u32 s100, s100, s%d\ns_lshl_b32 s100, s100, 6\ns_add_u32 s100, s100, %d" % (S_W, 16 << 20))
        A("v_lshlrev_b32 v2, 2, v%d\nv_add_u32 v2, s100, v2\ns_mov_b64 exec, 0xffff" % V_LANE)
        A("global_store_dword v2, v%d, %s\ns_mov_b64 exec, -1" % (V_STAMP, sp(S_WS)))

    def build(self):
        A = self.A
        K = NAME + "_kernel"
        self.cold = []
        self.compute_waits()
        hdr = open("cdna_kernels/%s.s.ref" % NAME).read().split("; @launch")[0]
        A(hdr.rstrip("\n"))
        A("; @launch grid=(256,1,1) block=(256,1,1) lds=%d" % LDS_BYTES)
        A('.amdgcn_target "amdgcn-amd-amdhsa--gfx950"\n.text')
        A(".globl %s\n.p2align 8\n.type %s,@function\n%s:" % (K, K, K))
        self.phase1()
        self.main()
        self.epilogue()
        A("s_cmp_lg_u32 s2, 0\ns_cbranch_scc1 L_noep\ns_cmp_lg_u32 s%d, 0\ns_cbranch_scc1 L_noep" % S_W)
        A("v_mov_b32 v1, %d\nv_mov_b32 v2, s%d\ns_mov_b64 exec, 1\nglobal_store_dword v1, v2, %s sc1\ns_mov_b64 exec, -1" % (WS_EPOCH, S_TAG, sp(S_WS)))
        A("L_noep:")
        self.stamp(7)
        self.dump_stamps()
        if self.probe is not None:
            A("v_readlane_b32 s70, v7, %d\ns_nop 3\ns_add_u32 s70, s70, 3000\nL_spin:\ns_memrealtime s[100:101]\ns_waitcnt lgkmcnt(0)\ns_sub_u32 s71, s70, s100\ns_cmp_gt_i32 s71, 0\ns_cbranch_scc1 L_spin" % self.probe)
        A("L_end:\ns_endpgm")
        live = [st for st in self.stubs if any(s.endswith(' ' + st[0]) for s in self.L)]
        for stub, ret, x in live:
            A("%s:\ns_call_b64 s[%d:%d], L_sub_%s\ns_branch %s" % (stub, S_RET, S_RET + 1, x, ret))
        self.subs()
        A("L_codeend:")
        for lab, ret, regs in self.cold:
            A("%s:" % lab)
            for k in range(0, len(regs), 2): self.round_pair(regs[k])
            A("s_branch %s" % ret)
        self.slow_sub('a'); self.slow_sub('b')
        A('.section .rodata,"a"')
        A('.p2align 6\n.amdhsa_kernel %s\n  .amdhsa_next_free_vgpr 512\n  .amdhsa_next_free_sgpr 102\n  .amdhsa_accum_offset 256\n'
          '  .amdhsa_group_segment_fixed_size 0\n  .amdhsa_kernarg_size 112\n  .amdhsa_user_sgpr_count 2\n'
          '  .amdhsa_user_sgpr_kernarg_segment_ptr 1\n  .amdhsa_system_sgpr_workgroup_id_x 1\n.end_amdhsa_kernel' % K)
        return "\n".join(self.L) + "\n"

if __name__ == "__main__":
    ap = argparse.ArgumentParser()
    ap.add_argument("out")
    ap.add_argument("--stamps", action="store_true")
    ap.add_argument("--probe", type=int, default=None)
    ap.add_argument("--sleep", type=int, default=4)
    ap.add_argument("--fs", type=int, default=6)
    ap.add_argument("--omod", default="")
    ap.add_argument("--qsplit", type=int, default=9)
    ap.add_argument("--pollearly", action="store_true")
    ap.add_argument("--r2pos", type=int, default=0)
    ap.add_argument("--vpre", type=int, default=4)
    ap.add_argument("--r1pos", type=int, default=1)
    ap.add_argument("--period", type=int, default=0)
    ap.add_argument("--exactw", type=int, default=1)
    ap.add_argument("--cpf", type=int, default=0)
    ap.add_argument("--cpf2", type=int, default=0)
    ap.add_argument("--nopeel", type=int, default=0)
    ap.add_argument("--hshare", type=int, default=0)
    ap.add_argument("--qbar", type=int, default=0)
    ap.add_argument("--qt", default=""); ap.add_argument("--kt", default="")
    a = ap.parse_args()
    g = Gen(**vars(a))
    open(a.out, "w").write(g.build())
    print("wv", g.wv, "wk", g.wk, "lines", len(g.L))
```

```python
import sys, struct, argparse
NAME = "standalone__kv_cache_quant_pre_rope_vs_post_rope__prompt"
def f32bits(x): return struct.unpack("<I", struct.pack("<f", x))[0]
CSCALE = 1.4426950408889634 * (128.0 ** -0.5)

V_FA = 0
V_KOFF0, V_KOFF1, V_VOFF0, V_VOFF1 = 1, 2, 3, 4
V_LANE, V_PA, V_STAMP = 5, 6, 7
V_T = {'a': 8, 'b': 10}
V_L = {'a': 64, 'b': 66}
V_CH = 68
V_TMP0, V_TMP1, V_TMP2, V_TMP3 = 12, 13, 14, 15
V_S = {'a': 16, 'b': 32}
V_NM = {'a': 48, 'b': 56}
V_E = {'a': 80, 'b': 96}
V_P = {'a': 112, 'b': 120}
V_K = [128, 160]
V_V = [192, 224]
XI = {'a': 0, 'b': 1}
def A_O(x, ql, dt): return ((2 * XI[x] + ql) * 8 + dt) * 4
def A_Q(x, ql, ks): return 128 + ((2 * XI[x] + ql) * 4 + ks) * 4
V_VSC = 36
A_K0, A_K1, A_V = 192, 208, 224
S_Q, S_QK, S_KS, S_KZ, S_QV, S_VS, S_VZ, S_QC, S_QS, S_KC, S_KSN, S_OUT, S_DBG, S_WS = [4 + 2 * i for i in range(14)]
S_H, S_I, S_W, S_TAG = 32, 33, 34, 35
S_T0, S_T1, S_T2, S_T3 = 36, 37, 38, 39
S_SRD = 40
S_OFF, S_THR = 44, 45
S_C = 46
S_TBL = 48
S_RET = 66
S_SC = 68
S_CNT, S_LIM, S_HOOK = 3, 65, 28
S_KH, S_VK, S_ARG = 29, 0, 1
L_KT = 0
L_TAB = 9216
L_Q = L_TAB + 16384
L_ST = L_Q + 16 * 1040
L_O = L_ST + 8192
LDS_BYTES = L_O + 96 * 1024
WS_FK = 8 << 20
WS_FV = WS_FK + (512 << 10)
WS_EPOCH = 9 << 20
THRESH = 1024.0
P2 = lambda r: "v[%d:%d]" % (r, r + 1)
sp = lambda r: "s[%d:%d]" % (r, r + 1)

class Gen:
    def __init__(self, **kw):
        self.L = []
        self.uid = 0
        self.stamps = kw.get("stamps", False)
        self.probe = kw.get("probe", None)
        self.sleep = kw.get("sleep", 4)
        self.fs = kw.get("fs", 6)
        self.abl = kw.get("abl", "")
        self.omod = kw.get("omod", "")
        self.qsplit = kw.get("qsplit", 9)
        self.pollearly = kw.get("pollearly", False)
        self.r2pos = kw.get("r2pos", 0)
        self.vpre = kw.get("vpre", 4)
        self.r1pos = kw.get("r1pos", 1)
        self.PERIOD = self.PERIODS[kw.get("period", 0)]
        self.hshare = kw.get("hshare", 0)
        self.qbar = kw.get("qbar", 0)
        self.qt = kw.get("qt", ""); self.kt = kw.get("kt", "")
        self.vm = []; self.vl = []
        self.exactw = kw.get('exactw', 1)
        self.cpf = kw.get('cpf', 0)
        self.cpf2 = kw.get('cpf2', 0)
        self.nopeel = kw.get('nopeel', 0)
    def A(self, s):
        for line in s.split("\n"): self.L.append(line)
    def label(self, base):
        self.uid += 1
        return "%s_%d" % (base, self.uid)
    def M(self, s, tag):
        self.A(s); self.vm.append(tag); self.vl.append(tag)
    def Mlo(self, s, tag):
        self.A(s); self.vl.append(tag)
    def Mhi(self, s, tag):
        self.A(s); self.vm.append(tag)
    def note(self, tag, nlo, nhi):
        self.vl += [tag] * nlo; self.vm += [tag] * nhi
    def wait(self, tag, extra=""):
        cnt = lambda v: len(v) - 1 - max(k for k, t in enumerate(v) if t == tag)
        nh, nl = cnt(self.vm), cnt(self.vl)
        assert max(nh, nl) <= 63
        if nh == nl or not self.exactw:
            self.A("s_waitcnt vmcnt(%d)%s" % (min(nh, nl), extra))
        else:
            lab = self.label("L_w")
            self.A("s_waitcnt vmcnt(%d)%s" % (max(nh, nl), extra))
            self.A("s_cmp_%s_u32 s%d, 2\ns_cbranch_scc1 %s\ns_waitcnt vmcnt(%d)\n%s:" % ("lt" if nl > nh else "ge", S_W, lab, min(nh, nl), lab))
    def cstamp(self, idx):
        if self.stamps: self.A("s_memtime s[100:101]\ns_waitcnt lgkmcnt(0)\nv_writelane_b32 v%d, s100, %d" % (V_STAMP, idx))
    def stamp(self, idx):
        if self.probe is not None:
            if idx != self.probe: return
        elif not self.stamps: return
        self.A("s_memrealtime s[100:101]\ns_waitcnt lgkmcnt(0)\nv_writelane_b32 v%d, s100, %d" % (V_STAMP, idx))

    def unpack(self, dst, src):
        self.A("v_lshlrev_b32 v%d, 16, v%d\nv_and_b32 v%d, 0xffff0000, v%d" % (dst, src, dst + 1, src))
    def round_pair(self, r):
        self.A("v_cvt_pk_bf16_f32 v%d, v%d, v%d" % (r + 1, r, r + 1))
        self.A("v_lshlrev_b32 v%d, 16, v%d\nv_and_b32 v%d, 0xffff0000, v%d" % (r, r + 1, r + 1, r + 1))
    def int_to_f32(self, regs, tmp):
        for r in regs: self.A("v_cvt_f32_i32 v%d, v%d" % (r, r))
        self.int_guard(regs, tmp)
    def int_guard(self, regs, tmp):
        A = self.A
        A("v_max3_f32 v%d, |v%d|, |v%d|, 0" % (tmp, regs[0], regs[1]))
        for k in range(2, len(regs), 2):
            A("v_max3_f32 v%d, |v%d|, |v%d|, v%d" % (tmp, regs[k], regs[k + 1], tmp))
        lab = self.label("L_big"); ret = self.label("L_bigret")
        A("v_cmp_lt_f32 vcc, 0x43800000, v%d" % tmp)
        A("s_cbranch_vccnz %s" % lab)
        A("%s:" % ret)
        self.cold.append((lab, ret, list(regs)))
    def unpack_tab(self, dst, src):
        for p in range(4):
            for k in range(4): self.unpack(dst + 8 * p + 2 * k, src + 4 * k + p)
    def rope_p(self, a, b, tab, t, u, o1, o2):
        A = self.A
        A("v_pk_mul_f32 %s, %s, %s" % (P2(t), P2(a), P2(tab)))
        A("v_pk_mul_f32 %s, %s, %s" % (P2(u), P2(b), P2(tab + 2)))
        A("v_pk_fma_f32 %s, %s, %s, %s neg_lo:[1,0,0] neg_hi:[1,0,0]" % (P2(t), P2(b), P2(tab + 4), P2(t)))
        A("v_pk_fma_f32 %s, %s, %s, %s" % (P2(u), P2(a), P2(tab + 6), P2(u)))
        A("v_cvt_pk_bf16_f32 v%d, v%d, v%d" % (o1, t, t + 1))
        A("v_cvt_pk_bf16_f32 v%d, v%d, v%d" % (o2, u, u + 1))
    def k_dequant(self, rb, sc, tmp):
        A = self.A
        z = sc + 1
        self.int_to_f32(list(range(rb, rb + 16)), tmp)
        A("v_lshlrev_b32 v%d, 16, v%d\nv_lshlrev_b32 v%d, 16, v%d" % (sc, sc, z, z))
        A("v_mul_f32 v%d, v%d, v%d" % (z, z, sc))
        for p in range(8):
            r = rb + 2 * p
            A("v_pk_fma_f32 %s, %s, %s, %s op_sel:[0,0,1] op_sel_hi:[1,0,1] neg_lo:[0,0,1] neg_hi:[0,0,1]" % (P2(r), P2(r), P2(sc), P2(sc)))
    def v_compute(self, x, rawsc, sc, nz, tmp, o):
        A = self.A
        for p in range(4):
            self.unpack(sc + 2 * p, rawsc + p)
            self.unpack(nz + 2 * p, rawsc + 4 + p)
        for p in range(4): A("v_pk_mul_f32 %s, %s, %s" % (P2(nz + 2 * p), P2(nz + 2 * p), P2(sc + 2 * p)))
    def v_compute2(self, x, sc, nz, tmp, o):
        A = self.A
        self.int_to_f32(list(range(x, x + 16)), tmp)
        for j in range(8):
            r = x + 2 * j; q = j & 1
            A("v_pk_fma_f32 %s, %s, %s, %s op_sel:[0,%d,%d] op_sel_hi:[1,%d,%d] neg_lo:[0,0,1] neg_hi:[0,0,1]" %
              (P2(r), P2(r), P2(sc + (j & ~1)), P2(nz + (j & ~1)), q, q, q, q))
        for e in range(2):
            for jj in range(4):
                A("v_cvt_pk_bf16_f32 v%d, v%d, v%d" % (o + 4 * e + jj, x + 4 * jj + e, x + 4 * jj + 2 + e))

    def raw_loads(self, f, rk, rv, bq, bs, bv, bvs, tagk, tagv):
        o = []
        for k, off in enumerate((0, 16, 256, 272)):
            o.append(("global_load_dwordx4 %s[%d:%d], v%d, %s offset:%d nt" % (f, rk + 4 * k, rk + 4 * k + 3, bq, sp(S_QK), off), tagk))
        o.append(("global_load_ushort %s%d, v%d, %s" % (f, rk + 16, bs, sp(S_KS)), tagk))
        o.append(("global_load_ushort %s%d, v%d, %s" % (f, rk + 17, bs, sp(S_KZ)), tagk))
        for j in range(8):
            off = (8 * (j >> 2) + (j & 3)) * 512 - 2560
            o.append(("global_load_dwordx2 %s[%d:%d], v%d, %s offset:%d nt" % (f, rv + 2 * j, rv + 2 * j + 1, bv, sp(S_QV), off), tagv))
        for q, sr in enumerate((S_VS, S_VZ)):
            for hf in range(2):
                r = rv + 16 + 4 * q + 2 * hf
                o.append(("global_load_dwordx2 %s[%d:%d], v%d, %s offset:%d" % (f, r, r + 1, bvs, sp(sr), 16 * hf), tagv))
        return o

    def flag_store(self, mask):
        A = self.A
        A("v_mov_b32 v%d, s%d" % (V_TMP3, S_TAG))
        A("s_mov_b64 exec, %d" % mask)
        self.M("global_store_dword v%d, v%d, %s sc1" % (V_FA, V_TMP3, sp(S_WS)), "flag")
        A("s_mov_b64 exec, -1")

    def poll(self, reg):
        A = self.A
        lab = self.label("L_poll"); done = self.label("L_polled")
        A("s_mov_b32 s%d, 0" % S_CNT)
        A("%s:" % lab)
        A("global_load_dword v%d, v%d, %s sc1" % (V_TMP0, reg, sp(S_WS)))
        A("s_add_u32 s%d, s%d, 1" % (S_CNT, S_CNT))
        A("s_waitcnt vmcnt(0)")
        A("v_cmp_ne_u32 vcc, s%d, v%d" % (S_TAG, V_TMP0))
        A("s_cbranch_vccz %s" % done)
        if self.sleep: A("s_sleep %d" % self.sleep)
        A("s_cmp_lt_u32 s%d, 0x8000\ns_cbranch_scc1 %s" % (S_CNT, lab))
        A("%s:" % done)

    XA, XB, XV = 16, 80, 96
    AQ, AT, LQ, VT, LW, LR, BO, BK = 32, 33, 34, 35, 36, 37, 38, 39
    KSC = 40
    BVO, PV0 = 44, 45
    RT, VS, RQ, TB, KT, UQ = 48, 64, 128, 176, 192, 224
    def k_raw_loads(self, slot, vaddr, tag, M):
        for k, off in enumerate((0, 16, 256, 272)):
            M("global_load_dwordx4 v[%d:%d], v%d, %s offset:%d nt" % (slot + 4 * k, slot + 4 * k + 3, vaddr, sp(S_QK), off), tag)
    def v_raw_loads(self, vaddr, tag, M):
        for j in range(8):
            M("global_load_dwordx4 v[%d:%d], v%d, %s offset:%d nt" % (self.XV + 4 * j, self.XV + 4 * j + 3, vaddr + (j >> 2), sp(S_QV), (j & 3) * 512), tag)

    def subs(self):
        A = self.A
        X, TB, KT = self.XA, self.TB, self.KT
        fs = self.fs
        O = TB + 4
        A("L_ktask1b:      ; raw data in slot B")
        for r in range(16): A("v_cvt_f32_i32 v%d, v%d" % (X + r, self.XB + r))
        A("s_mov_b32 s%d, s%d\nv_mov_b32 v%d, v%d\nv_mov_b32 v%d, v%d\ns_branch L_kbody" % (S_T3, S_ARG, self.KSC, self.KSC + 2, self.KSC + 1, self.KSC + 3))
        A("L_ktask1:")
        A("s_mov_b32 s%d, s%d\nv_mov_b32 v%d, v%d\nv_mov_b32 v%d, v%d\ns_branch L_kcvt" % (S_T3, S_ARG, self.KSC, self.KSC + 2, self.KSC + 1, self.KSC + 3))
        A("L_ktask0:")
        A("s_mov_b32 s%d, s%d" % (S_T3, S_KH))
        A("L_kcvt:")
        for r in range(16): A("v_cvt_f32_i32 v%d, v%d" % (X + r, X + r))
        A("L_kbody:")
        self.int_guard(list(range(X, X + 16)), TB)
        for p in range(8):
            r = X + 2 * p
            A("v_pk_fma_f32 %s, %s, %s, %s op_sel:[0,0,1] op_sel_hi:[1,0,1] neg_lo:[0,0,1] neg_hi:[0,0,1]" % (P2(r), P2(r), P2(self.KSC), P2(self.KSC)))
        for p in range(4): self.rope_p(X + 2 * p, X + 8 + 2 * p, KT + 8 * p, TB, TB + 2, O + p, O + 4 + p)
        A("ds_write_b128 v%d, v[%d:%d]\nds_write_b128 v%d, v[%d:%d] offset:1152" % (self.LW, O, O + 3, self.LW, O + 4, O + 7))
        A("v_add_u32 v%d, s%d, v%d" % (TB, S_T3, self.BO))
        A("s_lshr_b32 s%d, s%d, 12\ns_add_u32 s%d, s%d, s2\ns_lshl_b32 s%d, s%d, %d\ns_add_u32 s%d, s%d, %d" % (S_T0, S_T3, S_T0, S_T0, S_T0, S_T0, fs, S_T0, S_T0, WS_FK))
        A("s_waitcnt lgkmcnt(0)")
        A("ds_read_b128 v[%d:%d], v%d\nds_read_b128 v[%d:%d], v%d offset:1152" % (O, O + 3, self.LR, O + 4, O + 7, self.LR))
        A("v_mov_b32 v%d, s%d" % (V_FA, S_T0))
        A("s_waitcnt lgkmcnt(1)")
        A("global_store_dwordx4 v%d, v[%d:%d], %s sc1" % (TB, O, O + 3, sp(S_WS)))
        A("s_waitcnt lgkmcnt(0)")
        A("global_store_dwordx4 v%d, v[%d:%d], %s offset:256 sc1" % (TB, O + 4, O + 7, sp(S_WS)))
        A("s_setpc_b64 s[%d:%d]" % (S_RET, S_RET + 1))
        A("L_vtask:")
        x = self.XV
        self.int_to_f32(list(range(x, x + 32)), TB)
        sc, nz = self.VS, self.VS + 8
        for j in range(8):
            q = j & 1
            for hf in range(2):
                r = x + 4 * j + 2 * hf
                A("v_pk_fma_f32 %s, %s, %s, %s op_sel:[0,%d,%d] op_sel_hi:[1,%d,%d] neg_lo:[0,0,1] neg_hi:[0,0,1]" %
                  (P2(r), P2(r), P2(sc + (j & ~1)), P2(nz + (j & ~1)), q, q, q, q))
        for t in range(4):
            o = TB + 4 * t
            for jj in range(4): A("v_cvt_pk_bf16_f32 v%d, v%d, v%d" % (o + jj, x + 8 * jj + t, x + 8 * jj + 4 + t))
            A("global_store_dwordx4 v%d, v[%d:%d], %s offset:%d sc1" % (self.BVO, o, o + 3, sp(S_WS), 1024 * t))
        A("s_lshl_b32 s%d, s%d, 5\ns_add_u32 s%d, s%d, s%d\ns_lshl_b32 s%d, s%d, 2\ns_xor_b32 s%d, s%d, 2\ns_add_u32 s%d, s%d, s%d\ns_lshl_b32 s%d, s%d, %d\ns_add_u32 s%d, s%d, %d\nv_mov_b32 v%d, s%d" %
          (S_T0, S_H, S_T0, S_T0, S_I, S_T0, S_T0, S_T1, S_W, S_T0, S_T0, S_T1, S_T0, S_T0, fs, S_T0, S_T0, WS_FV, V_FA, S_T0))
        A("s_setpc_b64 s[%d:%d]" % (S_RET, S_RET + 1))

    def call_by_role(self, lo, hi):
        A = self.A
        l1 = self.label("L_role"); l2 = self.label("L_roled")
        A("s_cmp_ge_u32 s%d, 2\ns_cbranch_scc1 %s" % (S_W, l1))
        A("s_call_b64 s[%d:%d], %s\ns_branch %s" % (S_RET, S_RET + 1, lo, l2))
        A("%s:\ns_call_b64 s[%d:%d], %s\n%s:" % (l1, S_RET, S_RET + 1, hi, l2))

    def phase1(self):
        A = self.A; M = self.M
        ln = V_LANE
        AQ, AT, LQ, VT, LW, LR, BO, BK, KSC, BVO, PV0 = self.AQ, self.AT, self.LQ, self.VT, self.LW, self.LR, self.BO, self.BK, self.KSC, self.BVO, self.PV0
        RT, VS, RQ, TB, KT, UQ = self.RT, self.VS, self.RQ, self.TB, self.KT, self.UQ
        fs = self.fs
        nul = lambda s_, t_: A(s_)
        if self.cpf:
            A("; pull the kernel's code into L2 early: thread t reads one dword of code line t")
            A("s_getpc_b64 s[%d:%d]\nL_pc:" % (S_RET, S_RET + 1))
            A("v_lshlrev_b32 v14, 7, v0\nv_min_u32 v14, L_codeend-L_pc-4, v14")
        A("s_cmp_ge_u32 s2, 256\ns_cbranch_scc1 L_end")
        if self.cpf: A("global_load_dword v47, v14, s[%d:%d]" % (S_RET, S_RET + 1))
        A("s_load_dwordx16 s[4:19], s[0:1], 0\ns_load_dwordx8 s[20:27], s[0:1], 64\ns_load_dwordx2 s[30:31], s[0:1], 104")
        A("v_lshrrev_b32 v1, 6, v0\nv_and_b32 v%d, 63, v0" % ln)
        hb = self.hshare
        if hb == 0:
            A("s_and_b32 s%d, s2, 7\ns_lshr_b32 s%d, s2, 3" % (S_H, S_I))
        else:
            m = (1 << hb) - 1
            A("s_and_b32 s%d, s2, %d\ns_bfe_u32 s%d, s2, 0x%x\ns_or_b32 s%d, s%d, s%d" % (S_H, 7 & ~m, S_T0, (hb << 16) | 3, S_H, S_H, S_T0))
            A("s_lshr_b32 s%d, s2, %d\ns_lshl_b32 s%d, s%d, %d\ns_and_b32 s%d, s2, %d\ns_or_b32 s%d, s%d, s%d" % (S_I, 3 + hb, S_I, S_I, hb, S_T0, m, S_I, S_I, S_T0))
        A("v_readfirstlane_b32 s%d, v1" % S_W)
        self.stamp(0)
        A("s_lshr_b32 s%d, s2, 2\ns_and_b32 s%d, s%d, 2\ns_sub_u32 s%d, s%d, s%d\ns_and_b32 s%d, s%d, 3\ns_and_b32 s%d, s%d, 1\ns_lshl_b32 s%d, s%d, 2\ns_add_u32 s%d, s%d, s%d\ns_lshl_b32 s%d, s%d, 20" %
          (S_T0, S_T1, S_W, S_T1, S_T1, S_T0, S_T1, S_T1, S_T2, S_W, S_T2, S_T2, S_T1, S_T1, S_T2, S_KH, S_T1))
        A("s_xor_b32 s%d, s%d, 2\ns_sub_u32 s%d, s%d, s%d\ns_and_b32 s%d, s%d, 3\ns_lshr_b32 s%d, s%d, 1\ns_lshl_b32 s%d, s%d, 2\ns_add_u32 s%d, s%d, s%d" %
          (S_T0, S_W, S_T0, S_T0, S_H, S_T0, S_T0, S_T1, S_I, S_T1, S_T1, S_LIM, S_T0, S_T1))
        A("v_lshrrev_b32 v8, 3, v%d\nv_and_b32 v9, 7, v%d\nv_lshlrev_b32 v%d, 8, v8\nv_lshl_add_u32 v%d, v9, 4, v%d" % (ln, ln, AT, AT, AT))
        A("s_lshl_b32 s%d, s2, 11\nv_add_u32 v%d, s%d, v%d\nv_lshlrev_b32 v%d, 1, v%d\nv_add_u32 v10, s%d, v%d" % (S_T0, VT, S_T0, AT, BK, VT, S_KH, BK))
        A("s_lshl_b32 s%d, s%d, 20\ns_lshl_b32 s%d, s%d, 14\ns_add_u32 s%d, s%d, s%d\ns_and_b32 s%d, s%d, 1\ns_lshl_b32 s%d, s%d, 8\ns_add_u32 s%d, s%d, s%d" %
          (S_T0, S_H, S_T1, S_LIM, S_HOOK, S_T0, S_T1, S_T1, S_I, S_T1, S_T1, S_T0, S_HOOK, S_T1))
        A("v_lshrrev_b32 v12, 4, v%d\nv_and_b32 v13, 15, v%d\nv_lshlrev_b32 v%d, 11, v12\nv_lshl_add_u32 v%d, v13, 4, v%d\nv_add_u32 v%d, s%d, v%d\nv_add_u32 v%d, 8192, v%d" %
          (ln, ln, PV0, PV0, PV0, PV0, S_T0, PV0, PV0 + 1, PV0))
        A("s_cmp_ge_u32 s%d, 2" % S_W)
        A("s_waitcnt lgkmcnt(0)")
        A("s_cbranch_scc1 L_r0v")
        self.k_raw_loads(self.XA, 10, "r0", nul)
        for k, (sr, off) in enumerate(((S_KC, 0), (S_KC, 128), (S_KSN, 0), (S_KSN, 128))):
            A("global_load_dwordx4 v[%d:%d], v%d, %s offset:%d %s" % (RT + 4 * k, RT + 4 * k + 3, VT, sp(sr), off, self.kt))
        A("s_branch L_r0d\nL_r0v:")
        self.v_raw_loads(PV0, "r0", M)
        A("L_r0d:")
        if self.probe is not None: self.stamp(16)
        A("; Q: row = 64 i + 16 w + 8u + (l>>3)")
        A("s_lshl_b32 s%d, s%d, 14\ns_lshl_b32 s%d, s%d, 12\ns_add_u32 s%d, s%d, s%d\ns_lshl_b32 s%d, s%d, 19\nv_add_u32 v%d, s%d, v%d\nv_add_u32 v%d, s%d, v%d" % (S_T0, S_I, S_T1, S_W, S_T0, S_T0, S_T1, S_T1, S_H, AT, S_T0, AT, AQ, S_T1, AT))
        ql = []
        for u in range(2):
            b = RQ + 24 * u
            for (r, v, sr, off, m_) in ((0, AQ, S_Q, 0, "nt"), (4, AQ, S_Q, 128, "nt"), (8, AT, S_QC, 0, self.qt), (12, AT, S_QC, 128, self.qt), (16, AT, S_QS, 0, self.qt), (20, AT, S_QS, 128, self.qt)):
                ql.append(("global_load_dwordx4 v[%d:%d], v%d, %s offset:%d %s" % (b + r, b + r + 3, v, sp(sr), 2048 * u + off, m_), "q%d" % u))
        A("s_add_u32 s%d, s%d, 0x100000\ns_and_b32 s%d, s%d, 0x300000\ns_and_b32 s%d, s%d, 0x400000\ns_or_b32 s%d, s%d, s%d" % (S_T2, S_KH, S_T2, S_T2, S_ARG, S_KH, S_ARG, S_ARG, S_T2))
        A("s_lshl_b32 s%d, s2, 4\ns_lshr_b32 s%d, s%d, 8\ns_add_u32 s%d, s%d, s%d\ns_lshr_b32 s%d, s%d, 8\ns_add_u32 s%d, s%d, s%d" % (S_T0, S_T1, S_KH, S_T1, S_T1, S_T0, S_T2, S_ARG, S_T2, S_T2, S_T0))
        A("s_lshl_b32 s%d, s%d, 12\ns_lshl_b32 s%d, s%d, 6\ns_add_u32 s%d, s%d, s%d\ns_mov_b32 s%d, %d" % (S_T3, S_H, S_T0, S_LIM, S_T3, S_T3, S_T0, S_T0, WS_EPOCH))
        A("s_load_dword s%d, %s, s%d" % (S_TAG, sp(S_WS), S_T0))
        A("s_load_dwordx4 s[%d:%d], %s, s%d\ns_load_dwordx4 s[%d:%d], %s, s%d" % (S_SC, S_SC + 3, sp(S_KS), S_T1, S_SC + 4, S_SC + 7, sp(S_KZ), S_T1))
        A("s_load_dwordx4 s[%d:%d], %s, s%d\ns_load_dwordx4 s[%d:%d], %s, s%d" % (S_SC + 8, S_SC + 11, sp(S_KS), S_T2, S_SC + 12, S_SC + 15, sp(S_KZ), S_T2))
        A("s_load_dwordx16 s[48:63], %s, s%d\ns_load_dwordx16 s[84:99], %s, s%d" % (sp(S_VS), S_T3, sp(S_VZ), S_T3))
        for s, t in ql[:self.qsplit]: M(s, t)
        A("v_lshlrev_b32 v%d, 4, v%d\nv_add_u32 v%d, 4096, v%d\nv_add_u32 v%d, 8192, v%d\nv_add_u32 v%d, 12288, v%d" % (V_KOFF0, ln, V_KOFF1, V_KOFF0, V_VOFF0, V_KOFF0, V_VOFF1, V_KOFF0))
        A("s_mul_i32 s0, s%d, 2304" % S_W)
        A("v_mul_u32_u24 v%d, 144, v9\nv_lshl_add_u32 v%d, v8, 4, v%d\nv_add_u32 v%d, s0, v%d" % (LW, LW, LW, LW, LW))
        A("v_mul_u32_u24 v%d, 144, v8\nv_lshl_add_u32 v%d, v9, 4, v%d\nv_add_u32 v%d, s0, v%d" % (LR, LR, LR, LR, LR))
        A("; BO = (p>>2)*16384 + ((p>>1)&1)*4096 + (p&1)*128 + (l>>3)*512 + (l&7)*16")
        A("s_lshr_b32 s0, s2, 2\ns_lshl_b32 s0, s0, 14\ns_and_b32 s3, s2, 1\ns_lshl_b32 s3, s3, 7\ns_add_u32 s0, s0, s3\ns_and_b32 s3, s2, 2\ns_lshl_b32 s3, s3, 11\ns_add_u32 s0, s0, s3")
        A("v_lshlrev_b32 v%d, 9, v8\nv_lshl_add_u32 v%d, v9, 4, v%d\nv_add_u32 v%d, s0, v%d" % (BO, BO, BO, BO, BO))
        A("s_and_b32 s0, s%d, 1\ns_lshl_b32 s0, s0, 12\ns_add_u32 s0, s0, s%d\nv_add_u32 v%d, s0, v%d" % (S_I, S_HOOK, BVO, V_VOFF0))
        A("s_mul_i32 s0, s%d, 4160\ns_add_u32 s0, s0, %d" % (S_W, L_Q))
        A("v_lshrrev_b32 v12, 1, v9\nv_mul_u32_u24 v%d, 1040, v12\nv_and_b32 v12, 1, v9\nv_lshl_add_u32 v%d, v12, 9, v%d\nv_lshl_add_u32 v%d, v8, 4, v%d\nv_add_u32 v%d, s0, v%d" % (LQ, LQ, LQ, LQ, LQ, LQ, LQ))
        A("v_lshrrev_b32 v12, 5, v%d\nv_bfe_u32 v13, v%d, 3, 2\nv_lshl_add_u32 v13, v13, 2, s%d" % (ln, ln, S_W))
        A("v_subrev_u32 v14, s%d, v12\nv_and_b32 v14, 3, v14\nv_lshl_add_u32 v14, v13, 2, v14\nv_lshlrev_b32 v14, 2, v14\nv_add_u32 v14, v9, v14" % S_H)
        A("s_lshl_b32 s0, s%d, 8\nv_add_u32 v14, s0, v14\nv_lshlrev_b32 v14, %d, v14\nv_add_u32 v14, %d, v14" % (S_H, fs, WS_FK))
        A("v_and_b32 v15, 1, v9\nv_lshl_add_u32 v15, v13, 1, v15\nv_lshl_add_u32 v15, v15, 2, v12\ns_lshl_b32 s0, s%d, 7\nv_add_u32 v15, s0, v15\nv_lshlrev_b32 v15, %d, v15\nv_add_u32 v15, %d, v15" % (S_H, fs, WS_FV))
        A("v_cmp_gt_u32 vcc, 4, v9\ns_nop 1\nv_cndmask_b32 v%d, v15, v14, vcc" % V_PA)
        A("v_add_u32 v11, s%d, v%d\ns_cmp_lt_u32 s%d, 2\ns_cselect_b32 s0, s%d, s%d\nv_add_u32 v10, s0, v%d" % (S_ARG, BK, S_W, S_ARG, S_KH, BK))
        A("s_mov_b32 s%d, 0x%08x\ns_mov_b32 s%d, 0x%08x\ns_mov_b32 s%d, 0x%08x" % (S_C, f32bits(CSCALE), S_C + 1, f32bits(CSCALE), S_THR, f32bits(THRESH)))
        A("s_mov_b32 s%d, s%d\ns_mov_b32 s%d, s%d\ns_mov_b32 s%d, 0x800000\ns_mov_b32 s%d, 0x20000" % (S_SRD, S_WS, S_SRD + 1, S_WS + 1, S_SRD + 2, S_SRD + 3))
        A("v_and_b32 v12, 1, v8\nv_lshlrev_b32 v12, 4, v12")
        A("s_waitcnt lgkmcnt(0)")
        for g in range(4):
            if g: A("s_lshl_b64 exec, -1, %d" % (16 * g))
            for k in range(4): A("v_mov_b32 v%d, s%d" % (KSC + k, S_SC + 4 * k + g))
            for z, sb in enumerate((48, 84)):
                for k, dw in enumerate((0, 1, 8, 9)): A("v_mov_b32 v%d, s%d" % (TB + 4 * z + k, sb + dw + 2 * g))
        A("s_mov_b64 exec, -1")
        for k in range(4): A("v_lshrrev_b32 v%d, v12, v%d\nv_lshlrev_b32 v%d, 16, v%d" % (KSC + k, KSC + k, KSC + k, KSC + k))
        A("v_mul_f32 v%d, v%d, v%d\nv_mul_f32 v%d, v%d, v%d" % (KSC + 1, KSC + 1, KSC, KSC + 3, KSC + 3, KSC + 2))
        self.v_compute(None, TB, VS, VS + 8, None, None)
        A("s_lshl_b32 s%d, s%d, 20\ns_lshl_b32 s%d, s%d, 16\ns_add_u32 s%d, s%d, s%d" % (S_T0, S_H, S_T1, S_W, S_T0, S_T0, S_T1))
        A("s_lshr_b32 s%d, s%d, %d" % (S_T2, S_I, self.hshare))
        for n in range(4):
            A("s_add_u32 s%d, s%d, %d\ns_and_b32 s%d, s%d, 3\ns_lshl_b32 s%d, s%d, 18\ns_add_u32 s%d, s%d, s%d" % (S_T1, S_T2, n, S_T1, S_T1, S_T1, S_T1, S_TBL + 12 + n, S_T1, S_T0))
        for sg in range(4):
            A("s_sub_u32 s%d, %d, s%d\ns_and_b32 s%d, s%d, 3\ns_lshl_b32 s%d, s%d, 14" % (S_T1, sg, S_H, S_T1, S_T1, S_T1, S_T1))
            for n in range(4): A("s_add_u32 s%d, s%d, s%d" % (S_TBL + 4 * sg + n, S_TBL + 12 + n, S_T1))
        A("s_mov_b32 s%d, 0x1000000\ns_mov_b32 s%d, s%d" % (S_TBL + 16, S_OFF, S_TBL))
        A("s_add_u32 s%d, s%d, 0x9e3779b9" % (S_TAG, S_TAG))
        A("s_and_b32 s0, s%d, 1\ns_lshl_b32 s0, s0, 13\nv_add_u32 v%d, s0, v%d" % (S_W, VT, V_KOFF0))
        def r2loads():
            A("s_cmp_ge_u32 s%d, 2\ns_cbranch_scc1 L_r2k" % S_W)
            self.v_raw_loads(PV0, "r2", self.Mlo)
            A("s_branch L_r2d\nL_r2k:")
            self.k_raw_loads(self.XB, 11, "r2", self.Mhi)
            A("L_r2d:")
        A("; ---- round 0")
        self.wait("r0")
        self.stamp(1)
        A("s_cmp_ge_u32 s%d, 2\ns_cbranch_scc1 L_t0v" % S_W)
        self.unpack_tab(KT, RT)
        A("s_call_b64 s[%d:%d], L_ktask0" % (S_RET, S_RET + 1))
        for k in range(8): A("ds_write_b128 v%d, v[%d:%d] offset:%d" % (VT, KT + 4 * k, KT + 4 * k + 3, L_TAB + 1024 * k))
        A("s_waitcnt lgkmcnt(0)\ns_branch L_t0d")
        A("L_t0v:\ns_call_b64 s[%d:%d], L_vtask\nL_t0d:" % (S_RET, S_RET + 1))
        self.note("st", 2, 4)
        self.stamp(13)
        A("s_barrier")
        for s, t in ql[self.qsplit:]: M(s, t)
        self.k_raw_loads(self.XA, 10, "r1", M)
        for k in range(8): A("ds_read_b128 v[%d:%d], v%d offset:%d" % (KT + 4 * k, KT + 4 * k + 3, VT, L_TAB + 1024 * k))
        for r in range(64): A("v_accvgpr_write_b32 a%d, 0" % (64 + r))
        self.wait("st")
        self.flag_store(1)
        self.stamp(2)
        if self.r2pos == 0: r2loads()
        def qunit(u):
            b = RQ + 24 * u
            self.unpack_tab(UQ, b + 8)
            x1, x2 = 48, 56
            for p in range(4):
                self.unpack(x1 + 2 * p, b + p); self.unpack(x2 + 2 * p, b + 4 + p)
            for p in range(8): A("v_pk_mul_f32 %s, %s, %s" % (P2(x1 + 2 * p), P2(x1 + 2 * p), sp(S_C)))
            for p in range(4): self.rope_p(x1 + 2 * p, x2 + 2 * p, UQ + 8 * p, 12, 14, b + p, b + 4 + p)
            A("ds_write_b128 v%d, v[%d:%d] offset:%d\nds_write_b128 v%d, v[%d:%d] offset:%d" % (LQ, b, b + 3, 128 * u, LQ, b + 4, b + 7, 128 * u + 256))
        self.wait("q0")
        self.stamp(10)
        qunit(0)
        if self.r2pos == 1: r2loads()
        self.wait("q1")
        qunit(1)
        self.stamp(14)
        A("; ---- round 1")
        self.wait("r1", " lgkmcnt(0)")
        self.call_by_role("L_ktask1", "L_ktask0")
        self.note("st", 2, 2)
        M("global_load_dword v%d, v%d, %s sc1" % (AQ, V_PA, sp(S_WS)), "poll")
        A("s_barrier")
        self.stamp(11)
        for f in range(16):
            a = 128 + 4 * f
            A("ds_read_b128 a[%d:%d], v%d offset:%d" % (a, a + 3, V_KOFF0, L_Q + f * 1040))
        self.wait("poll")
        self.stamp(15)
        self.flag_store(1)
        A("v_cmp_ne_u32 vcc, s%d, v%d\ns_mov_b32 s%d, vcc_lo\ns_cmp_lg_u32 vcc_lo, 0\ns_cbranch_scc1 L_nok0" % (S_TAG, AQ, S_HOOK))
        for k in range(8): A(self.ld_k(k, 0))
        A("L_nok0:")
        A("; ---- round 2")
        self.call_by_role("L_vtask", "L_ktask1b")
        self.stamp(12)
        A("s_cmp_eq_u32 s%d, 0\ns_cbranch_scc1 L_havek" % S_HOOK)
        A("s_mov_b32 s%d, 0" % S_CNT)
        A("L_p0:")
        A("global_load_dword v%d, v%d, %s sc1\ns_waitcnt vmcnt(0)" % (AQ, V_PA, sp(S_WS)))
        A("v_cmp_ne_u32 vcc, s%d, v%d\ns_cmp_eq_u32 vcc_lo, 0\ns_cbranch_scc1 L_p0d" % (S_TAG, AQ))
        if self.sleep: A("s_sleep %d" % self.sleep)
        A("s_add_u32 s%d, s%d, 1\ns_cmp_lt_u32 s%d, 0x8000\ns_cbranch_scc1 L_p0" % (S_CNT, S_CNT, S_CNT))
        A("L_p0d:")
        for k in range(8): A(self.ld_k(k, 0))
        A("s_waitcnt vmcnt(0)")
        A("L_havek:")
        self.stamp(3)
        self.vm = ["K0", "st2", "st2"]; self.vl = ["K0", "st2", "st2", "st2", "st2"]

    def mfma_qk(self, x, idx, kset, first_c=None):
        ql, kt, ks = idx >> 3, (idx >> 2) & 1, idx & 3
        s = V_S[x] + 8 * ql + 4 * kt; k = V_K[kset] + 4 * (4 * kt + ks); q = A_Q(x, ql, ks)
        if ks == 0: c = first_c if first_c is not None else "v[%d:%d]" % (V_NM[x] + 4 * ql, V_NM[x] + 4 * ql + 3)
        else: c = "v[%d:%d]" % (s, s + 3)
        return "v_mfma_f32_16x16x32_bf16 v[%d:%d], v[%d:%d], a[%d:%d], %s" % (s, s + 3, k, k + 3, q, q + 3, c)
    def mfma_pv(self, x, idx, vset, first=False):
        dt, ql = idx >> 1, idx & 1
        o = A_O(x, ql, dt); v = V_V[vset] + 4 * dt; p = V_P[x] + 4 * ql
        c = "0" if first else "a[%d:%d]" % (o, o + 3)
        return "v_mfma_f32_16x16x32_bf16 a[%d:%d], v[%d:%d], v[%d:%d], %s" % (o, o + 3, v, v + 3, p, p + 3, c)
    def ld_k(self, ks, kset):
        r = V_K[kset] + 4 * ks
        return "buffer_load_dwordx4 v[%d:%d], v%d, s[%d:%d], s%d offen offset:%d sc1" % (r, r + 3, V_KOFF0 + (ks >> 2), S_SRD, S_SRD + 3, S_OFF, (ks & 3) * 1024)
    def ld_v(self, idx, vset):
        r = V_V[vset] + 4 * idx
        return "buffer_load_dwordx4 v[%d:%d], v%d, s[%d:%d], s%d offen offset:%d sc1" % (r, r + 3, V_VOFF0 + (idx >> 2), S_SRD, S_SRD + 3, S_OFF, (idx & 3) * 1024)
    def op_e(self, x, r): return "v_exp_f32 v%d, v%d" % (V_E[x] + r, V_S[x] + r)
    def op_a(self, x, r):
        t = V_T[x] + (r >> 3)
        if (r & 7) == 1: return "v_add_f32 v%d, v%d, v%d" % (t, V_E[x] + r - 1, V_E[x] + r)
        return "v_add_f32 v%d, v%d, v%d" % (t, t, V_E[x] + r)
    def op_c(self, x, k): return "v_cvt_pk_bf16_f32 v%d, v%d, v%d" % (V_P[x] + k, V_E[x] + 2 * k, V_E[x] + 2 * k + 1)
    def op_f(self, x, ql): return "v_add_f32 v%d, v%d, v%d" % (V_L[x] + ql, V_L[x] + ql, V_T[x] + ql)
    def op_chk(self, x):
        stub = self.label("L_slow_%s" % x); ret = self.label("L_ret_%s" % x)
        self.stubs.append((stub, ret, x))
        return ["v_add_f32 v%d, v%d, v%d" % (V_CH, V_T[x], V_T[x] + 1), "v_cmp_nge_f32 vcc, s%d, v%d" % (S_THR, V_CH), "s_cbranch_vccnz %s" % stub, "%s:" % ret]

    PERIODS = {
      0: ["e0 F0", "e1 F1", "L", "L a1",
          "e2", "e3 c0", "L", "a2 a3 c1",
          "e4", "e5", "L", "a4 a5 c2",
          "e6 W1", "e7", "L", "a6 a7 c3",
          "e8", "e9", "L", "a9 c4",
          "e10", "e11", "L", "a10 a11 c5",
          "e12", "e13 W2", "L", "a12 a13 c6",
          "e14", "e15", "a14 a15", "c7 K"],
      1: ["e0", "e1", "L", "L",
          "e2", "e3", "F0 F1 a1", "L",
          "e4", "e5", "a2 a3 c0", "L",
          "W1 e6", "e7", "a4 a5 c1", "L",
          "e8", "e9", "a6 a7 c2", "L",
          "e10", "e11", "a9 c3 c4", "L",
          "S1 e12", "W2 e13", "L", "a10 a11 c5",
          "S2 e14", "e15", "a12 a13 a14 c6", "a15 c7 K"],
      2: ["e0", "e1", "L", "L",
          "e2", "e3", "F0 F1", "L",
          "e4", "a1 a2 c0", "e5", "L",
          "W1 e6", "a3 a4 c1", "e7", "L",
          "e8", "a5 a6 c2", "e9", "L",
          "e10", "a7 a9 c3", "e11", "L",
          "S1 e12", "a10 a11 c4", "L", "W2 e13",
          "S2 e14", "e15 c5", "a12 a13 a14 c6", "a15 c7 K"],
    }
    def iteration(self, jp, loads=True):
        out = []
        kq = (jp + 1) & 1
        for p in range(64):
            if p < 16: out.append(self.mfma_qk('a', p, kq))
            elif p < 32: out.append(self.mfma_pv('b', p - 16, jp))
            elif p < 48: out.append(self.mfma_qk('b', p - 32, kq))
            else: out.append(self.mfma_pv('a', p - 48, kq))
            if p < 16: x, u = 'b', p + 16
            elif p < 48: x, u = 'a', p - 16
            else: x, u = 'b', p - 48
            y = 'a' if x == 'b' else 'b'
            for tok in self.PERIOD[u].split():
                c = tok[0]
                if c == 'L':
                    li = sum(self.PERIOD[v].split().count('L') for v in range(u))
                    if not loads: continue
                    if x == 'a': out.append(self.ld_v(li, jp))
                    elif p >= 48: out.append(self.ld_k(li, kq))
                    else: out.append(self.ld_k(li, jp))
                elif c == 'e': out.append(self.op_e(x, int(tok[1:])))
                elif c == 'a': out.append(self.op_a(x, int(tok[1:])))
                elif c == 'c': out.append(self.op_c(x, int(tok[1:])))
                elif c == 'F': out.append(self.op_f(y, int(tok[1:])))
                elif c == 'K': out += self.op_chk(x)
                elif c == 'W':
                    if tok == "W2" and x == 'a': out.append("@WAIT_V")
                    if tok == "W1" and x == 'b': out.append("@WAIT_K")
                elif c == 'S':
                    if x == 'a' and loads: out.append("@" + tok)
        return out
    def emit_iter(self, it):
        A = self.A
        lastv = max(k for k, s in enumerate(it) if s.startswith("buffer_load") and (" v%d," % V_VOFF1) in s)
        for k, s in enumerate(it):
            if s == "@WAIT_V": s = "s_waitcnt vmcnt(%d)" % self.wv
            if s == "@WAIT_K": s = "s_waitcnt vmcnt(%d)" % self.wk
            if s == "@S1": s = "s_add_u32 m0, m0, 1"
            if s == "@S2":
                assert k > lastv
                s = "s_movrels_b32 s%d, s%d" % (S_OFF, S_TBL)
            A(s)
            if "@S1" not in it:
                if k == lastv - 5: A("s_add_u32 m0, m0, 1")
                if k == lastv + 6: A("s_movrels_b32 s%d, s%d" % (S_OFF, S_TBL))
    def compute_waits(self):
        self.stubs = []
        it = self.iteration(0)
        seq = it + it + it
        n = len(it)
        isld = lambda s: s.startswith("buffer_load")
        isv = lambda s: isld(s) and ((" v%d," % V_VOFF0) in s or (" v%d," % V_VOFF1) in s)
        kv = 2 * n + it.index("@WAIT_V")
        lastv = max(k for k in range(n, 2 * n) if isv(seq[k]))
        self.wv = sum(1 for k in range(lastv + 1, kv) if isld(seq[k]))
        kk = 2 * n + it.index("@WAIT_K")
        idx = [k for k, s in enumerate(it) if s.startswith("v_mfma")]
        lastk = 2 * n + max(k for k in range(0, idx[16]) if isld(it[k]))
        self.wk = sum(1 for k in range(lastk + 1, kk) if isld(seq[k]))
        self.uid = 0
        self.stubs = []

    def xlane(self, op, t0, t1):
        o = []
        for sw in ("v_permlane16_swap_b32", "v_permlane32_swap_b32"):
            o += ["v_mov_b32 v%d, v%d" % (t1, t0), "s_nop 1", "%s v%d, v%d" % (sw, t0, t1), "s_nop 1", "%s v%d, v%d, v%d" % (op, t0, t0, t1)]
        return o
    def max8(self, t0, s, last):
        o = ["v_max3_f32 v%d, v%d, v%d, v%d" % (t0, s, s + 1, s + 2)]
        o += ["v_max3_f32 v%d, v%d, v%d, v%d" % (t0, s + r, s + r + 1, t0) for r in (3, 5)]
        o.append("v_max3_f32 v%d, v%d, v%d, %s" % (t0, s + 7, t0, last))
        return o

    def slow_sub(self, x):
        A = self.A
        t0, t1 = V_TMP0, V_TMP1
        A("L_sub_%s:" % x)
        A("s_nop 7")
        for ql in range(2):
            s, nm = V_S[x] + 8 * ql, V_NM[x] + 4 * ql
            for l in self.max8(t0, s, "0") + self.xlane("v_max_f32", t0, t1): A(l)
            A("v_exp_f32 v%d, -v%d" % (t1, t0))
            for r in range(8): A("v_sub_f32 v%d, v%d, v%d" % (s + r, s + r, t0))
            for r in range(4): A("v_sub_f32 v%d, v%d, v%d" % (nm + r, nm + r, t0))
            A("v_mul_f32 v%d, v%d, v%d" % (V_L[x] + ql, V_L[x] + ql, t1))
            for r in range(32):
                a = A_O(x, ql, 0) + r
                A("v_accvgpr_read_b32 v%d, a%d\nv_mul_f32 v%d, v%d, v%d\nv_accvgpr_write_b32 a%d, v%d" % (V_TMP2, a, V_TMP2, V_TMP2, t1, a, V_TMP2))
        for r in range(16): A(self.op_e(x, r))
        A("s_nop 0")
        for r in range(16):
            if r & 7: A(self.op_a(x, r))
        for k in range(8): A(self.op_c(x, k))
        A("s_nop 3")
        A("s_setpc_b64 s[%d:%d]" % (S_RET, S_RET + 1))

    def first_fix(self, x):
        seqs = []
        for ql in range(2):
            s, nm = V_S[x] + 8 * ql, V_NM[x] + 4 * ql
            t0, t1 = V_T[x] + ql, V_E[x] + ql
            o = self.max8(t0, s, "v%d" % t0) + [l for l in self.xlane("v_max_f32", t0, t1)]
            o += ["v_sub_f32 v%d, v%d, v%d" % (s + r, s + r, t0) for r in range(8)]
            o += ["v_sub_f32 v%d, 0, v%d" % (nm + r, t0) for r in range(4)]
            seqs.append(o)
        out = []
        for a, b in zip(*seqs):
            if a == "s_nop 1": out.append("s_nop 0")
            else: out += [a, b]
        return out

    def main(self):
        A = self.A; M = self.M
        S_LL = S_KH
        FIN = 18 if self.nopeel else 16
        for r in range(4): A("v_mov_b32 v%d, 0" % (V_L['a'] + r))
        pend = [(self.ld_v(k, 0), "V0") for k in range(8)] + [None] + [(self.ld_k(k, 1), "K1") for k in range(8)] + [(self.ld_v(k, 1), "V1") for k in range(8)]
        def nxt():
            if not pend: return
            if pend[0] is None:
                pend.pop(0); A("s_mov_b32 s%d, s%d" % (S_OFF, S_TBL + 1))
            M(*pend.pop(0))
        for k in range(self.vpre): nxt()
        self.wait("K0", " lgkmcnt(0)")
        self.stamp(4)
        for idx in range(16):
            A(self.mfma_qk('a', idx, 0, first_c="0"))
            if idx & 1: nxt()
        seq = self.first_fix('a')
        for r in range(16):
            seq.append(self.op_e('a', r))
            if r >= 1 and ((r - 1) & 7): seq.append(self.op_a('a', r - 1))
        seq += [self.op_c('a', 0), self.op_a('a', 15)] + [self.op_c('a', k) for k in range(1, 8)]
        pos = 0
        for idx in range(16):
            A(self.mfma_qk('b', idx, 0, first_c="0"))
            if idx < 4:
                if idx & 1: nxt()
            else:
                for s in seq[pos:pos + 2]: A(s)
                pos += 2
        rest = seq[pos:] + self.first_fix('b')
        for k, s in enumerate(rest):
            A(s)
            if k % 4 == 3: nxt()
        while pend: nxt()
        A("s_mov_b32 m0, 2\ns_mov_b32 s%d, s%d" % (S_OFF, S_TBL + 2))
        self.wait("V0")
        self.flag_store(1)
        it = self.iteration(1)
        idx = [k for k, s in enumerate(it) if s.startswith("v_mfma")]
        tail = it[idx[48]:]
        nm = 0
        for s in tail:
            if s.startswith("v_mfma"):
                s = self.mfma_pv('a', nm, 0, first=True); nm += 1
            if s == "@WAIT_K": self.wait("K1"); continue
            if s.startswith("buffer_load"): M(s, "K2"); continue
            A(s)
        self.stamp(5)
        self.cstamp(8)
        A("global_load_dword v%d, v%d, %s sc1       ; stage-1 flags" % (V_FA, V_PA, sp(S_WS)))
        A("s_mov_b32 s%d, 4\ns_mov_b32 s%d, 3" % (S_LL, S_HOOK))
        if self.nopeel: A("s_mov_b32 s%d, 0x1000000\ns_mov_b32 s%d, 0x1000000" % (S_TBL + 16, S_TBL + 17))
        A(".p2align 6")
        A("L_loop:")
        self.emit_iter(self.iteration(0))
        if self.nopeel: A("s_cmp_eq_u32 m0, s%d\ns_cbranch_scc1 L_hook" % S_HOOK)
        else: A("s_cmp_eq_u32 m0, 3\ns_cbranch_scc1 L_hook")
        A("L_mid:")
        self.emit_iter(self.iteration(1))
        A("s_cmp_lt_u32 m0, s%d\ns_cbranch_scc1 L_loop" % S_LL)
        if not self.nopeel: A("s_cmp_eq_u32 m0, 16\ns_cbranch_scc1 L_tail")
        A("s_cmp_eq_u32 m0, 6\ns_cbranch_scc1 L_ev2")
        if self.cpf2:
            A("s_cmp_eq_u32 m0, 4\ns_cbranch_scc1 L_ev1")
            A("s_getpc_b64 s[%d:%d]\nL_pc2:" % (S_T0, S_T1))
            A("v_lshlrev_b32 v%d, 7, v%d\nv_min_u32 v%d, L_end-L_pc2, v%d" % (V_TMP0, V_LANE, V_TMP0, V_TMP0))
            A("global_load_dword v%d, v%d, s[%d:%d]" % (V_FA, V_TMP0, S_T0, S_T1))
            A("s_mov_b32 s%d, %d\ns_branch L_loop" % (S_LL, FIN))
            A("L_ev1:")
        A("v_and_b32 v%d, 4, v%d\nv_cmp_eq_u32 vcc, 0, v%d\nv_xor_b32 v%d, %d, v%d\nv_add_u32 v%d, %d, v%d\nv_cndmask_b32 v%d, v%d, v%d, vcc" %
          (V_TMP0, V_LANE, V_TMP0, V_TMP1, 8 << self.fs, V_PA, V_TMP2, 2 << self.fs, V_PA, V_PA, V_TMP2, V_TMP1))
        A("global_load_dword v%d, v%d, %s sc1" % (V_FA, V_PA, sp(S_WS)))
        A("s_mov_b32 s%d, 6\ns_branch L_loop" % S_LL)
        A("L_ev2:")
        A("s_mov_b32 s%d, %d" % (S_LL, self.cpf2 if self.cpf2 else FIN))
        A("v_cmp_ne_u32 vcc, s%d, v%d\ns_cbranch_vccz L_loop" % (S_TAG, V_FA))
        self.poll(V_PA)
        A("s_branch L_loop")
        A("L_hook:")
        if self.nopeel:
            A("s_cmp_eq_u32 m0, 17\ns_cbranch_scc1 L_tail\ns_mov_b32 s%d, 17" % S_HOOK)
        A("s_waitcnt vmcnt(16)")
        A("v_cmp_ne_u32 vcc, s%d, v%d\ns_cbranch_vccz L_mid" % (S_TAG, V_FA))
        self.poll(V_PA)
        A("s_branch L_mid")
        A("L_tail:")
        if not self.nopeel:
            it = self.iteration(0, loads=False)
            for s in it:
                if s in ("@WAIT_V", "@WAIT_K"): s = "s_waitcnt vmcnt(0)"
                A(s)
        it = self.iteration(1, loads=False)
        idx = [k for k, s in enumerate(it) if s.startswith("v_mfma")]
        prev = ""
        for k, s in enumerate(it[:idx[32]]):
            if s.startswith("v_mfma") and k < idx[16]: continue
            if k >= idx[16] and not s.startswith("v_mfma"):
                if s not in (self.op_f('b', 0), self.op_f('b', 1)): continue
            if s.startswith("@"): continue
            if prev.startswith("v_exp") and not s.startswith("v_exp"): A("s_nop 0")
            A(s); prev = s
        self.stamp(6)
        self.cstamp(9)

    def epilogue(self):
        A = self.A
        ln = V_LANE
        NM = V_NM['a']; LL = V_L['a']
        seqs = [self.xlane("v_add_f32", LL + q, 16 + q) for q in range(4)]
        for grp in zip(*seqs):
            if grp[0].startswith("s_nop"): continue
            for l in grp: A(l)
        for q in range(4): A("v_mov_b32 v%d, v%d" % (NM + 4 * q + 1, LL + q))
        A("s_lshl_b32 s%d, s%d, 11\ns_add_u32 s%d, s%d, %d" % (S_T0, S_W, S_T0, S_T0, L_ST))
        A("v_lshlrev_b32 v44, 3, v%d\nv_add_u32 v45, s%d, v44" % (ln, S_T0))
        for q in range(4): A("ds_write_b64 v45, v[%d:%d] offset:%d" % (NM + 4 * q, NM + 4 * q + 1, 512 * q))
        for d in range(4):
            skip = self.label("L_skipw")
            A("s_cmp_eq_u32 s%d, %d\ns_cbranch_scc1 %s" % (S_W, d, skip))
            A("s_sub_u32 s%d, s%d, %d\ns_and_b32 s%d, s%d, 3\ns_lshl_b32 s%d, s%d, 13\ns_add_u32 s%d, s%d, %d" %
              (S_T0, S_W, d + 1, S_T0, S_T0, S_T0, S_T0, S_T0, S_T0, L_O + d * 3 * 8192))
            A("v_add_u32 v45, s%d, v%d" % (S_T0, V_KOFF0))
            for idx in range(8): A("ds_write_b128 v45, a[%d:%d] offset:%d" % (32 * d + 4 * idx, 32 * d + 4 * idx + 3, idx * 1024))
            A("%s:" % skip)
        own = 128
        done = self.label("L_own")
        for d in range(4):
            nxt = self.label("L_ownn")
            if d < 3: A("s_cmp_lg_u32 s%d, %d\ns_cbranch_scc1 %s" % (S_W, d, nxt))
            for r in range(32): A("v_accvgpr_read_b32 v%d, a%d" % (own + r, 32 * d + r))
            if d < 3: A("s_branch %s\n%s:" % (done, nxt))
        A("%s:" % done)
        A("s_waitcnt lgkmcnt(0)\ns_barrier")
        st = 16
        A("s_lshl_b32 s%d, s%d, 9\ns_add_u32 s%d, s%d, %d" % (S_T1, S_W, S_T1, S_T1, L_ST))
        for k in range(4):
            A("s_add_u32 s%d, s%d, %d\ns_and_b32 s%d, s%d, 3\ns_lshl_b32 s%d, s%d, 11\ns_add_u32 s%d, s%d, s%d" % (S_T0, S_W, k, S_T0, S_T0, S_T0, S_T0, S_T0, S_T0, S_T1))
            A("v_add_u32 v45, s%d, v44" % S_T0)
            A("ds_read_b64 v[%d:%d], v45" % (st + 2 * k, st + 2 * k + 1))
        A("s_mul_i32 s%d, s%d, 24576\ns_add_u32 s%d, s%d, %d\nv_add_u32 v45, s%d, v%d" % (S_T0, S_W, S_T0, S_T0, L_O, S_T0, V_KOFF0))
        pb = 160
        order = [(k, idx) for idx in range(8) for k in range(3)]
        for (k, idx) in order[:9]:
            r = pb + (k * 8 + idx) * 4
            A("ds_read_b128 v[%d:%d], v45 offset:%d" % (r, r + 3, k * 8192 + idx * 1024))
        A("s_waitcnt lgkmcnt(9)")
        F = 32
        A("v_min3_f32 v40, v%d, v%d, v%d\nv_min_f32 v40, v40, v%d" % (st, st + 2, st + 4, st + 6))
        for k in range(4): A("v_sub_f32 v%d, v40, v%d" % (F + k, st + 2 * k))
        for k in range(4): A("v_exp_f32 v%d, v%d" % (F + k, F + k))
        A("s_nop 0")
        A("v_mul_f32 v41, v%d, v%d" % (F, st + 1))
        for k in range(1, 4): A("v_fmac_f32 v41, v%d, v%d" % (F + k, st + 2 * k + 1))
        A("v_rcp_f32 v41, v41\ns_nop 0")
        for k in range(4): A("v_mul_f32 v%d, v%d, v41" % (F + k, F + k))
        A("s_lshl_b32 s%d, s%d, 19\ns_lshl_b32 s%d, s%d, 14\ns_add_u32 s%d, s%d, s%d\ns_lshl_b32 s%d, s%d, 12\ns_add_u32 s%d, s%d, s%d" %
          (S_T0, S_H, S_T1, S_I, S_T0, S_T0, S_T1, S_T1, S_W, S_T0, S_T0, S_T1))
        A("v_and_b32 v42, 15, v%d\nv_lshrrev_b32 v43, 4, v%d\nv_lshlrev_b32 v42, 8, v42\nv_lshl_add_u32 v42, v43, 5, v42\nv_add_u32 v42, s%d, v42" % (ln, ln, S_T0))
        issued = 9
        ob = 48
        for idx in range(8):
            while issued < min(24, 3 * idx + 12):
                k, i2 = order[issued]
                r = pb + (k * 8 + i2) * 4
                A("ds_read_b128 v[%d:%d], v45 offset:%d" % (r, r + 3, k * 8192 + i2 * 1024)); issued += 1
            A("s_waitcnt lgkmcnt(%d)" % (issued - 3 * idx - 3))
            for pr in range(2):
                r = own + idx * 4 + 2 * pr
                A("v_pk_mul_f32 %s, %s, %s op_sel_hi:[1,0]" % (P2(r), P2(r), P2(F)))
                for k in range(3):
                    fr = F + 1 + k
                    q = fr & 1
                    A("v_pk_fma_f32 %s, %s, %s, %s op_sel:[0,%d,0] op_sel_hi:[1,%d,1]" % (P2(r), P2(pb + (k * 8 + idx) * 4 + 2 * pr), P2(fr & ~1), P2(r), q, q))
            if (idx & 3) == 3:
                dh = idx >> 2
                for hf in range(2):
                    o = ob + (dh * 2 + hf) * 4
                    for ii in range(2):
                        i = 2 * hf + ii
                        for tp in range(2):
                            A("v_cvt_pk_bf16_f32 v%d, v%d, v%d" % (o + 2 * ii + tp, own + (dh * 4 + 2 * tp) * 4 + i, own + (dh * 4 + 2 * tp + 1) * 4 + i))
                    A("global_store_dwordx4 v42, v[%d:%d], %s offset:%d %s" % (o, o + 3, sp(S_OUT), 128 * dh + 16 * hf, self.omod))

    def dump_stamps(self):
        if not self.stamps: return
        A = self.A
        A("s_lshl_b32 s100, s2, 2\ns_add_u32 s100, s100, s%d\ns_lshl_b32 s100, s100, 6\ns_add_u32 s100, s100, %d" % (S_W, 16 << 20))
        A("v_lshlrev_b32 v2, 2, v%d\nv_add_u32 v2, s100, v2\ns_mov_b64 exec, 0xffff" % V_LANE)
        A("global_store_dword v2, v%d, %s\ns_mov_b64 exec, -1" % (V_STAMP, sp(S_WS)))

    def build(self):
        A = self.A
        K = NAME + "_kernel"
        self.cold = []
        self.compute_waits()
        hdr = open("cdna_kernels/%s.s.ref" % NAME).read().split("; @launch")[0]
        A(hdr.rstrip("\n"))
        A("; @launch grid=(256,1,1) block=(256,1,1) lds=%d" % LDS_BYTES)
        A('.amdgcn_target "amdgcn-amd-amdhsa--gfx950"\n.text')
        A(".globl %s\n.p2align 8\n.type %s,@function\n%s:" % (K, K, K))
        self.phase1()
        self.main()
        self.epilogue()
        A("s_cmp_lg_u32 s2, 0\ns_cbranch_scc1 L_noep\ns_cmp_lg_u32 s%d, 0\ns_cbranch_scc1 L_noep" % S_W)
        A("v_mov_b32 v1, %d\nv_mov_b32 v2, s%d\ns_mov_b64 exec, 1\nglobal_store_dword v1, v2, %s sc1\ns_mov_b64 exec, -1" % (WS_EPOCH, S_TAG, sp(S_WS)))
        A("L_noep:")
        self.stamp(7)
        self.dump_stamps()
        if self.probe is not None:
            A("v_readlane_b32 s70, v7, %d\ns_nop 3\ns_add_u32 s70, s70, 3000\nL_spin:\ns_memrealtime s[100:101]\ns_waitcnt lgkmcnt(0)\ns_sub_u32 s71, s70, s100\ns_cmp_gt_i32 s71, 0\ns_cbranch_scc1 L_spin" % self.probe)
        A("L_end:\ns_endpgm")
        live = [st for st in self.stubs if any(s.endswith(' ' + st[0]) for s in self.L)]
        for stub, ret, x in live:
            A("%s:\ns_call_b64 s[%d:%d], L_sub_%s\ns_branch %s" % (stub, S_RET, S_RET + 1, x, ret))
        self.subs()
        A("L_codeend:")
        for lab, ret, regs in self.cold:
            A("%s:" % lab)
            for k in range(0, len(regs), 2): self.round_pair(regs[k])
            A("s_branch %s" % ret)
        self.slow_sub('a'); self.slow_sub('b')
        A('.section .rodata,"a"')
        A('.p2align 6\n.amdhsa_kernel %s\n  .amdhsa_next_free_vgpr 512\n  .amdhsa_next_free_sgpr 102\n  .amdhsa_accum_offset 256\n'
          '  .amdhsa_group_segment_fixed_size 0\n  .amdhsa_kernarg_size 112\n  .amdhsa_user_sgpr_count 2\n'
          '  .amdhsa_user_sgpr_kernarg_segment_ptr 1\n  .amdhsa_system_sgpr_workgroup_id_x 1\n.end_amdhsa_kernel' % K)
        return "\n".join(self.L) + "\n"

if __name__ == "__main__":
    ap = argparse.ArgumentParser()
    ap.add_argument("out")
    ap.add_argument("--stamps", action="store_true")
    ap.add_argument("--probe", type=int, default=None)
    ap.add_argument("--sleep", type=int, default=4)
    ap.add_argument("--fs", type=int, default=6)
    ap.add_argument("--omod", default="")
    ap.add_argument("--qsplit", type=int, default=9)
    ap.add_argument("--pollearly", action="store_true")
    ap.add_argument("--r2pos", type=int, default=0)
    ap.add_argument("--vpre", type=int, default=4)
    ap.add_argument("--r1pos", type=int, default=1)
    ap.add_argument("--period", type=int, default=0)
    ap.add_argument("--exactw", type=int, default=1)
    ap.add_argument("--cpf", type=int, default=0)
    ap.add_argument("--cpf2", type=int, default=0)
    ap.add_argument("--nopeel", type=int, default=0)
    ap.add_argument("--hshare", type=int, default=0)
    ap.add_argument("--qbar", type=int, default=0)
    ap.add_argument("--qt", default=""); ap.add_argument("--kt", default="")
    a = ap.parse_args()
    g = Gen(**vars(a))
    open(a.out, "w").write(g.build())
    print("wv", g.wv, "wk", g.wk, "lines", len(g.L))
```

```python
import sys, struct, argparse
NAME = "standalone__kv_cache_quant_pre_rope_vs_post_rope__prompt"
def f32bits(x): return struct.unpack("<I", struct.pack("<f", x))[0]
CSCALE = 1.4426950408889634 * (128.0 ** -0.5)

V_FA = 0
V_KOFF0, V_KOFF1, V_VOFF0, V_VOFF1 = 1, 2, 3, 4
V_LANE, V_PA, V_STAMP = 5, 6, 7
V_T = {'a': 8, 'b': 10}
V_L = {'a': 64, 'b': 66}
V_CH = 68
V_TMP0, V_TMP1, V_TMP2, V_TMP3 = 12, 13, 14, 15
V_S = {'a': 16, 'b': 32}
V_NM = {'a': 48, 'b': 56}
V_E = {'a': 80, 'b': 96}
V_P = {'a': 112, 'b': 120}
V_K = [128, 160]
V_V = [192, 224]
XI = {'a': 0, 'b': 1}
def A_O(x, ql, dt): return ((2 * XI[x] + ql) * 8 + dt) * 4
def A_Q(x, ql, ks): return 128 + ((2 * XI[x] + ql) * 4 + ks) * 4
V_VSC = 36
A_K0, A_K1, A_V = 192, 208, 224
S_Q, S_QK, S_KS, S_KZ, S_QV, S_VS, S_VZ, S_QC, S_QS, S_KC, S_KSN, S_OUT, S_DBG, S_WS = [4 + 2 * i for i in range(14)]
S_H, S_I, S_W, S_TAG = 32, 33, 34, 35
S_T0, S_T1, S_T2, S_T3 = 36, 37, 38, 39
S_SRD = 40
S_OFF, S_THR = 44, 45
S_C = 46
S_TBL = 48
S_RET = 66
S_SC = 68
S_CNT, S_LIM, S_HOOK = 3, 65, 28
S_KH, S_VK, S_ARG = 29, 0, 1
L_KT = 0
L_TAB = 9216
L_Q = L_TAB + 16384
L_ST = L_Q + 16 * 1040
L_O = L_ST + 8192
LDS_BYTES = L_O + 96 * 1024
WS_FK = 8 << 20
WS_FV = WS_FK + (512 << 10)
WS_EPOCH = 9 << 20
THRESH = 1024.0
P2 = lambda r: "v[%d:%d]" % (r, r + 1)
sp = lambda r: "s[%d:%d]" % (r, r + 1)

class Gen:
    def __init__(self, **kw):
        self.L = []
        self.uid = 0
        self.stamps = kw.get("stamps", False)
        self.probe = kw.get("probe", None)
        self.sleep = kw.get("sleep", 4)
        self.fs = kw.get("fs", 6)
        self.abl = kw.get("abl", "")
        self.omod = kw.get("omod", "")
        self.qsplit = kw.get("qsplit", 9)
        self.pollearly = kw.get("pollearly", False)
        self.r2pos = kw.get("r2pos", 0)
        self.vpre = kw.get("vpre", 4)
        self.r1pos = kw.get("r1pos", 1)
        self.PERIOD = self.PERIODS[kw.get("period", 0)]
        self.hshare = kw.get("hshare", 0)
        self.qbar = kw.get("qbar", 0)
        self.qt = kw.get("qt", ""); self.kt = kw.get("kt", "")
        self.vm = []; self.vl = []
        self.exactw = kw.get('exactw', 1)
        self.cpf = kw.get('cpf', 0)
        self.cpf2 = kw.get('cpf2', 0)
        self.nopeel = kw.get('nopeel', 0)
    def A(self, s):
        for line in s.split("\n"): self.L.append(line)
    def label(self, base):
        self.uid += 1
        return "%s_%d" % (base, self.uid)
    def M(self, s, tag):
        self.A(s); self.vm.append(tag); self.vl.append(tag)
    def Mlo(self, s, tag):
        self.A(s); self.vl.append(tag)
    def Mhi(self, s, tag):
        self.A(s); self.vm.append(tag)
    def note(self, tag, nlo, nhi):
        self.vl += [tag] * nlo; self.vm += [tag] * nhi
    def wait(self, tag, extra=""):
        cnt = lambda v: len(v) - 1 - max(k for k, t in enumerate(v) if t == tag)
        nh, nl = cnt(self.vm), cnt(self.vl)
        assert max(nh, nl) <= 63
        if nh == nl or not self.exactw:
            self.A("s_waitcnt vmcnt(%d)%s" % (min(nh, nl), extra))
        else:
            lab = self.label("L_w")
            self.A("s_waitcnt vmcnt(%d)%s" % (max(nh, nl), extra))
            self.A("s_cmp_%s_u32 s%d, 2\ns_cbranch_scc1 %s\ns_waitcnt vmcnt(%d)\n%s:" % ("lt" if nl > nh else "ge", S_W, lab, min(nh, nl), lab))
    def cstamp(self, idx):
        if self.stamps: self.A("s_memtime s[100:101]\ns_waitcnt lgkmcnt(0)\nv_writelane_b32 v%d, s100, %d" % (V_STAMP, idx))
    def stamp(self, idx):
        if self.probe is not None:
            if idx != self.probe: return
        elif not self.stamps: return
        self.A("s_memrealtime s[100:101]\ns_waitcnt lgkmcnt(0)\nv_writelane_b32 v%d, s100, %d" % (V_STAMP, idx))

    def unpack(self, dst, src):
        self.A("v_lshlrev_b32 v%d, 16, v%d\nv_and_b32 v%d, 0xffff0000, v%d" % (dst, src, dst + 1, src))
    def round_pair(self, r):
        self.A("v_cvt_pk_bf16_f32 v%d, v%d, v%d" % (r + 1, r, r + 1))
        self.A("v_lshlrev_b32 v%d, 16, v%d\nv_and_b32 v%d, 0xffff0000, v%d" % (r, r + 1, r + 1, r + 1))
    def int_to_f32(self, regs, tmp):
        for r in regs: self.A("v_cvt_f32_i32 v%d, v%d" % (r, r))
        self.int_guard(regs, tmp)
    def int_guard(self, regs, tmp):
        A = self.A
        A("v_max3_f32 v%d, |v%d|, |v%d|, 0" % (tmp, regs[0], regs[1]))
        for k in range(2, len(regs), 2):
            A("v_max3_f32 v%d, |v%d|, |v%d|, v%d" % (tmp, regs[k], regs[k + 1], tmp))
        lab = self.label("L_big"); ret = self.label("L_bigret")
        A("v_cmp_lt_f32 vcc, 0x43800000, v%d" % tmp)
        A("s_cbranch_vccnz %s" % lab)
        A("%s:" % ret)
        self.cold.append((lab, ret, list(regs)))
    def unpack_tab(self, dst, src):
        for p in range(4):
            for k in range(4): self.unpack(dst + 8 * p + 2 * k, src + 4 * k + p)
    def rope_p(self, a, b, tab, t, u, o1, o2):
        A = self.A
        A("v_pk_mul_f32 %s, %s, %s" % (P2(t), P2(a), P2(tab)))
        A("v_pk_mul_f32 %s, %s, %s" % (P2(u), P2(b), P2(tab + 2)))
        A("v_pk_fma_f32 %s, %s, %s, %s neg_lo:[1,0,0] neg_hi:[1,0,0]" % (P2(t), P2(b), P2(tab + 4), P2(t)))
        A("v_pk_fma_f32 %s, %s, %s, %s" % (P2(u), P2(a), P2(tab + 6), P2(u)))
        A("v_cvt_pk_bf16_f32 v%d, v%d, v%d" % (o1, t, t + 1))
        A("v_cvt_pk_bf16_f32 v%d, v%d, v%d" % (o2, u, u + 1))
    def k_dequant(self, rb, sc, tmp):
        A = self.A
        z = sc + 1
        self.int_to_f32(list(range(rb, rb + 16)), tmp)
        A("v_lshlrev_b32 v%d, 16, v%d\nv_lshlrev_b32 v%d, 16, v%d" % (sc, sc, z, z))
        A("v_mul_f32 v%d, v%d, v%d" % (z, z, sc))
        for p in range(8):
            r = rb + 2 * p
            A("v_pk_fma_f32 %s, %s, %s, %s op_sel:[0,0,1] op_sel_hi:[1,0,1] neg_lo:[0,0,1] neg_hi:[0,0,1]" % (P2(r), P2(r), P2(sc), P2(sc)))
    def v_compute(self, x, rawsc, sc, nz, tmp, o):
        A = self.A
        for p in range(4):
            self.unpack(sc + 2 * p, rawsc + p)
            self.unpack(nz + 2 * p, rawsc + 4 + p)
        for p in range(4): A("v_pk_mul_f32 %s, %s, %s" % (P2(nz + 2 * p), P2(nz + 2 * p), P2(sc + 2 * p)))
    def v_compute2(self, x, sc, nz, tmp, o):
        A = self.A
        self.int_to_f32(list(range(x, x + 16)), tmp)
        for j in range(8):
            r = x + 2 * j; q = j & 1
            A("v_pk_fma_f32 %s, %s, %s, %s op_sel:[0,%d,%d] op_sel_hi:[1,%d,%d] neg_lo:[0,0,1] neg_hi:[0,0,1]" %
              (P2(r), P2(r), P2(sc + (j & ~1)), P2(nz + (j & ~1)), q, q, q, q))
        for e in range(2):
            for jj in range(4):
                A("v_cvt_pk_bf16_f32 v%d, v%d, v%d" % (o + 4 * e + jj, x + 4 * jj + e, x + 4 * jj + 2 + e))

    def raw_loads(self, f, rk, rv, bq, bs, bv, bvs, tagk, tagv):
        o = []
        for k, off in enumerate((0, 16, 256, 272)):
            o.append(("global_load_dwordx4 %s[%d:%d], v%d, %s offset:%d nt" % (f, rk + 4 * k, rk + 4 * k + 3, bq, sp(S_QK), off), tagk))
        o.append(("global_load_ushort %s%d, v%d, %s" % (f, rk + 16, bs, sp(S_KS)), tagk))
        o.append(("global_load_ushort %s%d, v%d, %s" % (f, rk + 17, bs, sp(S_KZ)), tagk))
        for j in range(8):
            off = (8 * (j >> 2) + (j & 3)) * 512 - 2560
            o.append(("global_load_dwordx2 %s[%d:%d], v%d, %s offset:%d nt" % (f, rv + 2 * j, rv + 2 * j + 1, bv, sp(S_QV), off), tagv))
        for q, sr in enumerate((S_VS, S_VZ)):
            for hf in range(2):
                r = rv + 16 + 4 * q + 2 * hf
                o.append(("global_load_dwordx2 %s[%d:%d], v%d, %s offset:%d" % (f, r, r + 1, bvs, sp(sr), 16 * hf), tagv))
        return o

    def flag_store(self, mask):
        A = self.A
        A("v_mov_b32 v%d, s%d" % (V_TMP3, S_TAG))
        A("s_mov_b64 exec, %d" % mask)
        self.M("global_store_dword v%d, v%d, %s sc1" % (V_FA, V_TMP3, sp(S_WS)), "flag")
        A("s_mov_b64 exec, -1")

    def poll(self, reg):
        A = self.A
        lab = self.label("L_poll"); done = self.label("L_polled")
        A("s_mov_b32 s%d, 0" % S_CNT)
        A("%s:" % lab)
        A("global_load_dword v%d, v%d, %s sc1" % (V_TMP0, reg, sp(S_WS)))
        A("s_add_u32 s%d, s%d, 1" % (S_CNT, S_CNT))
        A("s_waitcnt vmcnt(0)")
        A("v_cmp_ne_u32 vcc, s%d, v%d" % (S_TAG, V_TMP0))
        A("s_cbranch_vccz %s" % done)
        if self.sleep: A("s_sleep %d" % self.sleep)
        A("s_cmp_lt_u32 s%d, 0x8000\ns_cbranch_scc1 %s" % (S_CNT, lab))
        A("%s:" % done)

    XA, XB, XV = 16, 80, 96
    AQ, AT, LQ, VT, LW, LR, BO, BK = 32, 33, 34, 35, 36, 37, 38, 39
    KSC = 40
    BVO, PV0 = 44, 45
    RT, VS, RQ, TB, KT, UQ = 48, 64, 128, 176, 192, 224
    def k_raw_loads(self, slot, vaddr, tag, M):
        for k, off in enumerate((0, 16, 256, 272)):
            M("global_load_dwordx4 v[%d:%d], v%d, %s offset:%d nt" % (slot + 4 * k, slot + 4 * k + 3, vaddr, sp(S_QK), off), tag)
    def v_raw_loads(self, vaddr, tag, M):
        for j in range(8):
            M("global_load_dwordx4 v[%d:%d], v%d, %s offset:%d nt" % (self.XV + 4 * j, self.XV + 4 * j + 3, vaddr + (j >> 2), sp(S_QV), (j & 3) * 512), tag)

    def subs(self):
        A = self.A
        X, TB, KT = self.XA, self.TB, self.KT
        fs = self.fs
        O = TB + 4
        A("L_ktask1b:      ; raw data in slot B")
        for r in range(16): A("v_cvt_f32_i32 v%d, v%d" % (X + r, self.XB + r))
        A("s_mov_b32 s%d, s%d\nv_mov_b32 v%d, v%d\nv_mov_b32 v%d, v%d\ns_branch L_kbody" % (S_T3, S_ARG, self.KSC, self.KSC + 2, self.KSC + 1, self.KSC + 3))
        A("L_ktask1:")
        A("s_mov_b32 s%d, s%d\nv_mov_b32 v%d, v%d\nv_mov_b32 v%d, v%d\ns_branch L_kcvt" % (S_T3, S_ARG, self.KSC, self.KSC + 2, self.KSC + 1, self.KSC + 3))
        A("L_ktask0:")
        A("s_mov_b32 s%d, s%d" % (S_T3, S_KH))
        A("L_kcvt:")
        for r in range(16): A("v_cvt_f32_i32 v%d, v%d" % (X + r, X + r))
        A("L_kbody:")
        self.int_guard(list(range(X, X + 16)), TB)
        for p in range(8):
            r = X + 2 * p
            A("v_pk_fma_f32 %s, %s, %s, %s op_sel:[0,0,1] op_sel_hi:[1,0,1] neg_lo:[0,0,1] neg_hi:[0,0,1]" % (P2(r), P2(r), P2(self.KSC), P2(self.KSC)))
        for p in range(4): self.rope_p(X + 2 * p, X + 8 + 2 * p, KT + 8 * p, TB, TB + 2, O + p, O + 4 + p)
        A("ds_write_b128 v%d, v[%d:%d]\nds_write_b128 v%d, v[%d:%d] offset:1152" % (self.LW, O, O + 3, self.LW, O + 4, O + 7))
        A("v_add_u32 v%d, s%d, v%d" % (TB, S_T3, self.BO))
        A("s_lshr_b32 s%d, s%d, 12\ns_add_u32 s%d, s%d, s2\ns_lshl_b32 s%d, s%d, %d\ns_add_u32 s%d, s%d, %d" % (S_T0, S_T3, S_T0, S_T0, S_T0, S_T0, fs, S_T0, S_T0, WS_FK))
        A("s_waitcnt lgkmcnt(0)")
        A("ds_read_b128 v[%d:%d], v%d\nds_read_b128 v[%d:%d], v%d offset:1152" % (O, O + 3, self.LR, O + 4, O + 7, self.LR))
        A("v_mov_b32 v%d, s%d" % (V_FA, S_T0))
        A("s_waitcnt lgkmcnt(1)")
        A("global_store_dwordx4 v%d, v[%d:%d], %s sc1" % (TB, O, O + 3, sp(S_WS)))
        A("s_waitcnt lgkmcnt(0)")
        A("global_store_dwordx4 v%d, v[%d:%d], %s offset:256 sc1" % (TB, O + 4, O + 7, sp(S_WS)))
        A("s_setpc_b64 s[%d:%d]" % (S_RET, S_RET + 1))
        A("L_vtask:")
        x = self.XV
        self.int_to_f32(list(range(x, x + 32)), TB)
        sc, nz = self.VS, self.VS + 8
        for j in range(8):
            q = j & 1
            for hf in range(2):
                r = x + 4 * j + 2 * hf
                A("v_pk_fma_f32 %s, %s, %s, %s op_sel:[0,%d,%d] op_sel_hi:[1,%d,%d] neg_lo:[0,0,1] neg_hi:[0,0,1]" %
                  (P2(r), P2(r), P2(sc + (j & ~1)), P2(nz + (j & ~1)), q, q, q, q))
        for t in range(4):
            o = TB + 4 * t
            for jj in range(4): A("v_cvt_pk_bf16_f32 v%d, v%d, v%d" % (o + jj, x + 8 * jj + t, x + 8 * jj + 4 + t))
            A("global_store_dwordx4 v%d, v[%d:%d], %s offset:%d sc1" % (self.BVO, o, o + 3, sp(S_WS), 1024 * t))
        A("s_lshl_b32 s%d, s%d, 5\ns_add_u32 s%d, s%d, s%d\ns_lshl_b32 s%d, s%d, 2\ns_xor_b32 s%d, s%d, 2\ns_add_u32 s%d, s%d, s%d\ns_lshl_b32 s%d, s%d, %d\ns_add_u32 s%d, s%d, %d\nv_mov_b32 v%d, s%d" %
          (S_T0, S_H, S_T0, S_T0, S_I, S_T0, S_T0, S_T1, S_W, S_T0, S_T0, S_T1, S_T0, S_T0, fs, S_T0, S_T0, WS_FV, V_FA, S_T0))
        A("s_setpc_b64 s[%d:%d]" % (S_RET, S_RET + 1))

    def call_by_role(self, lo, hi):
        A = self.A
        l1 = self.label("L_role"); l2 = self.label("L_roled")
        A("s_cmp_ge_u32 s%d, 2\ns_cbranch_scc1 %s" % (S_W, l1))
        A("s_call_b64 s[%d:%d], %s\ns_branch %s" % (S_RET, S_RET + 1, lo, l2))
        A("%s:\ns_call_b64 s[%d:%d], %s\n%s:" % (l1, S_RET, S_RET + 1, hi, l2))

    def phase1(self):
        A = self.A; M = self.M
        ln = V_LANE
        AQ, AT, LQ, VT, LW, LR, BO, BK, KSC, BVO, PV0 = self.AQ, self.AT, self.LQ, self.VT, self.LW, self.LR, self.BO, self.BK, self.KSC, self.BVO, self.PV0
        RT, VS, RQ, TB, KT, UQ = self.RT, self.VS, self.RQ, self.TB, self.KT, self.UQ
        fs = self.fs
        nul = lambda s_, t_: A(s_)
        if self.cpf:
            A("; pull the kernel's code into L2 early: thread t reads one dword of code line t")
            A("s_getpc_b64 s[%d:%d]\nL_pc:" % (S_RET, S_RET + 1))
            A("v_lshlrev_b32 v14, 7, v0\nv_min_u32 v14, L_codeend-L_pc-4, v14")
        A("s_cmp_ge_u32 s2, 256\ns_cbranch_scc1 L_end")
        if self.cpf: A("global_load_dword v47, v14, s[%d:%d]" % (S_RET, S_RET + 1))
        A("s_load_dwordx16 s[4:19], s[0:1], 0\ns_load_dwordx8 s[20:27], s[0:1], 64\ns_load_dwordx2 s[30:31], s[0:1], 104")
        A("v_lshrrev_b32 v1, 6, v0\nv_and_b32 v%d, 63, v0" % ln)
        hb = self.hshare
        if hb == 0:
            A("s_and_b32 s%d, s2, 7\ns_lshr_b32 s%d, s2, 3" % (S_H, S_I))
        else:
            m = (1 << hb) - 1
            A("s_and_b32 s%d, s2, %d\ns_bfe_u32 s%d, s2, 0x%x\ns_or_b32 s%d, s%d, s%d" % (S_H, 7 & ~m, S_T0, (hb << 16) | 3, S_H, S_H, S_T0))
            A("s_lshr_b32 s%d, s2, %d\ns_lshl_b32 s%d, s%d, %d\ns_and_b32 s%d, s2, %d\ns_or_b32 s%d, s%d, s%d" % (S_I, 3 + hb, S_I, S_I, hb, S_T0, m, S_I, S_I, S_T0))
        A("v_readfirstlane_b32 s%d, v1" % S_W)
        self.stamp(0)
        A("s_lshr_b32 s%d, s2, 2\ns_and_b32 s%d, s%d, 2\ns_sub_u32 s%d, s%d, s%d\ns_and_b32 s%d, s%d, 3\ns_and_b32 s%d, s%d, 1\ns_lshl_b32 s%d, s%d, 2\ns_add_u32 s%d, s%d, s%d\ns_lshl_b32 s%d, s%d, 20" %
          (S_T0, S_T1, S_W, S_T1, S_T1, S_T0, S_T1, S_T1, S_T2, S_W, S_T2, S_T2, S_T1, S_T1, S_T2, S_KH, S_T1))
        A("s_xor_b32 s%d, s%d, 2\ns_sub_u32 s%d, s%d, s%d\ns_and_b32 s%d, s%d, 3\ns_lshr_b32 s%d, s%d, 1\ns_lshl_b32 s%d, s%d, 2\ns_add_u32 s%d, s%d, s%d" %
          (S_T0, S_W, S_T0, S_T0, S_H, S_T0, S_T0, S_T1, S_I, S_T1, S_T1, S_LIM, S_T0, S_T1))
        A("v_lshrrev_b32 v8, 3, v%d\nv_and_b32 v9, 7, v%d\nv_lshlrev_b32 v%d, 8, v8\nv_lshl_add_u32 v%d, v9, 4, v%d" % (ln, ln, AT, AT, AT))
        A("s_lshl_b32 s%d, s2, 11\nv_add_u32 v%d, s%d, v%d\nv_lshlrev_b32 v%d, 1, v%d\nv_add_u32 v10, s%d, v%d" % (S_T0, VT, S_T0, AT, BK, VT, S_KH, BK))
        A("s_lshl_b32 s%d, s%d, 20\ns_lshl_b32 s%d, s%d, 14\ns_add_u32 s%d, s%d, s%d\ns_and_b32 s%d, s%d, 1\ns_lshl_b32 s%d, s%d, 8\ns_add_u32 s%d, s%d, s%d" %
          (S_T0, S_H, S_T1, S_LIM, S_HOOK, S_T0, S_T1, S_T1, S_I, S_T1, S_T1, S_T0, S_HOOK, S_T1))
        A("v_lshrrev_b32 v12, 4, v%d\nv_and_b32 v13, 15, v%d\nv_lshlrev_b32 v%d, 11, v12\nv_lshl_add_u32 v%d, v13, 4, v%d\nv_add_u32 v%d, s%d, v%d\nv_add_u32 v%d, 8192, v%d" %
          (ln, ln, PV0, PV0, PV0, PV0, S_T0, PV0, PV0 + 1, PV0))
        A("s_cmp_ge_u32 s%d, 2" % S_W)
        A("s_waitcnt lgkmcnt(0)")
        A("s_cbranch_scc1 L_r0v")
        self.k_raw_loads(self.XA, 10, "r0", nul)
        for k, (sr, off) in enumerate(((S_KC, 0), (S_KC, 128), (S_KSN, 0), (S_KSN, 128))):
            A("global_load_dwordx4 v[%d:%d], v%d, %s offset:%d %s" % (RT + 4 * k, RT + 4 * k + 3, VT, sp(sr), off, self.kt))
        A("s_branch L_r0d\nL_r0v:")
        self.v_raw_loads(PV0, "r0", M)
        A("L_r0d:")
        if self.probe is not None: self.stamp(16)
        A("; Q: row = 64 i + 16 w + 8u + (l>>3)")
        A("s_lshl_b32 s%d, s%d, 14\ns_lshl_b32 s%d, s%d, 12\ns_add_u32 s%d, s%d, s%d\ns_lshl_b32 s%d, s%d, 19\nv_add_u32 v%d, s%d, v%d\nv_add_u32 v%d, s%d, v%d" % (S_T0, S_I, S_T1, S_W, S_T0, S_T0, S_T1, S_T1, S_H, AT, S_T0, AT, AQ, S_T1, AT))
        ql = []
        for u in range(2):
            b = RQ + 24 * u
            for (r, v, sr, off, m_) in ((0, AQ, S_Q, 0, "nt"), (4, AQ, S_Q, 128, "nt"), (8, AT, S_QC, 0, self.qt), (12, AT, S_QC, 128, self.qt), (16, AT, S_QS, 0, self.qt), (20, AT, S_QS, 128, self.qt)):
                ql.append(("global_load_dwordx4 v[%d:%d], v%d, %s offset:%d %s" % (b + r, b + r + 3, v, sp(sr), 2048 * u + off, m_), "q%d" % u))
        A("s_add_u32 s%d, s%d, 0x100000\ns_and_b32 s%d, s%d, 0x300000\ns_and_b32 s%d, s%d, 0x400000\ns_or_b32 s%d, s%d, s%d" % (S_T2, S_KH, S_T2, S_T2, S_ARG, S_KH, S_ARG, S_ARG, S_T2))
        A("s_lshl_b32 s%d, s2, 4\ns_lshr_b32 s%d, s%d, 8\ns_add_u32 s%d, s%d, s%d\ns_lshr_b32 s%d, s%d, 8\ns_add_u32 s%d, s%d, s%d" % (S_T0, S_T1, S_KH, S_T1, S_T1, S_T0, S_T2, S_ARG, S_T2, S_T2, S_T0))
        A("s_lshl_b32 s%d, s%d, 12\ns_lshl_b32 s%d, s%d, 6\ns_add_u32 s%d, s%d, s%d\ns_mov_b32 s%d, %d" % (S_T3, S_H, S_T0, S_LIM, S_T3, S_T3, S_T0, S_T0, WS_EPOCH))
        A("s_load_dword s%d, %s, s%d" % (S_TAG, sp(S_WS), S_T0))
        A("s_load_dwordx4 s[%d:%d], %s, s%d\ns_load_dwordx4 s[%d:%d], %s, s%d" % (S_SC, S_SC + 3, sp(S_KS), S_T1, S_SC + 4, S_SC + 7, sp(S_KZ), S_T1))
        A("s_load_dwordx4 s[%d:%d], %s, s%d\ns_load_dwordx4 s[%d:%d], %s, s%d" % (S_SC + 8, S_SC + 11, sp(S_KS), S_T2, S_SC + 12, S_SC + 15, sp(S_KZ), S_T2))
        A("s_load_dwordx16 s[48:63], %s, s%d\ns_load_dwordx16 s[84:99], %s, s%d" % (sp(S_VS), S_T3, sp(S_VZ), S_T3))
        for s, t in ql[:self.qsplit]: M(s, t)
        A("v_lshlrev_b32 v%d, 4, v%d\nv_add_u32 v%d, 4096, v%d\nv_add_u32 v%d, 8192, v%d\nv_add_u32 v%d, 12288, v%d" % (V_KOFF0, ln, V_KOFF1, V_KOFF0, V_VOFF0, V_KOFF0, V_VOFF1, V_KOFF0))
        A("s_mul_i32 s0, s%d, 2304" % S_W)
        A("v_mul_u32_u24 v%d, 144, v9\nv_lshl_add_u32 v%d, v8, 4, v%d\nv_add_u32 v%d, s0, v%d" % (LW, LW, LW, LW, LW))
        A("v_mul_u32_u24 v%d, 144, v8\nv_lshl_add_u32 v%d, v9, 4, v%d\nv_add_u32 v%d, s0, v%d" % (LR, LR, LR, LR, LR))
        A("; BO = (p>>2)*16384 + ((p>>1)&1)*4096 + (p&1)*128 + (l>>3)*512 + (l&7)*16")
        A("s_lshr_b32 s0, s2, 2\ns_lshl_b32 s0, s0, 14\ns_and_b32 s3, s2, 1\ns_lshl_b32 s3, s3, 7\ns_add_u32 s0, s0, s3\ns_and_b32 s3, s2, 2\ns_lshl_b32 s3, s3, 11\ns_add_u32 s0, s0, s3")
        A("v_lshlrev_b32 v%d, 9, v8\nv_lshl_add_u32 v%d, v9, 4, v%d\nv_add_u32 v%d, s0, v%d" % (BO, BO, BO, BO, BO))
        A("s_and_b32 s0, s%d, 1\ns_lshl_b32 s0, s0, 12\ns_add_u32 s0, s0, s%d\nv_add_u32 v%d, s0, v%d" % (S_I, S_HOOK, BVO, V_VOFF0))
        A("s_mul_i32 s0, s%d, 4160\ns_add_u32 s0, s0, %d" % (S_W, L_Q))
        A("v_lshrrev_b32 v12, 1, v9\nv_mul_u32_u24 v%d, 1040, v12\nv_and_b32 v12, 1, v9\nv_lshl_add_u32 v%d, v12, 9, v%d\nv_lshl_add_u32 v%d, v8, 4, v%d\nv_add_u32 v%d, s0, v%d" % (LQ, LQ, LQ, LQ, LQ, LQ, LQ))
        A("v_lshrrev_b32 v12, 5, v%d\nv_bfe_u32 v13, v%d, 3, 2\nv_lshl_add_u32 v13, v13, 2, s%d" % (ln, ln, S_W))
        A("v_subrev_u32 v14, s%d, v12\nv_and_b32 v14, 3, v14\nv_lshl_add_u32 v14, v13, 2, v14\nv_lshlrev_b32 v14, 2, v14\nv_add_u32 v14, v9, v14" % S_H)
        A("s_lshl_b32 s0, s%d, 8\nv_add_u32 v14, s0, v14\nv_lshlrev_b32 v14, %d, v14\nv_add_u32 v14, %d, v14" % (S_H, fs, WS_FK))
        A("v_and_b32 v15, 1, v9\nv_lshl_add_u32 v15, v13, 1, v15\nv_lshl_add_u32 v15, v15, 2, v12\ns_lshl_b32 s0, s%d, 7\nv_add_u32 v15, s0, v15\nv_lshlrev_b32 v15, %d, v15\nv_add_u32 v15, %d, v15" % (S_H, fs, WS_FV))
        A("v_cmp_gt_u32 vcc, 4, v9\ns_nop 1\nv_cndmask_b32 v%d, v15, v14, vcc" % V_PA)
        A("v_add_u32 v11, s%d, v%d\ns_cmp_lt_u32 s%d, 2\ns_cselect_b32 s0, s%d, s%d\nv_add_u32 v10, s0, v%d" % (S_ARG, BK, S_W, S_ARG, S_KH, BK))
        A("s_mov_b32 s%d, 0x%08x\ns_mov_b32 s%d, 0x%08x\ns_mov_b32 s%d, 0x%08x" % (S_C, f32bits(CSCALE), S_C + 1, f32bits(CSCALE), S_THR, f32bits(THRESH)))
        A("s_mov_b32 s%d, s%d\ns_mov_b32 s%d, s%d\ns_mov_b32 s%d, 0x800000\ns_mov_b32 s%d, 0x20000" % (S_SRD, S_WS, S_SRD + 1, S_WS + 1, S_SRD + 2, S_SRD + 3))
        A("v_and_b32 v12, 1, v8\nv_lshlrev_b32 v12, 4, v12")
        A("s_waitcnt lgkmcnt(0)")
        for g in range(4):
            if g: A("s_lshl_b64 exec, -1, %d" % (16 * g))
            for k in range(4): A("v_mov_b32 v%d, s%d" % (KSC + k, S_SC + 4 * k + g))
            for z, sb in enumerate((48, 84)):
                for k, dw in enumerate((0, 1, 8, 9)): A("v_mov_b32 v%d, s%d" % (TB + 4 * z + k, sb + dw + 2 * g))
        A("s_mov_b64 exec, -1")
        for k in range(4): A("v_lshrrev_b32 v%d, v12, v%d\nv_lshlrev_b32 v%d, 16, v%d" % (KSC + k, KSC + k, KSC + k, KSC + k))
        A("v_mul_f32 v%d, v%d, v%d\nv_mul_f32 v%d, v%d, v%d" % (KSC + 1, KSC + 1, KSC, KSC + 3, KSC + 3, KSC + 2))
        self.v_compute(None, TB, VS, VS + 8, None, None)
        A("s_lshl_b32 s%d, s%d, 20\ns_lshl_b32 s%d, s%d, 16\ns_add_u32 s%d, s%d, s%d" % (S_T0, S_H, S_T1, S_W, S_T0, S_T0, S_T1))
        A("s_lshr_b32 s%d, s%d, %d" % (S_T2, S_I, self.hshare))
        for n in range(4):
            A("s_add_u32 s%d, s%d, %d\ns_and_b32 s%d, s%d, 3\ns_lshl_b32 s%d, s%d, 18\ns_add_u32 s%d, s%d, s%d" % (S_T1, S_T2, n, S_T1, S_T1, S_T1, S_T1, S_TBL + 12 + n, S_T1, S_T0))
        for sg in range(4):
            A("s_sub_u32 s%d, %d, s%d\ns_and_b32 s%d, s%d, 3\ns_lshl_b32 s%d, s%d, 14" % (S_T1, sg, S_H, S_T1, S_T1, S_T1, S_T1))
            for n in range(4): A("s_add_u32 s%d, s%d, s%d" % (S_TBL + 4 * sg + n, S_TBL + 12 + n, S_T1))
        A("s_mov_b32 s%d, 0x1000000\ns_mov_b32 s%d, s%d" % (S_TBL + 16, S_OFF, S_TBL))
        A("s_add_u32 s%d, s%d, 0x9e3779b9" % (S_TAG, S_TAG))
        A("s_and_b32 s0, s%d, 1\ns_lshl_b32 s0, s0, 13\nv_add_u32 v%d, s0, v%d" % (S_W, VT, V_KOFF0))
        def r2loads():
            A("s_cmp_ge_u32 s%d, 2\ns_cbranch_scc1 L_r2k" % S_W)
            self.v_raw_loads(PV0, "r2", self.Mlo)
            A("s_branch L_r2d\nL_r2k:")
            self.k_raw_loads(self.XB, 11, "r2", self.Mhi)
            A("L_r2d:")
        A("; ---- round 0")
        self.wait("r0")
        self.stamp(1)
        A("s_cmp_ge_u32 s%d, 2\ns_cbranch_scc1 L_t0v" % S_W)
        self.unpack_tab(KT, RT)
        A("s_call_b64 s[%d:%d], L_ktask0" % (S_RET, S_RET + 1))
        for k in range(8): A("ds_write_b128 v%d, v[%d:%d] offset:%d" % (VT, KT + 4 * k, KT + 4 * k + 3, L_TAB + 1024 * k))
        A("s_waitcnt lgkmcnt(0)\ns_branch L_t0d")
        A("L_t0v:\ns_call_b64 s[%d:%d], L_vtask\nL_t0d:" % (S_RET, S_RET + 1))
        self.note("st", 2, 4)
        self.stamp(13)
        A("s_barrier")
        for s, t in ql[self.qsplit:]: M(s, t)
        self.k_raw_loads(self.XA, 10, "r1", M)
        for k in range(8): A("ds_read_b128 v[%d:%d], v%d offset:%d" % (KT + 4 * k, KT + 4 * k + 3, VT, L_TAB + 1024 * k))
        for r in range(64): A("v_accvgpr_write_b32 a%d, 0" % (64 + r))
        self.wait("st")
        self.flag_store(1)
        self.stamp(2)
        if self.r2pos == 0: r2loads()
        def qunit(u):
            b = RQ + 24 * u
            self.unpack_tab(UQ, b + 8)
            x1, x2 = 48, 56
            for p in range(4):
                self.unpack(x1 + 2 * p, b + p); self.unpack(x2 + 2 * p, b + 4 + p)
            for p in range(8): A("v_pk_mul_f32 %s, %s, %s" % (P2(x1 + 2 * p), P2(x1 + 2 * p), sp(S_C)))
            for p in range(4): self.rope_p(x1 + 2 * p, x2 + 2 * p, UQ + 8 * p, 12, 14, b + p, b + 4 + p)
            A("ds_write_b128 v%d, v[%d:%d] offset:%d\nds_write_b128 v%d, v[%d:%d] offset:%d" % (LQ, b, b + 3, 128 * u, LQ, b + 4, b + 7, 128 * u + 256))
        self.wait("q0")
        self.stamp(10)
        qunit(0)
        if self.r2pos == 1: r2loads()
        self.wait("q1")
        qunit(1)
        self.stamp(14)
        A("; ---- round 1")
        self.wait("r1", " lgkmcnt(0)")
        self.call_by_role("L_ktask1", "L_ktask0")
        self.note("st", 2, 2)
        M("global_load_dword v%d, v%d, %s sc1" % (AQ, V_PA, sp(S_WS)), "poll")
        A("s_barrier")
        self.stamp(11)
        for f in range(16):
            a = 128 + 4 * f
            A("ds_read_b128 a[%d:%d], v%d offset:%d" % (a, a + 3, V_KOFF0, L_Q + f * 1040))
        self.wait("poll")
        self.stamp(15)
        self.flag_store(1)
        A("v_cmp_ne_u32 vcc, s%d, v%d\ns_mov_b32 s%d, vcc_lo\ns_cmp_lg_u32 vcc_lo, 0\ns_cbranch_scc1 L_nok0" % (S_TAG, AQ, S_HOOK))
        for k in range(8): A(self.ld_k(k, 0))
        A("s_branch L_r2go")
        A("L_nok0:")
        A("global_load_dword v%d, v%d, %s sc1" % (AQ, V_PA, sp(S_WS)))
        A("L_r2go:")
        A("; ---- round 2")
        self.call_by_role("L_vtask", "L_ktask1b")
        self.stamp(12)
        A("s_cmp_eq_u32 s%d, 0\ns_cbranch_scc1 L_havek" % S_HOOK)
        A("s_mov_b32 s%d, 0\ns_waitcnt vmcnt(2)\ns_branch L_p0c" % S_CNT)
        A("L_p0:")
        A("global_load_dword v%d, v%d, %s sc1\ns_waitcnt vmcnt(0)" % (AQ, V_PA, sp(S_WS)))
        A("L_p0c:")
        A("v_cmp_ne_u32 vcc, s%d, v%d\ns_cmp_eq_u32 vcc_lo, 0\ns_cbranch_scc1 L_p0d" % (S_TAG, AQ))
        if self.sleep: A("s_sleep %d" % self.sleep)
        A("s_add_u32 s%d, s%d, 1\ns_cmp_lt_u32 s%d, 0x8000\ns_cbranch_scc1 L_p0" % (S_CNT, S_CNT, S_CNT))
        A("L_p0d:")
        for k in range(8): A(self.ld_k(k, 0))
        A("L_havek:")
        self.stamp(3)
        self.vm = ["K0", "st2", "st2"]; self.vl = ["K0", "st2", "st2", "st2", "st2"]

    def mfma_qk(self, x, idx, kset, first_c=None):
        ql, kt, ks = idx >> 3, (idx >> 2) & 1, idx & 3
        s = V_S[x] + 8 * ql + 4 * kt; k = V_K[kset] + 4 * (4 * kt + ks); q = A_Q(x, ql, ks)
        if ks == 0: c = first_c if first_c is not None else "v[%d:%d]" % (V_NM[x] + 4 * ql, V_NM[x] + 4 * ql + 3)
        else: c = "v[%d:%d]" % (s, s + 3)
        return "v_mfma_f32_16x16x32_bf16 v[%d:%d], v[%d:%d], a[%d:%d], %s" % (s, s + 3, k, k + 3, q, q + 3, c)
    def mfma_pv(self, x, idx, vset, first=False):
        dt, ql = idx >> 1, idx & 1
        o = A_O(x, ql, dt); v = V_V[vset] + 4 * dt; p = V_P[x] + 4 * ql
        c = "0" if first else "a[%d:%d]" % (o, o + 3)
        return "v_mfma_f32_16x16x32_bf16 a[%d:%d], v[%d:%d], v[%d:%d], %s" % (o, o + 3, v, v + 3, p, p + 3, c)
    def ld_k(self, ks, kset):
        r = V_K[kset] + 4 * ks
        return "buffer_load_dwordx4 v[%d:%d], v%d, s[%d:%d], s%d offen offset:%d sc1" % (r, r + 3, V_KOFF0 + (ks >> 2), S_SRD, S_SRD + 3, S_OFF, (ks & 3) * 1024)
    def ld_v(self, idx, vset):
        r = V_V[vset] + 4 * idx
        return "buffer_load_dwordx4 v[%d:%d], v%d, s[%d:%d], s%d offen offset:%d sc1" % (r, r + 3, V_VOFF0 + (idx >> 2), S_SRD, S_SRD + 3, S_OFF, (idx & 3) * 1024)
    def op_e(self, x, r): return "v_exp_f32 v%d, v%d" % (V_E[x] + r, V_S[x] + r)
    def op_a(self, x, r):
        t = V_T[x] + (r >> 3)
        if (r & 7) == 1: return "v_add_f32 v%d, v%d, v%d" % (t, V_E[x] + r - 1, V_E[x] + r)
        return "v_add_f32 v%d, v%d, v%d" % (t, t, V_E[x] + r)
    def op_c(self, x, k): return "v_cvt_pk_bf16_f32 v%d, v%d, v%d" % (V_P[x] + k, V_E[x] + 2 * k, V_E[x] + 2 * k + 1)
    def op_f(self, x, ql): return "v_add_f32 v%d, v%d, v%d" % (V_L[x] + ql, V_L[x] + ql, V_T[x] + ql)
    def op_chk(self, x):
        stub = self.label("L_slow_%s" % x); ret = self.label("L_ret_%s" % x)
        self.stubs.append((stub, ret, x))
        return ["v_add_f32 v%d, v%d, v%d" % (V_CH, V_T[x], V_T[x] + 1), "v_cmp_nge_f32 vcc, s%d, v%d" % (S_THR, V_CH), "s_cbranch_vccnz %s" % stub, "%s:" % ret]

    PERIODS = {
      0: ["e0 F0", "e1 F1", "L", "L a1",
          "e2", "e3 c0", "L", "a2 a3 c1",
          "e4", "e5", "L", "a4 a5 c2",
          "e6 W1", "e7", "L", "a6 a7 c3",
          "e8", "e9", "L", "a9 c4",
          "e10", "e11", "L", "a10 a11 c5",
          "e12", "e13 W2", "L", "a12 a13 c6",
          "e14", "e15", "a14 a15", "c7 K"],
      1: ["e0", "e1", "L", "L",
          "e2", "e3", "F0 F1 a1", "L",
          "e4", "e5", "a2 a3 c0", "L",
          "W1 e6", "e7", "a4 a5 c1", "L",
          "e8", "e9", "a6 a7 c2", "L",
          "e10", "e11", "a9 c3 c4", "L",
          "S1 e12", "W2 e13", "L", "a10 a11 c5",
          "S2 e14", "e15", "a12 a13 a14 c6", "a15 c7 K"],
      2: ["e0", "e1", "L", "L",
          "e2", "e3", "F0 F1", "L",
          "e4", "a1 a2 c0", "e5", "L",
          "W1 e6", "a3 a4 c1", "e7", "L",
          "e8", "a5 a6 c2", "e9", "L",
          "e10", "a7 a9 c3", "e11", "L",
          "S1 e12", "a10 a11 c4", "L", "W2 e13",
          "S2 e14", "e15 c5", "a12 a13 a14 c6", "a15 c7 K"],
    }
    def iteration(self, jp, loads=True):
        out = []
        kq = (jp + 1) & 1
        for p in range(64):
            if p < 16: out.append(self.mfma_qk('a', p, kq))
            elif p < 32: out.append(self.mfma_pv('b', p - 16, jp))
            elif p < 48: out.append(self.mfma_qk('b', p - 32, kq))
            else: out.append(self.mfma_pv('a', p - 48, kq))
            if p < 16: x, u = 'b', p + 16
            elif p < 48: x, u = 'a', p - 16
            else: x, u = 'b', p - 48
            y = 'a' if x == 'b' else 'b'
            for tok in self.PERIOD[u].split():
                c = tok[0]
                if c == 'L':
                    li = sum(self.PERIOD[v].split().count('L') for v in range(u))
                    if not loads: continue
                    if x == 'a': out.append(self.ld_v(li, jp))
                    elif p >= 48: out.append(self.ld_k(li, kq))
                    else: out.append(self.ld_k(li, jp))
                elif c == 'e': out.append(self.op_e(x, int(tok[1:])))
                elif c == 'a': out.append(self.op_a(x, int(tok[1:])))
                elif c == 'c': out.append(self.op_c(x, int(tok[1:])))
                elif c == 'F': out.append(self.op_f(y, int(tok[1:])))
                elif c == 'K': out += self.op_chk(x)
                elif c == 'W':
                    if tok == "W2" and x == 'a': out.append("@WAIT_V")
                    if tok == "W1" and x == 'b': out.append("@WAIT_K")
                elif c == 'S':
                    if x == 'a' and loads: out.append("@" + tok)
        return out
    def emit_iter(self, it):
        A = self.A
        lastv = max(k for k, s in enumerate(it) if s.startswith("buffer_load") and (" v%d," % V_VOFF1) in s)
        for k, s in enumerate(it):
            if s == "@WAIT_V": s = "s_waitcnt vmcnt(%d)" % self.wv
            if s == "@WAIT_K": s = "s_waitcnt vmcnt(%d)" % self.wk
            if s == "@S1": s = "s_add_u32 m0, m0, 1"
            if s == "@S2":
                assert k > lastv
                s = "s_movrels_b32 s%d, s%d" % (S_OFF, S_TBL)
            A(s)
            if "@S1" not in it:
                if k == lastv - 5: A("s_add_u32 m0, m0, 1")
                if k == lastv + 6: A("s_movrels_b32 s%d, s%d" % (S_OFF, S_TBL))
    def compute_waits(self):
        self.stubs = []
        it = self.iteration(0)
        seq = it + it + it
        n = len(it)
        isld = lambda s: s.startswith("buffer_load")
        isv = lambda s: isld(s) and ((" v%d," % V_VOFF0) in s or (" v%d," % V_VOFF1) in s)
        kv = 2 * n + it.index("@WAIT_V")
        lastv = max(k for k in range(n, 2 * n) if isv(seq[k]))
        self.wv = sum(1 for k in range(lastv + 1, kv) if isld(seq[k]))
        kk = 2 * n + it.index("@WAIT_K")
        idx = [k for k, s in enumerate(it) if s.startswith("v_mfma")]
        lastk = 2 * n + max(k for k in range(0, idx[16]) if isld(it[k]))
        self.wk = sum(1 for k in range(lastk + 1, kk) if isld(seq[k]))
        self.uid = 0
        self.stubs = []

    def xlane(self, op, t0, t1):
        o = []
        for sw in ("v_permlane16_swap_b32", "v_permlane32_swap_b32"):
            o += ["v_mov_b32 v%d, v%d" % (t1, t0), "s_nop 1", "%s v%d, v%d" % (sw, t0, t1), "s_nop 1", "%s v%d, v%d, v%d" % (op, t0, t0, t1)]
        return o
    def max8(self, t0, s, last):
        o = ["v_max3_f32 v%d, v%d, v%d, v%d" % (t0, s, s + 1, s + 2)]
        o += ["v_max3_f32 v%d, v%d, v%d, v%d" % (t0, s + r, s + r + 1, t0) for r in (3, 5)]
        o.append("v_max3_f32 v%d, v%d, v%d, %s" % (t0, s + 7, t0, last))
        return o

    def slow_sub(self, x):
        A = self.A
        t0, t1 = V_TMP0, V_TMP1
        A("L_sub_%s:" % x)
        A("s_nop 7")
        for ql in range(2):
            s, nm = V_S[x] + 8 * ql, V_NM[x] + 4 * ql
            for l in self.max8(t0, s, "0") + self.xlane("v_max_f32", t0, t1): A(l)
            A("v_exp_f32 v%d, -v%d" % (t1, t0))
            for r in range(8): A("v_sub_f32 v%d, v%d, v%d" % (s + r, s + r, t0))
            for r in range(4): A("v_sub_f32 v%d, v%d, v%d" % (nm + r, nm + r, t0))
            A("v_mul_f32 v%d, v%d, v%d" % (V_L[x] + ql, V_L[x] + ql, t1))
            for r in range(32):
                a = A_O(x, ql, 0) + r
                A("v_accvgpr_read_b32 v%d, a%d\nv_mul_f32 v%d, v%d, v%d\nv_accvgpr_write_b32 a%d, v%d" % (V_TMP2, a, V_TMP2, V_TMP2, t1, a, V_TMP2))
        for r in range(16): A(self.op_e(x, r))
        A("s_nop 0")
        for r in range(16):
            if r & 7: A(self.op_a(x, r))
        for k in range(8): A(self.op_c(x, k))
        A("s_nop 3")
        A("s_setpc_b64 s[%d:%d]" % (S_RET, S_RET + 1))

    def first_fix(self, x):
        seqs = []
        for ql in range(2):
            s, nm = V_S[x] + 8 * ql, V_NM[x] + 4 * ql
            t0, t1 = V_T[x] + ql, V_E[x] + ql
            o = self.max8(t0, s, "v%d" % t0) + [l for l in self.xlane("v_max_f32", t0, t1)]
            o += ["v_sub_f32 v%d, v%d, v%d" % (s + r, s + r, t0) for r in range(8)]
            o += ["v_sub_f32 v%d, 0, v%d" % (nm + r, t0) for r in range(4)]
            seqs.append(o)
        out = []
        for a, b in zip(*seqs):
            if a == "s_nop 1": out.append("s_nop 0")
            else: out += [a, b]
        return out

    def main(self):
        A = self.A; M = self.M
        S_LL = S_KH
        FIN = 18 if self.nopeel else 16
        for r in range(4): A("v_mov_b32 v%d, 0" % (V_L['a'] + r))
        pend = [(self.ld_v(k, 0), "V0") for k in range(8)] + [None] + [(self.ld_k(k, 1), "K1") for k in range(8)] + [(self.ld_v(k, 1), "V1") for k in range(8)]
        def nxt():
            if not pend: return
            if pend[0] is None:
                pend.pop(0); A("s_mov_b32 s%d, s%d" % (S_OFF, S_TBL + 1))
            M(*pend.pop(0))
        for k in range(self.vpre): nxt()
        self.wait("K0", " lgkmcnt(0)")
        A("s_cmp_eq_u32 s%d, 0\ns_cbranch_scc1 L_k0ok\ns_waitcnt vmcnt(%d)      ; late path: K0 was issued after the round-2 stores\nL_k0ok:" % (S_HOOK, self.vpre))
        self.stamp(4)
        for idx in range(16):
            A(self.mfma_qk('a', idx, 0, first_c="0"))
            if idx & 1: nxt()
        seq = self.first_fix('a')
        for r in range(16):
            seq.append(self.op_e('a', r))
            if r >= 1 and ((r - 1) & 7): seq.append(self.op_a('a', r - 1))
        seq += [self.op_c('a', 0), self.op_a('a', 15)] + [self.op_c('a', k) for k in range(1, 8)]
        pos = 0
        for idx in range(16):
            A(self.mfma_qk('b', idx, 0, first_c="0"))
            if idx < 4:
                if idx & 1: nxt()
            else:
                for s in seq[pos:pos + 2]: A(s)
                pos += 2
        rest = seq[pos:] + self.first_fix('b')
        for k, s in enumerate(rest):
            A(s)
            if k % 4 == 3: nxt()
        while pend: nxt()
        A("s_mov_b32 m0, 2\ns_mov_b32 s%d, s%d" % (S_OFF, S_TBL + 2))
        self.wait("V0")
        self.flag_store(1)
        it = self.iteration(1)
        idx = [k for k, s in enumerate(it) if s.startswith("v_mfma")]
        tail = it[idx[48]:]
        nm = 0
        for s in tail:
            if s.startswith("v_mfma"):
                s = self.mfma_pv('a', nm, 0, first=True); nm += 1
            if s == "@WAIT_K": self.wait("K1"); continue
            if s.startswith("buffer_load"): M(s, "K2"); continue
            A(s)
        self.stamp(5)
        self.cstamp(8)
        A("global_load_dword v%d, v%d, %s sc1       ; stage-1 flags" % (V_FA, V_PA, sp(S_WS)))
        A("s_mov_b32 s%d, 4\ns_mov_b32 s%d, 3" % (S_LL, S_HOOK))
        if self.nopeel: A("s_mov_b32 s%d, 0x1000000\ns_mov_b32 s%d, 0x1000000" % (S_TBL + 16, S_TBL + 17))
        A(".p2align 6")
        A("L_loop:")
        self.emit_iter(self.iteration(0))
        if self.nopeel: A("s_cmp_eq_u32 m0, s%d\ns_cbranch_scc1 L_hook" % S_HOOK)
        else: A("s_cmp_eq_u32 m0, 3\ns_cbranch_scc1 L_hook")
        A("L_mid:")
        self.emit_iter(self.iteration(1))
        A("s_cmp_lt_u32 m0, s%d\ns_cbranch_scc1 L_loop" % S_LL)
        if not self.nopeel: A("s_cmp_eq_u32 m0, 16\ns_cbranch_scc1 L_tail")
        A("s_cmp_eq_u32 m0, 6\ns_cbranch_scc1 L_ev2")
        if self.cpf2:
            A("s_cmp_eq_u32 m0, 4\ns_cbranch_scc1 L_ev1")
            A("s_getpc_b64 s[%d:%d]\nL_pc2:" % (S_T0, S_T1))
            A("v_lshlrev_b32 v%d, 7, v%d\nv_min_u32 v%d, L_end-L_pc2, v%d" % (V_TMP0, V_LANE, V_TMP0, V_TMP0))
            A("global_load_dword v%d, v%d, s[%d:%d]" % (V_FA, V_TMP0, S_T0, S_T1))
            A("s_mov_b32 s%d, %d\ns_branch L_loop" % (S_LL, FIN))
            A("L_ev1:")
        A("v_and_b32 v%d, 4, v%d\nv_cmp_eq_u32 vcc, 0, v%d\nv_xor_b32 v%d, %d, v%d\nv_add_u32 v%d, %d, v%d\nv_cndmask_b32 v%d, v%d, v%d, vcc" %
          (V_TMP0, V_LANE, V_TMP0, V_TMP1, 8 << self.fs, V_PA, V_TMP2, 2 << self.fs, V_PA, V_PA, V_TMP2, V_TMP1))
        A("global_load_dword v%d, v%d, %s sc1" % (V_FA, V_PA, sp(S_WS)))
        A("s_mov_b32 s%d, 6\ns_branch L_loop" % S_LL)
        A("L_ev2:")
        A("s_mov_b32 s%d, %d" % (S_LL, self.cpf2 if self.cpf2 else FIN))
        A("v_cmp_ne_u32 vcc, s%d, v%d\ns_cbranch_vccz L_loop" % (S_TAG, V_FA))
        self.poll(V_PA)
        A("s_branch L_loop")
        A("L_hook:")
        if self.nopeel:
            A("s_cmp_eq_u32 m0, 17\ns_cbranch_scc1 L_tail\ns_mov_b32 s%d, 17" % S_HOOK)
        A("s_waitcnt vmcnt(16)")
        A("v_cmp_ne_u32 vcc, s%d, v%d\ns_cbranch_vccz L_mid" % (S_TAG, V_FA))
        self.poll(V_PA)
        A("s_branch L_mid")
        A("L_tail:")
        if not self.nopeel:
            it = self.iteration(0, loads=False)
            for s in it:
                if s in ("@WAIT_V", "@WAIT_K"): s = "s_waitcnt vmcnt(0)"
                A(s)
        it = self.iteration(1, loads=False)
        idx = [k for k, s in enumerate(it) if s.startswith("v_mfma")]
        prev = ""
        for k, s in enumerate(it[:idx[32]]):
            if s.startswith("v_mfma") and k < idx[16]: continue
            if k >= idx[16] and not s.startswith("v_mfma"):
                if s not in (self.op_f('b', 0), self.op_f('b', 1)): continue
            if s.startswith("@"): continue
            if prev.startswith("v_exp") and not s.startswith("v_exp"): A("s_nop 0")
            A(s); prev = s
        self.stamp(6)
        self.cstamp(9)

    def epilogue(self):
        A = self.A
        ln = V_LANE
        NM = V_NM['a']; LL = V_L['a']
        seqs = [self.xlane("v_add_f32", LL + q, 16 + q) for q in range(4)]
        for grp in zip(*seqs):
            if grp[0].startswith("s_nop"): continue
            for l in grp: A(l)
        for q in range(4): A("v_mov_b32 v%d, v%d" % (NM + 4 * q + 1, LL + q))
        A("s_lshl_b32 s%d, s%d, 11\ns_add_u32 s%d, s%d, %d" % (S_T0, S_W, S_T0, S_T0, L_ST))
        A("v_lshlrev_b32 v44, 3, v%d\nv_add_u32 v45, s%d, v44" % (ln, S_T0))
        for q in range(4): A("ds_write_b64 v45, v[%d:%d] offset:%d" % (NM + 4 * q, NM + 4 * q + 1, 512 * q))
        for d in range(4):
            skip = self.label("L_skipw")
            A("s_cmp_eq_u32 s%d, %d\ns_cbranch_scc1 %s" % (S_W, d, skip))
            A("s_sub_u32 s%d, s%d, %d\ns_and_b32 s%d, s%d, 3\ns_lshl_b32 s%d, s%d, 13\ns_add_u32 s%d, s%d, %d" %
              (S_T0, S_W, d + 1, S_T0, S_T0, S_T0, S_T0, S_T0, S_T0, L_O + d * 3 * 8192))
            A("v_add_u32 v45, s%d, v%d" % (S_T0, V_KOFF0))
            for idx in range(8): A("ds_write_b128 v45, a[%d:%d] offset:%d" % (32 * d + 4 * idx, 32 * d + 4 * idx + 3, idx * 1024))
            A("%s:" % skip)
        own = 128
        done = self.label("L_own")
        for d in range(4):
            nxt = self.label("L_ownn")
            if d < 3: A("s_cmp_lg_u32 s%d, %d\ns_cbranch_scc1 %s" % (S_W, d, nxt))
            for r in range(32): A("v_accvgpr_read_b32 v%d, a%d" % (own + r, 32 * d + r))
            if d < 3: A("s_branch %s\n%s:" % (done, nxt))
        A("%s:" % done)
        A("s_waitcnt lgkmcnt(0)\ns_barrier")
        st = 16
        A("s_lshl_b32 s%d, s%d, 9\ns_add_u32 s%d, s%d, %d" % (S_T1, S_W, S_T1, S_T1, L_ST))
        for k in range(4):
            A("s_add_u32 s%d, s%d, %d\ns_and_b32 s%d, s%d, 3\ns_lshl_b32 s%d, s%d, 11\ns_add_u32 s%d, s%d, s%d" % (S_T0, S_W, k, S_T0, S_T0, S_T0, S_T0, S_T0, S_T0, S_T1))
            A("v_add_u32 v45, s%d, v44" % S_T0)
            A("ds_read_b64 v[%d:%d], v45" % (st + 2 * k, st + 2 * k + 1))
        A("s_mul_i32 s%d, s%d, 24576\ns_add_u32 s%d, s%d, %d\nv_add_u32 v45, s%d, v%d" % (S_T0, S_W, S_T0, S_T0, L_O, S_T0, V_KOFF0))
        pb = 160
        order = [(k, idx) for idx in range(8) for k in range(3)]
        for (k, idx) in order[:9]:
            r = pb + (k * 8 + idx) * 4
            A("ds_read_b128 v[%d:%d], v45 offset:%d" % (r, r + 3, k * 8192 + idx * 1024))
        A("s_waitcnt lgkmcnt(9)")
        F = 32
        A("v_min3_f32 v40, v%d, v%d, v%d\nv_min_f32 v40, v40, v%d" % (st, st + 2, st + 4, st + 6))
        for k in range(4): A("v_sub_f32 v%d, v40, v%d" % (F + k, st + 2 * k))
        for k in range(4): A("v_exp_f32 v%d, v%d" % (F + k, F + k))
        A("s_nop 0")
        A("v_mul_f32 v41, v%d, v%d" % (F, st + 1))
        for k in range(1, 4): A("v_fmac_f32 v41, v%d, v%d" % (F + k, st + 2 * k + 1))
        A("v_rcp_f32 v41, v41\ns_nop 0")
        for k in range(4): A("v_mul_f32 v%d, v%d, v41" % (F + k, F + k))
        A("s_lshl_b32 s%d, s%d, 19\ns_lshl_b32 s%d, s%d, 14\ns_add_u32 s%d, s%d, s%d\ns_lshl_b32 s%d, s%d, 12\ns_add_u32 s%d, s%d, s%d" %
          (S_T0, S_H, S_T1, S_I, S_T0, S_T0, S_T1, S_T1, S_W, S_T0, S_T0, S_T1))
        A("v_and_b32 v42, 15, v%d\nv_lshrrev_b32 v43, 4, v%d\nv_lshlrev_b32 v42, 8, v42\nv_lshl_add_u32 v42, v43, 5, v42\nv_add_u32 v42, s%d, v42" % (ln, ln, S_T0))
        issued = 9
        ob = 48
        for idx in range(8):
            while issued < min(24, 3 * idx + 12):
                k, i2 = order[issued]
                r = pb + (k * 8 + i2) * 4
                A("ds_read_b128 v[%d:%d], v45 offset:%d" % (r, r + 3, k * 8192 + i2 * 1024)); issued += 1
            A("s_waitcnt lgkmcnt(%d)" % (issued - 3 * idx - 3))
            for pr in range(2):
                r = own + idx * 4 + 2 * pr
                A("v_pk_mul_f32 %s, %s, %s op_sel_hi:[1,0]" % (P2(r), P2(r), P2(F)))
                for k in range(3):
                    fr = F + 1 + k
                    q = fr & 1
                    A("v_pk_fma_f32 %s, %s, %s, %s op_sel:[0,%d,0] op_sel_hi:[1,%d,1]" % (P2(r), P2(pb + (k * 8 + idx) * 4 + 2 * pr), P2(fr & ~1), P2(r), q, q))
            if (idx & 3) == 3:
                dh = idx >> 2
                for hf in range(2):
                    o = ob + (dh * 2 + hf) * 4
                    for ii in range(2):
                        i = 2 * hf + ii
                        for tp in range(2):
                            A("v_cvt_pk_bf16_f32 v%d, v%d, v%d" % (o + 2 * ii + tp, own + (dh * 4 + 2 * tp) * 4 + i, own + (dh * 4 + 2 * tp + 1) * 4 + i))
                    A("global_store_dwordx4 v42, v[%d:%d], %s offset:%d %s" % (o, o + 3, sp(S_OUT), 128 * dh + 16 * hf, self.omod))

    def dump_stamps(self):
        if not self.stamps: return
        A = self.A
        A("s_lshl_b32 s100, s2, 2\ns_add_u32 s100, s100, s%d\ns_lshl_b32 s100, s100, 6\ns_add_u32 s100, s100, %d" % (S_W, 16 << 20))
        A("v_lshlrev_b32 v2, 2, v%d\nv_add_u32 v2, s100, v2\ns_mov_b64 exec, 0xffff" % V_LANE)
        A("global_store_dword v2, v%d, %s\ns_mov_b64 exec, -1" % (V_STAMP, sp(S_WS)))

    def build(self):
        A = self.A
        K = NAME + "_kernel"
        self.cold = []
        self.compute_waits()
        hdr = open("cdna_kernels/%s.s.ref" % NAME).read().split("; @launch")[0]
        A(hdr.rstrip("\n"))
        A("; @launch grid=(256,1,1) block=(256,1,1) lds=%d" % LDS_BYTES)
        A('.amdgcn_target "amdgcn-amd-amdhsa--gfx950"\n.text')
        A(".globl %s\n.p2align 8\n.type %s,@function\n%s:" % (K, K, K))
        self.phase1()
        self.main()
        self.epilogue()
        A("s_cmp_lg_u32 s2, 0\ns_cbranch_scc1 L_noep\ns_cmp_lg_u32 s%d, 0\ns_cbranch_scc1 L_noep" % S_W)
        A("v_mov_b32 v1, %d\nv_mov_b32 v2, s%d\ns_mov_b64 exec, 1\nglobal_store_dword v1, v2, %s sc1\ns_mov_b64 exec, -1" % (WS_EPOCH, S_TAG, sp(S_WS)))
        A("L_noep:")
        self.stamp(7)
        self.dump_stamps()
        if self.probe is not None:
            A("v_readlane_b32 s70, v7, %d\ns_nop 3\ns_add_u32 s70, s70, 3000\nL_spin:\ns_memrealtime s[100:101]\ns_waitcnt lgkmcnt(0)\ns_sub_u32 s71, s70, s100\ns_cmp_gt_i32 s71, 0\ns_cbranch_scc1 L_spin" % self.probe)
        A("L_end:\ns_endpgm")
        live = [st for st in self.stubs if any(s.endswith(' ' + st[0]) for s in self.L)]
        for stub, ret, x in live:
            A("%s:\ns_call_b64 s[%d:%d], L_sub_%s\ns_branch %s" % (stub, S_RET, S_RET + 1, x, ret))
        self.subs()
        A("L_codeend:")
        for lab, ret, regs in self.cold:
            A("%s:" % lab)
            for k in range(0, len(regs), 2): self.round_pair(regs[k])
            A("s_branch %s" % ret)
        self.slow_sub('a'); self.slow_sub('b')
        A('.section .rodata,"a"')
        A('.p2align 6\n.amdhsa_kernel %s\n  .amdhsa_next_free_vgpr 512\n  .amdhsa_next_free_sgpr 102\n  .amdhsa_accum_offset 256\n'
          '  .amdhsa_group_segment_fixed_size 0\n  .amdhsa_kernarg_size 112\n  .amdhsa_user_sgpr_count 2\n'
          '  .amdhsa_user_sgpr_kernarg_segment_ptr 1\n  .amdhsa_system_sgpr_workgroup_id_x 1\n.end_amdhsa_kernel' % K)
        return "\n".join(self.L) + "\n"

if __name__ == "__main__":
    ap = argparse.ArgumentParser()
    ap.add_argument("out")
    ap.add_argument("--stamps", action="store_true")
    ap.add_argument("--probe", type=int, default=None)
    ap.add_argument("--sleep", type=int, default=4)
    ap.add_argument("--fs", type=int, default=6)
    ap.add_argument("--omod", default="")
    ap.add_argument("--qsplit", type=int, default=9)
    ap.add_argument("--pollearly", action="store_true")
    ap.add_argument("--r2pos", type=int, default=0)
    ap.add_argument("--vpre", type=int, default=4)
    ap.add_argument("--r1pos", type=int, default=1)
    ap.add_argument("--period", type=int, default=0)
    ap.add_argument("--exactw", type=int, default=1)
    ap.add_argument("--cpf", type=int, default=0)
    ap.add_argument("--cpf2", type=int, default=0)
    ap.add_argument("--nopeel", type=int, default=0)
    ap.add_argument("--hshare", type=int, default=0)
    ap.add_argument("--qbar", type=int, default=0)
    ap.add_argument("--qt", default=""); ap.add_argument("--kt", default="")
    a = ap.parse_args()
    g = Gen(**vars(a))
    open(a.out, "w").write(g.build())
    print("wv", g.wv, "wk", g.wk, "lines", len(g.L))
```

```python
import sys, struct, argparse
NAME = "standalone__kv_cache_quant_pre_rope_vs_post_rope__prompt"
def f32bits(x): return struct.unpack("<I", struct.pack("<f", x))[0]
CSCALE = 1.4426950408889634 * (128.0 ** -0.5)

V_FA = 0
V_KOFF0, V_KOFF1, V_VOFF0, V_VOFF1 = 1, 2, 3, 4
V_LANE, V_PA, V_STAMP = 5, 6, 7
V_T = {'a': 8, 'b': 10}
V_L = {'a': 64, 'b': 66}
V_CH = 68
V_TMP0, V_TMP1, V_TMP2, V_TMP3 = 12, 13, 14, 15
V_S = {'a': 16, 'b': 32}
V_NM = {'a': 48, 'b': 56}
V_E = {'a': 80, 'b': 96}
V_P = {'a': 112, 'b': 120}
V_K = [128, 160]
V_V = [192, 224]
XI = {'a': 0, 'b': 1}
def A_O(x, ql, dt): return ((2 * XI[x] + ql) * 8 + dt) * 4
def A_Q(x, ql, ks): return 128 + ((2 * XI[x] + ql) * 4 + ks) * 4
V_VSC = 36
A_K0, A_K1, A_V = 192, 208, 224
S_Q, S_QK, S_KS, S_KZ, S_QV, S_VS, S_VZ, S_QC, S_QS, S_KC, S_KSN, S_OUT, S_DBG, S_WS = [4 + 2 * i for i in range(14)]
S_H, S_I, S_W, S_TAG = 32, 33, 34, 35
S_T0, S_T1, S_T2, S_T3 = 36, 37, 38, 39
S_SRD = 40
S_OFF, S_THR = 44, 45
S_C = 46
S_TBL = 48
S_RET = 66
S_SC = 68
S_CNT, S_LIM, S_HOOK = 3, 65, 28
S_KH, S_VK, S_ARG = 29, 0, 1
L_KT = 0
L_TAB = 9216
L_Q = L_TAB + 16384
L_ST = L_Q + 16 * 1040
L_O = L_ST + 8192
LDS_BYTES = L_O + 96 * 1024
WS_FK = 8 << 20
WS_FV = WS_FK + (512 << 10)
WS_EPOCH = 9 << 20
THRESH = 1024.0
P2 = lambda r: "v[%d:%d]" % (r, r + 1)
sp = lambda r: "s[%d:%d]" % (r, r + 1)

class Gen:
    def __init__(self, **kw):
        self.L = []
        self.uid = 0
        self.stamps = kw.get("stamps", False)
        self.probe = kw.get("probe", None)
        self.sleep = kw.get("sleep", 4)
        self.fs = kw.get("fs", 6)
        self.abl = kw.get("abl", "")
        self.omod = kw.get("omod", "")
        self.qsplit = kw.get("qsplit", 9)
        self.pollearly = kw.get("pollearly", False)
        self.r2pos = kw.get("r2pos", 0)
        self.vpre = kw.get("vpre", 4)
        self.r1pos = kw.get("r1pos", 1)
        self.PERIOD = self.PERIODS[kw.get("period", 0)]
        self.hshare = kw.get("hshare", 0)
        self.qbar = kw.get("qbar", 0)
        self.qt = kw.get("qt", ""); self.kt = kw.get("kt", "")
        self.vm = []; self.vl = []
        self.exactw = kw.get('exactw', 1)
        self.cpf = kw.get('cpf', 0)
        self.cpf2 = kw.get('cpf2', 0)
        self.nopeel = kw.get('nopeel', 0)
    def A(self, s):
        for line in s.split("\n"): self.L.append(line)
    def label(self, base):
        self.uid += 1
        return "%s_%d" % (base, self.uid)
    def M(self, s, tag):
        self.A(s); self.vm.append(tag); self.vl.append(tag)
    def Mlo(self, s, tag):
        self.A(s); self.vl.append(tag)
    def Mhi(self, s, tag):
        self.A(s); self.vm.append(tag)
    def note(self, tag, nlo, nhi):
        self.vl += [tag] * nlo; self.vm += [tag] * nhi
    def wait(self, tag, extra=""):
        cnt = lambda v: len(v) - 1 - max(k for k, t in enumerate(v) if t == tag)
        nh, nl = cnt(self.vm), cnt(self.vl)
        assert max(nh, nl) <= 63
        if nh == nl or not self.exactw:
            self.A("s_waitcnt vmcnt(%d)%s" % (min(nh, nl), extra))
        else:
            lab = self.label("L_w")
            self.A("s_waitcnt vmcnt(%d)%s" % (max(nh, nl), extra))
            self.A("s_cmp_%s_u32 s%d, 2\ns_cbranch_scc1 %s\ns_waitcnt vmcnt(%d)\n%s:" % ("lt" if nl > nh else "ge", S_W, lab, min(nh, nl), lab))
    def cstamp(self, idx):
        if self.stamps: self.A("s_memtime s[100:101]\ns_waitcnt lgkmcnt(0)\nv_writelane_b32 v%d, s100, %d" % (V_STAMP, idx))
    def stamp(self, idx):
        if self.probe is not None:
            if idx != self.probe: return
        elif not self.stamps: return
        self.A("s_memrealtime s[100:101]\ns_waitcnt lgkmcnt(0)\nv_writelane_b32 v%d, s100, %d" % (V_STAMP, idx))

    def unpack(self, dst, src):
        self.A("v_lshlrev_b32 v%d, 16, v%d\nv_and_b32 v%d, 0xffff0000, v%d" % (dst, src, dst + 1, src))
    def round_pair(self, r):
        self.A("v_cvt_pk_bf16_f32 v%d, v%d, v%d" % (r + 1, r, r + 1))
        self.A("v_lshlrev_b32 v%d, 16, v%d\nv_and_b32 v%d, 0xffff0000, v%d" % (r, r + 1, r + 1, r + 1))
    def int_to_f32(self, regs, tmp):
        for r in regs: self.A("v_cvt_f32_i32 v%d, v%d" % (r, r))
        self.int_guard(regs, tmp)
    def int_guard(self, regs, tmp):
        A = self.A
        A("v_max3_f32 v%d, |v%d|, |v%d|, 0" % (tmp, regs[0], regs[1]))
        for k in range(2, len(regs), 2):
            A("v_max3_f32 v%d, |v%d|, |v%d|, v%d" % (tmp, regs[k], regs[k + 1], tmp))
        lab = self.label("L_big"); ret = self.label("L_bigret")
        A("v_cmp_lt_f32 vcc, 0x43800000, v%d" % tmp)
        A("s_cbranch_vccnz %s" % lab)
        A("%s:" % ret)
        self.cold.append((lab, ret, list(regs)))
    def unpack_tab(self, dst, src):
        for p in range(4):
            for k in range(4): self.unpack(dst + 8 * p + 2 * k, src + 4 * k + p)
    def rope_p(self, a, b, tab, t, u, o1, o2):
        A = self.A
        A("v_pk_mul_f32 %s, %s, %s" % (P2(t), P2(a), P2(tab)))
        A("v_pk_mul_f32 %s, %s, %s" % (P2(u), P2(b), P2(tab + 2)))
        A("v_pk_fma_f32 %s, %s, %s, %s neg_lo:[1,0,0] neg_hi:[1,0,0]" % (P2(t), P2(b), P2(tab + 4), P2(t)))
        A("v_pk_fma_f32 %s, %s, %s, %s" % (P2(u), P2(a), P2(tab + 6), P2(u)))
        A("v_cvt_pk_bf16_f32 v%d, v%d, v%d" % (o1, t, t + 1))
        A("v_cvt_pk_bf16_f32 v%d, v%d, v%d" % (o2, u, u + 1))
    def k_dequant(self, rb, sc, tmp):
        A = self.A
        z = sc + 1
        self.int_to_f32(list(range(rb, rb + 16)), tmp)
        A("v_lshlrev_b32 v%d, 16, v%d\nv_lshlrev_b32 v%d, 16, v%d" % (sc, sc, z, z))
        A("v_mul_f32 v%d, v%d, v%d" % (z, z, sc))
        for p in range(8):
            r = rb + 2 * p
            A("v_pk_fma_f32 %s, %s, %s, %s op_sel:[0,0,1] op_sel_hi:[1,0,1] neg_lo:[0,0,1] neg_hi:[0,0,1]" % (P2(r), P2(r), P2(sc), P2(sc)))
    def v_compute(self, x, rawsc, sc, nz, tmp, o):
        A = self.A
        for p in range(4):
            self.unpack(sc + 2 * p, rawsc + p)
            self.unpack(nz + 2 * p, rawsc + 4 + p)
        for p in range(4): A("v_pk_mul_f32 %s, %s, %s" % (P2(nz + 2 * p), P2(nz + 2 * p), P2(sc + 2 * p)))
    def v_compute2(self, x, sc, nz, tmp, o):
        A = self.A
        self.int_to_f32(list(range(x, x + 16)), tmp)
        for j in range(8):
            r = x + 2 * j; q = j & 1
            A("v_pk_fma_f32 %s, %s, %s, %s op_sel:[0,%d,%d] op_sel_hi:[1,%d,%d] neg_lo:[0,0,1] neg_hi:[0,0,1]" %
              (P2(r), P2(r), P2(sc + (j & ~1)), P2(nz + (j & ~1)), q, q, q, q))
        for e in range(2):
            for jj in range(4):
                A("v_cvt_pk_bf16_f32 v%d, v%d, v%d" % (o + 4 * e + jj, x + 4 * jj + e, x + 4 * jj + 2 + e))

    def raw_loads(self, f, rk, rv, bq, bs, bv, bvs, tagk, tagv):
        o = []
        for k, off in enumerate((0, 16, 256, 272)):
            o.append(("global_load_dwordx4 %s[%d:%d], v%d, %s offset:%d nt" % (f, rk + 4 * k, rk + 4 * k + 3, bq, sp(S_QK), off), tagk))
        o.append(("global_load_ushort %s%d, v%d, %s" % (f, rk + 16, bs, sp(S_KS)), tagk))
        o.append(("global_load_ushort %s%d, v%d, %s" % (f, rk + 17, bs, sp(S_KZ)), tagk))
        for j in range(8):
            off = (8 * (j >> 2) + (j & 3)) * 512 - 2560
            o.append(("global_load_dwordx2 %s[%d:%d], v%d, %s offset:%d nt" % (f, rv + 2 * j, rv + 2 * j + 1, bv, sp(S_QV), off), tagv))
        for q, sr in enumerate((S_VS, S_VZ)):
            for hf in range(2):
                r = rv + 16 + 4 * q + 2 * hf
                o.append(("global_load_dwordx2 %s[%d:%d], v%d, %s offset:%d" % (f, r, r + 1, bvs, sp(sr), 16 * hf), tagv))
        return o

    def flag_store(self, mask):
        A = self.A
        A("v_mov_b32 v%d, s%d" % (V_TMP3, S_TAG))
        A("s_mov_b64 exec, %d" % mask)
        self.M("global_store_dword v%d, v%d, %s sc1" % (V_FA, V_TMP3, sp(S_WS)), "flag")
        A("s_mov_b64 exec, -1")

    def poll(self, reg):
        A = self.A
        lab = self.label("L_poll"); done = self.label("L_polled")
        A("s_mov_b32 s%d, 0" % S_CNT)
        A("%s:" % lab)
        A("global_load_dword v%d, v%d, %s sc1" % (V_TMP0, reg, sp(S_WS)))
        A("s_add_u32 s%d, s%d, 1" % (S_CNT, S_CNT))
        A("s_waitcnt vmcnt(0)")
        A("v_cmp_ne_u32 vcc, s%d, v%d" % (S_TAG, V_TMP0))
        A("s_cbranch_vccz %s" % done)
        if self.sleep: A("s_sleep %d" % self.sleep)
        A("s_cmp_lt_u32 s%d, 0x8000\ns_cbranch_scc1 %s" % (S_CNT, lab))
        A("%s:" % done)

    XA, XB, XV = 16, 80, 96
    AQ, AT, LQ, VT, LW, LR, BO, BK = 32, 33, 34, 35, 36, 37, 38, 39
    KSC = 40
    BVO, PV0 = 44, 45
    RT, VS, RQ, TB, KT, UQ = 48, 64, 128, 176, 192, 224
    def k_raw_loads(self, slot, vaddr, tag, M):
        for k, off in enumerate((0, 16, 256, 272)):
            M("global_load_dwordx4 v[%d:%d], v%d, %s offset:%d nt" % (slot + 4 * k, slot + 4 * k + 3, vaddr, sp(S_QK), off), tag)
    def v_raw_loads(self, vaddr, tag, M):
        for j in range(8):
            M("global_load_dwordx4 v[%d:%d], v%d, %s offset:%d nt" % (self.XV + 4 * j, self.XV + 4 * j + 3, vaddr + (j >> 2), sp(S_QV), (j & 3) * 512), tag)

    def subs(self):
        A = self.A
        X, TB, KT = self.XA, self.TB, self.KT
        fs = self.fs
        O = TB + 4
        A("L_ktask1b:      ; raw data in slot B")
        for r in range(16): A("v_cvt_f32_i32 v%d, v%d" % (X + r, self.XB + r))
        A("s_mov_b32 s%d, s%d\nv_mov_b32 v%d, v%d\nv_mov_b32 v%d, v%d\ns_branch L_kbody" % (S_T3, S_ARG, self.KSC, self.KSC + 2, self.KSC + 1, self.KSC + 3))
        A("L_ktask1:")
        A("s_mov_b32 s%d, s%d\nv_mov_b32 v%d, v%d\nv_mov_b32 v%d, v%d\ns_branch L_kcvt" % (S_T3, S_ARG, self.KSC, self.KSC + 2, self.KSC + 1, self.KSC + 3))
        A("L_ktask0:")
        A("s_mov_b32 s%d, s%d" % (S_T3, S_KH))
        A("L_kcvt:")
        for r in range(16): A("v_cvt_f32_i32 v%d, v%d" % (X + r, X + r))
        A("L_kbody:")
        self.int_guard(list(range(X, X + 16)), TB)
        for p in range(8):
            r = X + 2 * p
            A("v_pk_fma_f32 %s, %s, %s, %s op_sel:[0,0,1] op_sel_hi:[1,0,1] neg_lo:[0,0,1] neg_hi:[0,0,1]" % (P2(r), P2(r), P2(self.KSC), P2(self.KSC)))
        for p in range(4): self.rope_p(X + 2 * p, X + 8 + 2 * p, KT + 8 * p, TB, TB + 2, O + p, O + 4 + p)
        A("ds_write_b128 v%d, v[%d:%d]\nds_write_b128 v%d, v[%d:%d] offset:1152" % (self.LW, O, O + 3, self.LW, O + 4, O + 7))
        A("v_add_u32 v%d, s%d, v%d" % (TB, S_T3, self.BO))
        A("s_lshr_b32 s%d, s%d, 12\ns_add_u32 s%d, s%d, s2\ns_lshl_b32 s%d, s%d, %d\ns_add_u32 s%d, s%d, %d" % (S_T0, S_T3, S_T0, S_T0, S_T0, S_T0, fs, S_T0, S_T0, WS_FK))
        A("s_waitcnt lgkmcnt(0)")
        A("ds_read_b128 v[%d:%d], v%d\nds_read_b128 v[%d:%d], v%d offset:1152" % (O, O + 3, self.LR, O + 4, O + 7, self.LR))
        A("v_mov_b32 v%d, s%d" % (V_FA, S_T0))
        A("s_waitcnt lgkmcnt(1)")
        A("global_store_dwordx4 v%d, v[%d:%d], %s sc1" % (TB, O, O + 3, sp(S_WS)))
        A("s_waitcnt lgkmcnt(0)")
        A("global_store_dwordx4 v%d, v[%d:%d], %s offset:256 sc1" % (TB, O + 4, O + 7, sp(S_WS)))
        A("s_setpc_b64 s[%d:%d]" % (S_RET, S_RET + 1))
        A("L_vtask:")
        x = self.XV
        self.int_to_f32(list(range(x, x + 32)), TB)
        sc, nz = self.VS, self.VS + 8
        for j in range(8):
            q = j & 1
            for hf in range(2):
                r = x + 4 * j + 2 * hf
                A("v_pk_fma_f32 %s, %s, %s, %s op_sel:[0,%d,%d] op_sel_hi:[1,%d,%d] neg_lo:[0,0,1] neg_hi:[0,0,1]" %
                  (P2(r), P2(r), P2(sc + (j & ~1)), P2(nz + (j & ~1)), q, q, q, q))
        for t in range(4):
            o = TB + 4 * t
            for jj in range(4): A("v_cvt_pk_bf16_f32 v%d, v%d, v%d" % (o + jj, x + 8 * jj + t, x + 8 * jj + 4 + t))
            A("global_store_dwordx4 v%d, v[%d:%d], %s offset:%d sc1" % (self.BVO, o, o + 3, sp(S_WS), 1024 * t))
        A("s_lshl_b32 s%d, s%d, 5\ns_add_u32 s%d, s%d, s%d\ns_lshl_b32 s%d, s%d, 2\ns_xor_b32 s%d, s%d, 2\ns_add_u32 s%d, s%d, s%d\ns_lshl_b32 s%d, s%d, %d\ns_add_u32 s%d, s%d, %d\nv_mov_b32 v%d, s%d" %
          (S_T0, S_H, S_T0, S_T0, S_I, S_T0, S_T0, S_T1, S_W, S_T0, S_T0, S_T1, S_T0, S_T0, fs, S_T0, S_T0, WS_FV, V_FA, S_T0))
        A("s_setpc_b64 s[%d:%d]" % (S_RET, S_RET + 1))

    def call_by_role(self, lo, hi):
        A = self.A
        l1 = self.label("L_role"); l2 = self.label("L_roled")
        A("s_cmp_ge_u32 s%d, 2\ns_cbranch_scc1 %s" % (S_W, l1))
        A("s_call_b64 s[%d:%d], %s\ns_branch %s" % (S_RET, S_RET + 1, lo, l2))
        A("%s:\ns_call_b64 s[%d:%d], %s\n%s:" % (l1, S_RET, S_RET + 1, hi, l2))

    def phase1(self):
        A = self.A; M = self.M
        ln = V_LANE
        AQ, AT, LQ, VT, LW, LR, BO, BK, KSC, BVO, PV0 = self.AQ, self.AT, self.LQ, self.VT, self.LW, self.LR, self.BO, self.BK, self.KSC, self.BVO, self.PV0
        RT, VS, RQ, TB, KT, UQ = self.RT, self.VS, self.RQ, self.TB, self.KT, self.UQ
        fs = self.fs
        nul = lambda s_, t_: A(s_)
        if self.cpf:
            A("; pull the kernel's code into L2 early: thread t reads one dword of code line t")
            A("s_getpc_b64 s[%d:%d]\nL_pc:" % (S_RET, S_RET + 1))
            A("v_lshlrev_b32 v14, 7, v0\nv_min_u32 v14, L_codeend-L_pc-4, v14")
        A("s_cmp_ge_u32 s2, 256\ns_cbranch_scc1 L_end")
        if self.cpf: A("global_load_dword v47, v14, s[%d:%d]" % (S_RET, S_RET + 1))
        A("s_load_dwordx16 s[4:19], s[0:1], 0\ns_load_dwordx8 s[20:27], s[0:1], 64\ns_load_dwordx2 s[30:31], s[0:1], 104")
        A("v_lshrrev_b32 v1, 6, v0\nv_and_b32 v%d, 63, v0" % ln)
        hb = self.hshare
        if hb == 0:
            A("s_and_b32 s%d, s2, 7\ns_lshr_b32 s%d, s2, 3" % (S_H, S_I))
        else:
            m = (1 << hb) - 1
            A("s_and_b32 s%d, s2, %d\ns_bfe_u32 s%d, s2, 0x%x\ns_or_b32 s%d, s%d, s%d" % (S_H, 7 & ~m, S_T0, (hb << 16) | 3, S_H, S_H, S_T0))
            A("s_lshr_b32 s%d, s2, %d\ns_lshl_b32 s%d, s%d, %d\ns_and_b32 s%d, s2, %d\ns_or_b32 s%d, s%d, s%d" % (S_I, 3 + hb, S_I, S_I, hb, S_T0, m, S_I, S_I, S_T0))
        A("v_readfirstlane_b32 s%d, v1" % S_W)
        self.stamp(0)
        A("s_lshr_b32 s%d, s2, 2\ns_and_b32 s%d, s%d, 2\ns_sub_u32 s%d, s%d, s%d\ns_and_b32 s%d, s%d, 3\ns_and_b32 s%d, s%d, 1\ns_lshl_b32 s%d, s%d, 2\ns_add_u32 s%d, s%d, s%d\ns_lshl_b32 s%d, s%d, 20" %
          (S_T0, S_T1, S_W, S_T1, S_T1, S_T0, S_T1, S_T1, S_T2, S_W, S_T2, S_T2, S_T1, S_T1, S_T2, S_KH, S_T1))
        A("s_xor_b32 s%d, s%d, 2\ns_sub_u32 s%d, s%d, s%d\ns_and_b32 s%d, s%d, 3\ns_lshr_b32 s%d, s%d, 1\ns_lshl_b32 s%d, s%d, 2\ns_add_u32 s%d, s%d, s%d" %
          (S_T0, S_W, S_T0, S_T0, S_H, S_T0, S_T0, S_T1, S_I, S_T1, S_T1, S_LIM, S_T0, S_T1))
        A("v_lshrrev_b32 v8, 3, v%d\nv_and_b32 v9, 7, v%d\nv_lshlrev_b32 v%d, 8, v8\nv_lshl_add_u32 v%d, v9, 4, v%d" % (ln, ln, AT, AT, AT))
        A("s_lshl_b32 s%d, s2, 11\nv_add_u32 v%d, s%d, v%d\nv_lshlrev_b32 v%d, 1, v%d\nv_add_u32 v10, s%d, v%d" % (S_T0, VT, S_T0, AT, BK, VT, S_KH, BK))
        A("s_lshl_b32 s%d, s%d, 20\ns_lshl_b32 s%d, s%d, 14\ns_add_u32 s%d, s%d, s%d\ns_and_b32 s%d, s%d, 1\ns_lshl_b32 s%d, s%d, 8\ns_add_u32 s%d, s%d, s%d" %
          (S_T0, S_H, S_T1, S_LIM, S_HOOK, S_T0, S_T1, S_T1, S_I, S_T1, S_T1, S_T0, S_HOOK, S_T1))
        A("v_lshrrev_b32 v12, 4, v%d\nv_and_b32 v13, 15, v%d\nv_lshlrev_b32 v%d, 11, v12\nv_lshl_add_u32 v%d, v13, 4, v%d\nv_add_u32 v%d, s%d, v%d\nv_add_u32 v%d, 8192, v%d" %
          (ln, ln, PV0, PV0, PV0, PV0, S_T0, PV0, PV0 + 1, PV0))
        A("s_cmp_ge_u32 s%d, 2" % S_W)
        A("s_waitcnt lgkmcnt(0)")
        A("s_cbranch_scc1 L_r0v")
        self.k_raw_loads(self.XA, 10, "r0", nul)
        for k, (sr, off) in enumerate(((S_KC, 0), (S_KC, 128), (S_KSN, 0), (S_KSN, 128))):
            A("global_load_dwordx4 v[%d:%d], v%d, %s offset:%d %s" % (RT + 4 * k, RT + 4 * k + 3, VT, sp(sr), off, self.kt))
        A("s_branch L_r0d\nL_r0v:")
        self.v_raw_loads(PV0, "r0", M)
        A("L_r0d:")
        if self.probe is not None: self.stamp(16)
        A("; Q: row = 64 i + 16 w + 8u + (l>>3)")
        A("s_lshl_b32 s%d, s%d, 14\ns_lshl_b32 s%d, s%d, 12\ns_add_u32 s%d, s%d, s%d\ns_lshl_b32 s%d, s%d, 19\nv_add_u32 v%d, s%d, v%d\nv_add_u32 v%d, s%d, v%d" % (S_T0, S_I, S_T1, S_W, S_T0, S_T0, S_T1, S_T1, S_H, AT, S_T0, AT, AQ, S_T1, AT))
        ql = []
        for u in range(2):
            b = RQ + 24 * u
            for (r, v, sr, off, m_) in ((0, AQ, S_Q, 0, "nt"), (4, AQ, S_Q, 128, "nt"), (8, AT, S_QC, 0, self.qt), (12, AT, S_QC, 128, self.qt), (16, AT, S_QS, 0, self.qt), (20, AT, S_QS, 128, self.qt)):
                ql.append(("global_load_dwordx4 v[%d:%d], v%d, %s offset:%d %s" % (b + r, b + r + 3, v, sp(sr), 2048 * u + off, m_), "q%d" % u))
        A("s_add_u32 s%d, s%d, 0x100000\ns_and_b32 s%d, s%d, 0x300000\ns_and_b32 s%d, s%d, 0x400000\ns_or_b32 s%d, s%d, s%d" % (S_T2, S_KH, S_T2, S_T2, S_ARG, S_KH, S_ARG, S_ARG, S_T2))
        A("s_lshl_b32 s%d, s2, 4\ns_lshr_b32 s%d, s%d, 8\ns_add_u32 s%d, s%d, s%d\ns_lshr_b32 s%d, s%d, 8\ns_add_u32 s%d, s%d, s%d" % (S_T0, S_T1, S_KH, S_T1, S_T1, S_T0, S_T2, S_ARG, S_T2, S_T2, S_T0))
        A("s_lshl_b32 s%d, s%d, 12\ns_lshl_b32 s%d, s%d, 6\ns_add_u32 s%d, s%d, s%d\ns_mov_b32 s%d, %d" % (S_T3, S_H, S_T0, S_LIM, S_T3, S_T3, S_T0, S_T0, WS_EPOCH))
        A("s_load_dword s%d, %s, s%d" % (S_TAG, sp(S_WS), S_T0))
        A("s_load_dwordx4 s[%d:%d], %s, s%d\ns_load_dwordx4 s[%d:%d], %s, s%d" % (S_SC, S_SC + 3, sp(S_KS), S_T1, S_SC + 4, S_SC + 7, sp(S_KZ), S_T1))
        A("s_load_dwordx4 s[%d:%d], %s, s%d\ns_load_dwordx4 s[%d:%d], %s, s%d" % (S_SC + 8, S_SC + 11, sp(S_KS), S_T2, S_SC + 12, S_SC + 15, sp(S_KZ), S_T2))
        A("s_load_dwordx16 s[48:63], %s, s%d\ns_load_dwordx16 s[84:99], %s, s%d" % (sp(S_VS), S_T3, sp(S_VZ), S_T3))
        for s, t in ql[:self.qsplit]: M(s, t)
        A("v_lshlrev_b32 v%d, 4, v%d\nv_add_u32 v%d, 4096, v%d\nv_add_u32 v%d, 8192, v%d\nv_add_u32 v%d, 12288, v%d" % (V_KOFF0, ln, V_KOFF1, V_KOFF0, V_VOFF0, V_KOFF0, V_VOFF1, V_KOFF0))
        A("s_mul_i32 s0, s%d, 2304" % S_W)
        A("v_mul_u32_u24 v%d, 144, v9\nv_lshl_add_u32 v%d, v8, 4, v%d\nv_add_u32 v%d, s0, v%d" % (LW, LW, LW, LW, LW))
        A("v_mul_u32_u24 v%d, 144, v8\nv_lshl_add_u32 v%d, v9, 4, v%d\nv_add_u32 v%d, s0, v%d" % (LR, LR, LR, LR, LR))
        A("; BO = (p>>2)*16384 + ((p>>1)&1)*4096 + (p&1)*128 + (l>>3)*512 + (l&7)*16")
        A("s_lshr_b32 s0, s2, 2\ns_lshl_b32 s0, s0, 14\ns_and_b32 s3, s2, 1\ns_lshl_b32 s3, s3, 7\ns_add_u32 s0, s0, s3\ns_and_b32 s3, s2, 2\ns_lshl_b32 s3, s3, 11\ns_add_u32 s0, s0, s3")
        A("v_lshlrev_b32 v%d, 9, v8\nv_lshl_add_u32 v%d, v9, 4, v%d\nv_add_u32 v%d, s0, v%d" % (BO, BO, BO, BO, BO))
        A("s_and_b32 s0, s%d, 1\ns_lshl_b32 s0, s0, 12\ns_add_u32 s0, s0, s%d\nv_add_u32 v%d, s0, v%d" % (S_I, S_HOOK, BVO, V_VOFF0))
        A("s_mul_i32 s0, s%d, 4160\ns_add_u32 s0, s0, %d" % (S_W, L_Q))
        A("v_lshrrev_b32 v12, 1, v9\nv_mul_u32_u24 v%d, 1040, v12\nv_and_b32 v12, 1, v9\nv_lshl_add_u32 v%d, v12, 9, v%d\nv_lshl_add_u32 v%d, v8, 4, v%d\nv_add_u32 v%d, s0, v%d" % (LQ, LQ, LQ, LQ, LQ, LQ, LQ))
        A("v_lshrrev_b32 v12, 5, v%d\nv_bfe_u32 v13, v%d, 3, 2\nv_lshl_add_u32 v13, v13, 2, s%d" % (ln, ln, S_W))
        A("v_subrev_u32 v14, s%d, v12\nv_and_b32 v14, 3, v14\nv_lshl_add_u32 v14, v13, 2, v14\nv_lshlrev_b32 v14, 2, v14\nv_add_u32 v14, v9, v14" % S_H)
        A("s_lshl_b32 s0, s%d, 8\nv_add_u32 v14, s0, v14\nv_lshlrev_b32 v14, %d, v14\nv_add_u32 v14, %d, v14" % (S_H, fs, WS_FK))
        A("v_and_b32 v15, 1, v9\nv_lshl_add_u32 v15, v13, 1, v15\nv_lshl_add_u32 v15, v15, 2, v12\ns_lshl_b32 s0, s%d, 7\nv_add_u32 v15, s0, v15\nv_lshlrev_b32 v15, %d, v15\nv_add_u32 v15, %d, v15" % (S_H, fs, WS_FV))
        A("v_cmp_gt_u32 vcc, 4, v9\ns_nop 1\nv_cndmask_b32 v%d, v15, v14, vcc" % V_PA)
        A("v_add_u32 v11, s%d, v%d\ns_cmp_lt_u32 s%d, 2\ns_cselect_b32 s0, s%d, s%d\nv_add_u32 v10, s0, v%d" % (S_ARG, BK, S_W, S_ARG, S_KH, BK))
        A("s_mov_b32 s%d, 0x%08x\ns_mov_b32 s%d, 0x%08x\ns_mov_b32 s%d, 0x%08x" % (S_C, f32bits(CSCALE), S_C + 1, f32bits(CSCALE), S_THR, f32bits(THRESH)))
        A("s_mov_b32 s%d, s%d\ns_mov_b32 s%d, s%d\ns_mov_b32 s%d, 0x800000\ns_mov_b32 s%d, 0x20000" % (S_SRD, S_WS, S_SRD + 1, S_WS + 1, S_SRD + 2, S_SRD + 3))
        A("v_and_b32 v12, 1, v8\nv_lshlrev_b32 v12, 4, v12")
        A("s_waitcnt lgkmcnt(0)")
        for g in range(4):
            if g: A("s_lshl_b64 exec, -1, %d" % (16 * g))
            for k in range(4): A("v_mov_b32 v%d, s%d" % (KSC + k, S_SC + 4 * k + g))
            for z, sb in enumerate((48, 84)):
                for k, dw in enumerate((0, 1, 8, 9)): A("v_mov_b32 v%d, s%d" % (TB + 4 * z + k, sb + dw + 2 * g))
        A("s_mov_b64 exec, -1")
        for k in range(4): A("v_lshrrev_b32 v%d, v12, v%d\nv_lshlrev_b32 v%d, 16, v%d" % (KSC + k, KSC + k, KSC + k, KSC + k))
        A("v_mul_f32 v%d, v%d, v%d\nv_mul_f32 v%d, v%d, v%d" % (KSC + 1, KSC + 1, KSC, KSC + 3, KSC + 3, KSC + 2))
        self.v_compute(None, TB, VS, VS + 8, None, None)
        A("s_lshl_b32 s%d, s%d, 20\ns_lshl_b32 s%d, s%d, 16\ns_add_u32 s%d, s%d, s%d" % (S_T0, S_H, S_T1, S_W, S_T0, S_T0, S_T1))
        A("s_lshr_b32 s%d, s%d, %d" % (S_T2, S_I, self.hshare))
        for n in range(4):
            A("s_add_u32 s%d, s%d, %d\ns_and_b32 s%d, s%d, 3\ns_lshl_b32 s%d, s%d, 18\ns_add_u32 s%d, s%d, s%d" % (S_T1, S_T2, n, S_T1, S_T1, S_T1, S_T1, S_TBL + 12 + n, S_T1, S_T0))
        for sg in range(4):
            A("s_sub_u32 s%d, %d, s%d\ns_and_b32 s%d, s%d, 3\ns_lshl_b32 s%d, s%d, 14" % (S_T1, sg, S_H, S_T1, S_T1, S_T1, S_T1))
            for n in range(4): A("s_add_u32 s%d, s%d, s%d" % (S_TBL + 4 * sg + n, S_TBL + 12 + n, S_T1))
        A("s_mov_b32 s%d, 0x1000000\ns_mov_b32 s%d, s%d" % (S_TBL + 16, S_OFF, S_TBL))
        A("s_add_u32 s%d, s%d, 0x9e3779b9" % (S_TAG, S_TAG))
        A("s_and_b32 s0, s%d, 1\ns_lshl_b32 s0, s0, 13\nv_add_u32 v%d, s0, v%d" % (S_W, VT, V_KOFF0))
        def r2loads():
            A("s_cmp_ge_u32 s%d, 2\ns_cbranch_scc1 L_r2k" % S_W)
            self.v_raw_loads(PV0, "r2", self.Mlo)
            A("s_branch L_r2d\nL_r2k:")
            self.k_raw_loads(self.XB, 11, "r2", self.Mhi)
            A("L_r2d:")
        A("; ---- round 0")
        self.wait("r0")
        self.stamp(1)
        A("s_cmp_ge_u32 s%d, 2\ns_cbranch_scc1 L_t0v" % S_W)
        self.unpack_tab(KT, RT)
        A("s_call_b64 s[%d:%d], L_ktask0" % (S_RET, S_RET + 1))
        for k in range(8): A("ds_write_b128 v%d, v[%d:%d] offset:%d" % (VT, KT + 4 * k, KT + 4 * k + 3, L_TAB + 1024 * k))
        A("s_waitcnt lgkmcnt(0)\ns_branch L_t0d")
        A("L_t0v:\ns_call_b64 s[%d:%d], L_vtask\nL_t0d:" % (S_RET, S_RET + 1))
        self.note("st", 2, 4)
        self.stamp(13)
        A("s_barrier")
        for s, t in ql[self.qsplit:]: M(s, t)
        self.k_raw_loads(self.XA, 10, "r1", M)
        for k in range(8): A("ds_read_b128 v[%d:%d], v%d offset:%d" % (KT + 4 * k, KT + 4 * k + 3, VT, L_TAB + 1024 * k))
        for r in range(64): A("v_accvgpr_write_b32 a%d, 0" % (64 + r))
        self.wait("st")
        self.flag_store(1)
        self.stamp(2)
        if self.r2pos == 0: r2loads()
        def qunit(u):
            b = RQ + 24 * u
            self.unpack_tab(UQ, b + 8)
            x1, x2 = 48, 56
            for p in range(4):
                self.unpack(x1 + 2 * p, b + p); self.unpack(x2 + 2 * p, b + 4 + p)
            for p in range(8): A("v_pk_mul_f32 %s, %s, %s" % (P2(x1 + 2 * p), P2(x1 + 2 * p), sp(S_C)))
            for p in range(4): self.rope_p(x1 + 2 * p, x2 + 2 * p, UQ + 8 * p, 12, 14, b + p, b + 4 + p)
            A("ds_write_b128 v%d, v[%d:%d] offset:%d\nds_write_b128 v%d, v[%d:%d] offset:%d" % (LQ, b, b + 3, 128 * u, LQ, b + 4, b + 7, 128 * u + 256))
        self.wait("q0")
        self.stamp(10)
        qunit(0)
        if self.r2pos == 1: r2loads()
        self.wait("q1")
        qunit(1)
        self.stamp(14)
        A("; ---- round 1")
        self.wait("r1", " lgkmcnt(0)")
        self.call_by_role("L_ktask1", "L_ktask0")
        self.note("st", 2, 2)
        M("global_load_dword v%d, v%d, %s sc1" % (AQ, V_PA, sp(S_WS)), "poll")
        A("s_barrier")
        self.stamp(11)
        for f in range(16):
            a = 128 + 4 * f
            A("ds_read_b128 a[%d:%d], v%d offset:%d" % (a, a + 3, V_KOFF0, L_Q + f * 1040))
        self.wait("poll")
        self.stamp(15)
        self.flag_store(1)
        A("v_cmp_ne_u32 vcc, s%d, v%d\ns_mov_b32 s%d, vcc_lo\ns_cmp_lg_u32 vcc_lo, 0\ns_cbranch_scc1 L_nok0" % (S_TAG, AQ, S_HOOK))
        for k in range(8): A(self.ld_k(k, 0))
        A("s_branch L_r2go")
        A("L_nok0:")
        A("global_load_dword v%d, v%d, %s sc1" % (AQ, V_PA, sp(S_WS)))
        A("L_r2go:")
        A("; ---- round 2")
        self.call_by_role("L_vtask", "L_ktask1b")
        self.stamp(12)
        A("s_cmp_eq_u32 s%d, 0\ns_cbranch_scc1 L_havek" % S_HOOK)
        A("s_mov_b32 s%d, 0\ns_waitcnt vmcnt(2)\ns_branch L_p0c" % S_CNT)
        A("L_p0:")
        A("global_load_dword v%d, v%d, %s sc1\ns_waitcnt vmcnt(0)" % (AQ, V_PA, sp(S_WS)))
        A("L_p0c:")
        A("v_cmp_ne_u32 vcc, s%d, v%d\ns_cmp_eq_u32 vcc_lo, 0\ns_cbranch_scc1 L_p0d" % (S_TAG, AQ))
        if self.sleep: A("s_sleep %d" % self.sleep)
        A("s_add_u32 s%d, s%d, 1\ns_cmp_lt_u32 s%d, 0x8000\ns_cbranch_scc1 L_p0" % (S_CNT, S_CNT, S_CNT))
        A("L_p0d:")
        for k in range(8): A(self.ld_k(k, 0))
        A("L_havek:")
        self.stamp(3)
        self.vm = ["K0", "st2", "st2"]; self.vl = ["K0", "st2", "st2", "st2", "st2"]

    def mfma_qk(self, x, idx, kset, first_c=None):
        ql, kt, ks = idx >> 3, (idx >> 2) & 1, idx & 3
        s = V_S[x] + 8 * ql + 4 * kt; k = V_K[kset] + 4 * (4 * kt + ks); q = A_Q(x, ql, ks)
        if ks == 0: c = first_c if first_c is not None else "v[%d:%d]" % (V_NM[x] + 4 * ql, V_NM[x] + 4 * ql + 3)
        else: c = "v[%d:%d]" % (s, s + 3)
        return "v_mfma_f32_16x16x32_bf16 v[%d:%d], v[%d:%d], a[%d:%d], %s" % (s, s + 3, k, k + 3, q, q + 3, c)
    def mfma_pv(self, x, idx, vset, first=False):
        dt, ql = idx >> 1, idx & 1
        o = A_O(x, ql, dt); v = V_V[vset] + 4 * dt; p = V_P[x] + 4 * ql
        c = "0" if first else "a[%d:%d]" % (o, o + 3)
        return "v_mfma_f32_16x16x32_bf16 a[%d:%d], v[%d:%d], v[%d:%d], %s" % (o, o + 3, v, v + 3, p, p + 3, c)
    def ld_k(self, ks, kset):
        r = V_K[kset] + 4 * ks
        return "buffer_load_dwordx4 v[%d:%d], v%d, s[%d:%d], s%d offen offset:%d sc1" % (r, r + 3, V_KOFF0 + (ks >> 2), S_SRD, S_SRD + 3, S_OFF, (ks & 3) * 1024)
    def ld_v(self, idx, vset):
        r = V_V[vset] + 4 * idx
        return "buffer_load_dwordx4 v[%d:%d], v%d, s[%d:%d], s%d offen offset:%d sc1" % (r, r + 3, V_VOFF0 + (idx >> 2), S_SRD, S_SRD + 3, S_OFF, (idx & 3) * 1024)
    def op_e(self, x, r): return "v_exp_f32 v%d, v%d" % (V_E[x] + r, V_S[x] + r)
    def op_a(self, x, r):
        t = V_T[x] + (r >> 3)
        if (r & 7) == 1: return "v_add_f32 v%d, v%d, v%d" % (t, V_E[x] + r - 1, V_E[x] + r)
        return "v_add_f32 v%d, v%d, v%d" % (t, t, V_E[x] + r)
    def op_c(self, x, k): return "v_cvt_pk_bf16_f32 v%d, v%d, v%d" % (V_P[x] + k, V_E[x] + 2 * k, V_E[x] + 2 * k + 1)
    def op_f(self, x, ql): return "v_add_f32 v%d, v%d, v%d" % (V_L[x] + ql, V_L[x] + ql, V_T[x] + ql)
    def op_chk(self, x):
        stub = self.label("L_slow_%s" % x); ret = self.label("L_ret_%s" % x)
        self.stubs.append((stub, ret, x))
        return ["v_add_f32 v%d, v%d, v%d" % (V_CH, V_T[x], V_T[x] + 1), "v_cmp_nge_f32 vcc, s%d, v%d" % (S_THR, V_CH), "s_cbranch_vccnz %s" % stub, "%s:" % ret]

    PERIODS = {
      0: ["e0 F0", "e1 F1", "L", "L a1",
          "e2", "e3 c0", "L", "a2 a3 c1",
          "e4", "e5", "L", "a4 a5 c2",
          "e6 W1", "e7", "L", "a6 a7 c3",
          "e8", "e9", "L", "a9 c4",
          "e10", "e11", "L", "a10 a11 c5",
          "e12", "e13 W2", "L", "a12 a13 c6",
          "e14", "e15", "a14 a15", "c7 K"],
      1: ["e0", "e1", "L", "L",
          "e2", "e3", "F0 F1 a1", "L",
          "e4", "e5", "a2 a3 c0", "L",
          "W1 e6", "e7", "a4 a5 c1", "L",
          "e8", "e9", "a6 a7 c2", "L",
          "e10", "e11", "a9 c3 c4", "L",
          "S1 e12", "W2 e13", "L", "a10 a11 c5",
          "S2 e14", "e15", "a12 a13 a14 c6", "a15 c7 K"],
      3: ["e0", "e1", "L", "L",
          "e2", "Y7 e3", "F0 F1 a1", "L",
          "e4", "e5", "a2 a3 c0", "L",
          "e6", "X3 e7", "a4 a5 c1", "L",
          "e8", "e9", "Z7 a6 a7 c2", "L",
          "e10", "e11", "a9 c3 c4", "L",
          "S1 e12", "e13", "L", "a10 a11 c5",
          "S2 e14", "V2 e15", "a12 a13 a14 c6", "a15 c7 K"],
      2: ["e0", "e1", "L", "L",
          "e2", "e3", "F0 F1", "L",
          "e4", "a1 a2 c0", "e5", "L",
          "W1 e6", "a3 a4 c1", "e7", "L",
          "e8", "a5 a6 c2", "e9", "L",
          "e10", "a7 a9 c3", "e11", "L",
          "S1 e12", "a10 a11 c4", "L", "W2 e13",
          "S2 e14", "e15 c5", "a12 a13 a14 c6", "a15 c7 K"],
    }
    def iteration(self, jp, loads=True):
        out = []
        kq = (jp + 1) & 1
        for p in range(64):
            if p < 16: out.append(self.mfma_qk('a', p, kq))
            elif p < 32: out.append(self.mfma_pv('b', p - 16, jp))
            elif p < 48: out.append(self.mfma_qk('b', p - 32, kq))
            else: out.append(self.mfma_pv('a', p - 48, kq))
            if p < 16: x, u = 'b', p + 16
            elif p < 48: x, u = 'a', p - 16
            else: x, u = 'b', p - 48
            y = 'a' if x == 'b' else 'b'
            for tok in self.PERIOD[u].split():
                c = tok[0]
                if c == 'L':
                    li = sum(self.PERIOD[v].split().count('L') for v in range(u))
                    if not loads: continue
                    if x == 'a': out.append(self.ld_v(li, jp))
                    elif p >= 48: out.append(self.ld_k(li, kq))
                    else: out.append(self.ld_k(li, jp))
                elif c == 'e': out.append(self.op_e(x, int(tok[1:])))
                elif c == 'a': out.append(self.op_a(x, int(tok[1:])))
                elif c == 'c': out.append(self.op_c(x, int(tok[1:])))
                elif c == 'F': out.append(self.op_f(y, int(tok[1:])))
                elif c == 'K': out += self.op_chk(x)
                elif c == 'W':
                    if tok == "W2" and x == 'a': out.append("@WAIT_V")
                    if tok == "W1" and x == 'b': out.append("@WAIT_K")
                elif c == 'X':
                    if x == 'b': out.append("@WK%s" % tok[1:])
                elif c == 'Z':
                    if x == 'b': out.append("@WZ%s" % tok[1:])
                elif c == 'V':
                    if x == 'a': out.append("@WV%s" % tok[1:])
                elif c == 'Y':
                    if x == 'b': out.append("@WY%s" % tok[1:])
                elif c == 'S':
                    if x == 'a' and loads: out.append("@" + tok)
        return out
    def emit_iter(self, it):
        A = self.A
        lastv = max(k for k, s in enumerate(it) if s.startswith("buffer_load") and (" v%d," % V_VOFF1) in s)
        for k, s in enumerate(it):
            if s.startswith("@W"): s = "s_waitcnt vmcnt(%d)" % self.wc[s]
            if s == "@S1": s = "s_add_u32 m0, m0, 1"
            if s == "@S2":
                assert k > lastv
                s = "s_movrels_b32 s%d, s%d" % (S_OFF, S_TBL)
            A(s)
            if "@S1" not in it:
                if k == lastv - 5: A("s_add_u32 m0, m0, 1")
                if k == lastv + 6: A("s_movrels_b32 s%d, s%d" % (S_OFF, S_TBL))
    def compute_waits(self):
        self.stubs = []
        it = self.iteration(0)
        n = len(it)
        isld = lambda s: s.startswith("buffer_load")
        isv = lambda s: isld(s) and ((" v%d," % V_VOFF0) in s or (" v%d," % V_VOFF1) in s)
        idx = [k for k, s in enumerate(it) if s.startswith("v_mfma")]
        seq = []
        for j in range(4):
            kf = sum(1 for k in range(idx[48], n) if isld(it[k])); vf = 0; k2 = 0
            for k, s in enumerate(it):
                if isld(s):
                    if isv(s): seq.append(("V", j + 2, vf)); vf += 1
                    elif k < idx[16]: seq.append(("K", j + 2, kf)); kf += 1
                    else: seq.append(("K", j + 3, k2)); k2 += 1
                elif s.startswith("@W"): seq.append((s, j))
        self.wc = {}
        J = 3
        for p, e in enumerate(seq):
            if len(e) == 2 and e[1] == J:
                t = e[0]
                if t == "@WAIT_V": need = ("V", J + 1, 7)
                elif t == "@WAIT_K": need = ("K", J + 2, 7)
                elif t.startswith("@WK"): need = ("K", J + 2, int(t[3:]))
                elif t.startswith("@WZ"): need = ("K", J + 1, int(t[3:]))
                elif t.startswith("@WV") or t.startswith("@WY"): need = ("V", J + 1, int(t[3:]))
                q = seq.index(need)
                self.wc[t] = sum(1 for z in seq[q + 1:p] if len(z) == 3)
        self.wv = self.wc.get("@WAIT_V", -1); self.wk = self.wc.get("@WAIT_K", -1)
        self.uid = 0
        self.stubs = []

    def xlane(self, op, t0, t1):
        o = []
        for sw in ("v_permlane16_swap_b32", "v_permlane32_swap_b32"):
            o += ["v_mov_b32 v%d, v%d" % (t1, t0), "s_nop 1", "%s v%d, v%d" % (sw, t0, t1), "s_nop 1", "%s v%d, v%d, v%d" % (op, t0, t0, t1)]
        return o
    def max8(self, t0, s, last):
        o = ["v_max3_f32 v%d, v%d, v%d, v%d" % (t0, s, s + 1, s + 2)]
        o += ["v_max3_f32 v%d, v%d, v%d, v%d" % (t0, s + r, s + r + 1, t0) for r in (3, 5)]
        o.append("v_max3_f32 v%d, v%d, v%d, %s" % (t0, s + 7, t0, last))
        return o

    def slow_sub(self, x):
        A = self.A
        t0, t1 = V_TMP0, V_TMP1
        A("L_sub_%s:" % x)
        A("s_nop 7")
        for ql in range(2):
            s, nm = V_S[x] + 8 * ql, V_NM[x] + 4 * ql
            for l in self.max8(t0, s, "0") + self.xlane("v_max_f32", t0, t1): A(l)
            A("v_exp_f32 v%d, -v%d" % (t1, t0))
            for r in range(8): A("v_sub_f32 v%d, v%d, v%d" % (s + r, s + r, t0))
            for r in range(4): A("v_sub_f32 v%d, v%d, v%d" % (nm + r, nm + r, t0))
            A("v_mul_f32 v%d, v%d, v%d" % (V_L[x] + ql, V_L[x] + ql, t1))
            for r in range(32):
                a = A_O(x, ql, 0) + r
                A("v_accvgpr_read_b32 v%d, a%d\nv_mul_f32 v%d, v%d, v%d\nv_accvgpr_write_b32 a%d, v%d" % (V_TMP2, a, V_TMP2, V_TMP2, t1, a, V_TMP2))
        for r in range(16): A(self.op_e(x, r))
        A("s_nop 0")
        for r in range(16):
            if r & 7: A(self.op_a(x, r))
        for k in range(8): A(self.op_c(x, k))
        A("s_nop 3")
        A("s_setpc_b64 s[%d:%d]" % (S_RET, S_RET + 1))

    def first_fix(self, x):
        seqs = []
        for ql in range(2):
            s, nm = V_S[x] + 8 * ql, V_NM[x] + 4 * ql
            t0, t1 = V_T[x] + ql, V_E[x] + ql
            o = self.max8(t0, s, "v%d" % t0) + [l for l in self.xlane("v_max_f32", t0, t1)]
            o += ["v_sub_f32 v%d, v%d, v%d" % (s + r, s + r, t0) for r in range(8)]
            o += ["v_sub_f32 v%d, 0, v%d" % (nm + r, t0) for r in range(4)]
            seqs.append(o)
        out = []
        for a, b in zip(*seqs):
            if a == "s_nop 1": out.append("s_nop 0")
            else: out += [a, b]
        return out

    def main(self):
        A = self.A; M = self.M
        S_LL = S_KH
        FIN = 18 if self.nopeel else 16
        for r in range(4): A("v_mov_b32 v%d, 0" % (V_L['a'] + r))
        pend = [(self.ld_v(k, 0), "V0") for k in range(8)] + [None] + [(self.ld_k(k, 1), "K1") for k in range(8)] + [(self.ld_v(k, 1), "V1") for k in range(8)]
        def nxt():
            if not pend: return
            if pend[0] is None:
                pend.pop(0); A("s_mov_b32 s%d, s%d" % (S_OFF, S_TBL + 1))
            M(*pend.pop(0))
        for k in range(self.vpre): nxt()
        self.wait("K0", " lgkmcnt(0)")
        A("s_cmp_eq_u32 s%d, 0\ns_cbranch_scc1 L_k0ok\ns_waitcnt vmcnt(%d)      ; late path: K0 was issued after the round-2 stores\nL_k0ok:" % (S_HOOK, self.vpre))
        self.stamp(4)
        for idx in range(16):
            A(self.mfma_qk('a', idx, 0, first_c="0"))
            if idx & 1: nxt()
        seq = self.first_fix('a')
        for r in range(16):
            seq.append(self.op_e('a', r))
            if r >= 1 and ((r - 1) & 7): seq.append(self.op_a('a', r - 1))
        seq += [self.op_c('a', 0), self.op_a('a', 15)] + [self.op_c('a', k) for k in range(1, 8)]
        pos = 0
        for idx in range(16):
            A(self.mfma_qk('b', idx, 0, first_c="0"))
            if idx < 4:
                if idx & 1: nxt()
            else:
                for s in seq[pos:pos + 2]: A(s)
                pos += 2
        rest = seq[pos:] + self.first_fix('b')
        for k, s in enumerate(rest):
            A(s)
            if k % 4 == 3: nxt()
        while pend: nxt()
        A("s_mov_b32 m0, 2\ns_mov_b32 s%d, s%d" % (S_OFF, S_TBL + 2))
        self.wait("V0")
        self.flag_store(1)
        it = self.iteration(1)
        idx = [k for k, s in enumerate(it) if s.startswith("v_mfma")]
        tail = it[idx[48]:]
        nm = 0
        for s in tail:
            if s.startswith("v_mfma"):
                s = self.mfma_pv('a', nm, 0, first=True); nm += 1
            if s == "@WAIT_K" or s.startswith("@WK"): self.wait("K1"); continue
            if s.startswith("@WY"): continue
            if s.startswith("buffer_load"): M(s, "K2"); continue
            A(s)
        self.stamp(5)
        self.cstamp(8)
        A("global_load_dword v%d, v%d, %s sc1       ; stage-1 flags" % (V_FA, V_PA, sp(S_WS)))
        A("s_mov_b32 s%d, 4\ns_mov_b32 s%d, 3" % (S_LL, S_HOOK))
        if self.nopeel: A("s_mov_b32 s%d, 0x1000000\ns_mov_b32 s%d, 0x1000000" % (S_TBL + 16, S_TBL + 17))
        A(".p2align 6")
        A("L_loop:")
        self.emit_iter(self.iteration(0))
        if self.nopeel: A("s_cmp_eq_u32 m0, s%d\ns_cbranch_scc1 L_hook" % S_HOOK)
        else: A("s_cmp_eq_u32 m0, 3\ns_cbranch_scc1 L_hook")
        A("L_mid:")
        self.emit_iter(self.iteration(1))
        A("s_cmp_lt_u32 m0, s%d\ns_cbranch_scc1 L_loop" % S_LL)
        if not self.nopeel: A("s_cmp_eq_u32 m0, 16\ns_cbranch_scc1 L_tail")
        A("s_cmp_eq_u32 m0, 6\ns_cbranch_scc1 L_ev2")
        if self.cpf2:
            A("s_cmp_eq_u32 m0, 4\ns_cbranch_scc1 L_ev1")
            A("s_getpc_b64 s[%d:%d]\nL_pc2:" % (S_T0, S_T1))
            A("v_lshlrev_b32 v%d, 7, v%d\nv_min_u32 v%d, L_end-L_pc2, v%d" % (V_TMP0, V_LANE, V_TMP0, V_TMP0))
            A("global_load_dword v%d, v%d, s[%d:%d]" % (V_FA, V_TMP0, S_T0, S_T1))
            A("s_mov_b32 s%d, %d\ns_branch L_loop" % (S_LL, FIN))
            A("L_ev1:")
        A("v_and_b32 v%d, 4, v%d\nv_cmp_eq_u32 vcc, 0, v%d\nv_xor_b32 v%d, %d, v%d\nv_add_u32 v%d, %d, v%d\nv_cndmask_b32 v%d, v%d, v%d, vcc" %
          (V_TMP0, V_LANE, V_TMP0, V_TMP1, 8 << self.fs, V_PA, V_TMP2, 2 << self.fs, V_PA, V_PA, V_TMP2, V_TMP1))
        A("global_load_dword v%d, v%d, %s sc1" % (V_FA, V_PA, sp(S_WS)))
        A("s_mov_b32 s%d, 6\ns_branch L_loop" % S_LL)
        A("L_ev2:")
        A("s_mov_b32 s%d, %d" % (S_LL, self.cpf2 if self.cpf2 else FIN))
        A("v_cmp_ne_u32 vcc, s%d, v%d\ns_cbranch_vccz L_loop" % (S_TAG, V_FA))
        self.poll(V_PA)
        A("s_branch L_loop")
        A("L_hook:")
        if self.nopeel:
            A("s_cmp_eq_u32 m0, 17\ns_cbranch_scc1 L_tail\ns_mov_b32 s%d, 17" % S_HOOK)
        A("s_waitcnt vmcnt(16)")
        A("v_cmp_ne_u32 vcc, s%d, v%d\ns_cbranch_vccz L_mid" % (S_TAG, V_FA))
        self.poll(V_PA)
        A("s_branch L_mid")
        A("L_tail:")
        if not self.nopeel:
            it = self.iteration(0, loads=False)
            for s in it:
                if s.startswith("@WZ"): s = "s_waitcnt vmcnt(%d)" % (self.wc[s] - 3)
                elif s.startswith("@W"): s = "s_waitcnt vmcnt(0)"
                A(s)
        it = self.iteration(1, loads=False)
        idx = [k for k, s in enumerate(it) if s.startswith("v_mfma")]
        prev = ""
        for k, s in enumerate(it[:idx[32]]):
            if s.startswith("v_mfma") and k < idx[16]: continue
            if k >= idx[16] and not s.startswith("v_mfma"):
                if s not in (self.op_f('b', 0), self.op_f('b', 1)): continue
            if s.startswith("@"): continue
            if prev.startswith("v_exp") and not s.startswith("v_exp"): A("s_nop 0")
            A(s); prev = s
        self.stamp(6)
        self.cstamp(9)

    def epilogue(self):
        A = self.A
        ln = V_LANE
        NM = V_NM['a']; LL = V_L['a']
        seqs = [self.xlane("v_add_f32", LL + q, 16 + q) for q in range(4)]
        for grp in zip(*seqs):
            if grp[0].startswith("s_nop"): continue
            for l in grp: A(l)
        for q in range(4): A("v_mov_b32 v%d, v%d" % (NM + 4 * q + 1, LL + q))
        A("s_lshl_b32 s%d, s%d, 11\ns_add_u32 s%d, s%d, %d" % (S_T0, S_W, S_T0, S_T0, L_ST))
        A("v_lshlrev_b32 v44, 3, v%d\nv_add_u32 v45, s%d, v44" % (ln, S_T0))
        for q in range(4): A("ds_write_b64 v45, v[%d:%d] offset:%d" % (NM + 4 * q, NM + 4 * q + 1, 512 * q))
        for d in range(4):
            skip = self.label("L_skipw")
            A("s_cmp_eq_u32 s%d, %d\ns_cbranch_scc1 %s" % (S_W, d, skip))
            A("s_sub_u32 s%d, s%d, %d\ns_and_b32 s%d, s%d, 3\ns_lshl_b32 s%d, s%d, 13\ns_add_u32 s%d, s%d, %d" %
              (S_T0, S_W, d + 1, S_T0, S_T0, S_T0, S_T0, S_T0, S_T0, L_O + d * 3 * 8192))
            A("v_add_u32 v45, s%d, v%d" % (S_T0, V_KOFF0))
            for idx in range(8): A("ds_write_b128 v45, a[%d:%d] offset:%d" % (32 * d + 4 * idx, 32 * d + 4 * idx + 3, idx * 1024))
            A("%s:" % skip)
        own = 128
        done = self.label("L_own")
        for d in range(4):
            nxt = self.label("L_ownn")
            if d < 3: A("s_cmp_lg_u32 s%d, %d\ns_cbranch_scc1 %s" % (S_W, d, nxt))
            for r in range(32): A("v_accvgpr_read_b32 v%d, a%d" % (own + r, 32 * d + r))
            if d < 3: A("s_branch %s\n%s:" % (done, nxt))
        A("%s:" % done)
        A("s_waitcnt lgkmcnt(0)\ns_barrier")
        st = 16
        A("s_lshl_b32 s%d, s%d, 9\ns_add_u32 s%d, s%d, %d" % (S_T1, S_W, S_T1, S_T1, L_ST))
        for k in range(4):
            A("s_add_u32 s%d, s%d, %d\ns_and_b32 s%d, s%d, 3\ns_lshl_b32 s%d, s%d, 11\ns_add_u32 s%d, s%d, s%d" % (S_T0, S_W, k, S_T0, S_T0, S_T0, S_T0, S_T0, S_T0, S_T1))
            A("v_add_u32 v45, s%d, v44" % S_T0)
            A("ds_read_b64 v[%d:%d], v45" % (st + 2 * k, st + 2 * k + 1))
        A("s_mul_i32 s%d, s%d, 24576\ns_add_u32 s%d, s%d, %d\nv_add_u32 v45, s%d, v%d" % (S_T0, S_W, S_T0, S_T0, L_O, S_T0, V_KOFF0))
        pb = 160
        order = [(k, idx) for idx in range(8) for k in range(3)]
        for (k, idx) in order[:9]:
            r = pb + (k * 8 + idx) * 4
            A("ds_read_b128 v[%d:%d], v45 offset:%d" % (r, r + 3, k * 8192 + idx * 1024))
        A("s_waitcnt lgkmcnt(9)")
        F = 32
        A("v_min3_f32 v40, v%d, v%d, v%d\nv_min_f32 v40, v40, v%d" % (st, st + 2, st + 4, st + 6))
        for k in range(4): A("v_sub_f32 v%d, v40, v%d" % (F + k, st + 2 * k))
        for k in range(4): A("v_exp_f32 v%d, v%d" % (F + k, F + k))
        A("s_nop 0")
        A("v_mul_f32 v41, v%d, v%d" % (F, st + 1))
        for k in range(1, 4): A("v_fmac_f32 v41, v%d, v%d" % (F + k, st + 2 * k + 1))
        A("v_rcp_f32 v41, v41\ns_nop 0")
        for k in range(4): A("v_mul_f32 v%d, v%d, v41" % (F + k, F + k))
        A("s_lshl_b32 s%d, s%d, 19\ns_lshl_b32 s%d, s%d, 14\ns_add_u32 s%d, s%d, s%d\ns_lshl_b32 s%d, s%d, 12\ns_add_u32 s%d, s%d, s%d" %
          (S_T0, S_H, S_T1, S_I, S_T0, S_T0, S_T1, S_T1, S_W, S_T0, S_T0, S_T1))
        A("v_and_b32 v42, 15, v%d\nv_lshrrev_b32 v43, 4, v%d\nv_lshlrev_b32 v42, 8, v42\nv_lshl_add_u32 v42, v43, 5, v42\nv_add_u32 v42, s%d, v42" % (ln, ln, S_T0))
        issued = 9
        ob = 48
        for idx in range(8):
            while issued < min(24, 3 * idx + 12):
                k, i2 = order[issued]
                r = pb + (k * 8 + i2) * 4
                A("ds_read_b128 v[%d:%d], v45 offset:%d" % (r, r + 3, k * 8192 + i2 * 1024)); issued += 1
            A("s_waitcnt lgkmcnt(%d)" % (issued - 3 * idx - 3))
            for pr in range(2):
                r = own + idx * 4 + 2 * pr
                A("v_pk_mul_f32 %s, %s, %s op_sel_hi:[1,0]" % (P2(r), P2(r), P2(F)))
                for k in range(3):
                    fr = F + 1 + k
                    q = fr & 1
                    A("v_pk_fma_f32 %s, %s, %s, %s op_sel:[0,%d,0] op_sel_hi:[1,%d,1]" % (P2(r), P2(pb + (k * 8 + idx) * 4 + 2 * pr), P2(fr & ~1), P2(r), q, q))
            if (idx & 3) == 3:
                dh = idx >> 2
                for hf in range(2):
                    o = ob + (dh * 2 + hf) * 4
                    for ii in range(2):
                        i = 2 * hf + ii
                        for tp in range(2):
                            A("v_cvt_pk_bf16_f32 v%d, v%d, v%d" % (o + 2 * ii + tp, own + (dh * 4 + 2 * tp) * 4 + i, own + (dh * 4 + 2 * tp + 1) * 4 + i))
                    A("global_store_dwordx4 v42, v[%d:%d], %s offset:%d %s" % (o, o + 3, sp(S_OUT), 128 * dh + 16 * hf, self.omod))

    def dump_stamps(self):
        if not self.stamps: return
        A = self.A
        A("s_lshl_b32 s100, s2, 2\ns_add_u32 s100, s100, s%d\ns_lshl_b32 s100, s100, 6\ns_add_u32 s100, s100, %d" % (S_W, 16 << 20))
        A("v_lshlrev_b32 v2, 2, v%d\nv_add_u32 v2, s100, v2\ns_mov_b64 exec, 0xffff" % V_LANE)
        A("global_store_dword v2, v%d, %s\ns_mov_b64 exec, -1" % (V_STAMP, sp(S_WS)))

    def build(self):
        A = self.A
        K = NAME + "_kernel"
        self.cold = []
        self.compute_waits()
        hdr = open("cdna_kernels/%s.s.ref" % NAME).read().split("; @launch")[0]
        A(hdr.rstrip("\n"))
        A("; @launch grid=(256,1,1) block=(256,1,1) lds=%d" % LDS_BYTES)
        A('.amdgcn_target "amdgcn-amd-amdhsa--gfx950"\n.text')
        A(".globl %s\n.p2align 8\n.type %s,@function\n%s:" % (K, K, K))
        self.phase1()
        self.main()
        self.epilogue()
        A("s_cmp_lg_u32 s2, 0\ns_cbranch_scc1 L_noep\ns_cmp_lg_u32 s%d, 0\ns_cbranch_scc1 L_noep" % S_W)
        A("v_mov_b32 v1, %d\nv_mov_b32 v2, s%d\ns_mov_b64 exec, 1\nglobal_store_dword v1, v2, %s sc1\ns_mov_b64 exec, -1" % (WS_EPOCH, S_TAG, sp(S_WS)))
        A("L_noep:")
        self.stamp(7)
        self.dump_stamps()
        if self.probe is not None:
            A("v_readlane_b32 s70, v7, %d\ns_nop 3\ns_add_u32 s70, s70, 3000\nL_spin:\ns_memrealtime s[100:101]\ns_waitcnt lgkmcnt(0)\ns_sub_u32 s71, s70, s100\ns_cmp_gt_i32 s71, 0\ns_cbranch_scc1 L_spin" % self.probe)
        A("L_end:\ns_endpgm")
        live = [st for st in self.stubs if any(s.endswith(' ' + st[0]) for s in self.L)]
        for stub, ret, x in live:
            A("%s:\ns_call_b64 s[%d:%d], L_sub_%s\ns_branch %s" % (stub, S_RET, S_RET + 1, x, ret))
        self.subs()
        A("L_codeend:")
        for lab, ret, regs in self.cold:
            A("%s:" % lab)
            for k in range(0, len(regs), 2): self.round_pair(regs[k])
            A("s_branch %s" % ret)
        self.slow_sub('a'); self.slow_sub('b')
        A('.section .rodata,"a"')
        A('.p2align 6\n.amdhsa_kernel %s\n  .amdhsa_next_free_vgpr 512\n  .amdhsa_next_free_sgpr 102\n  .amdhsa_accum_offset 256\n'
          '  .amdhsa_group_segment_fixed_size 0\n  .amdhsa_kernarg_size 112\n  .amdhsa_user_sgpr_count 2\n'
          '  .amdhsa_user_sgpr_kernarg_segment_ptr 1\n  .amdhsa_system_sgpr_workgroup_id_x 1\n.end_amdhsa_kernel' % K)
        return "\n".join(self.L) + "\n"

if __name__ == "__main__":
    ap = argparse.ArgumentParser()
    ap.add_argument("out")
    ap.add_argument("--stamps", action="store_true")
    ap.add_argument("--probe", type=int, default=None)
    ap.add_argument("--sleep", type=int, default=4)
    ap.add_argument("--fs", type=int, default=6)
    ap.add_argument("--omod", default="")
    ap.add_argument("--qsplit", type=int, default=9)
    ap.add_argument("--pollearly", action="store_true")
    ap.add_argument("--r2pos", type=int, default=0)
    ap.add_argument("--vpre", type=int, default=4)
    ap.add_argument("--r1pos", type=int, default=1)
    ap.add_argument("--period", type=int, default=0)
    ap.add_argument("--exactw", type=int, default=1)
    ap.add_argument("--cpf", type=int, default=0)
    ap.add_argument("--cpf2", type=int, default=0)
    ap.add_argument("--nopeel", type=int, default=0)
    ap.add_argument("--hshare", type=int, default=0)
    ap.add_argument("--qbar", type=int, default=0)
    ap.add_argument("--qt", default=""); ap.add_argument("--kt", default="")
    a = ap.parse_args()
    g = Gen(**vars(a))
    open(a.out, "w").write(g.build())
    print(g.wc, "lines", len(g.L))
```
